```python
import torch

def _softmax(x, axis=-1):
    return torch.softmax(x, dim=axis)

def _gelu(x):
    return torch.nn.functional.gelu(x, approximate='tanh')

def _silu(x):
    return torch.nn.functional.silu(x)

def _sigmoid(x):
    return torch.sigmoid(x)

def _layernorm(x, axis=-1, eps=1e-05):
    m = x.mean(dim=axis, keepdim=True)
    v = x.var(dim=axis, keepdim=True, unbiased=False)
    return (x - m) / torch.sqrt(v + eps)

def _scatter_add(tgt, idx, src, axis=0):
    return tgt.clone().index_add_(axis, idx, src)

def _segment_sum(src, seg, n):
    out = torch.zeros((n,) + src.shape[1:], dtype=src.dtype)
    return out.index_add_(0, seg, src)

def _pad(x, pw):
    flat = tuple((v for pair in reversed(pw) for v in pair))
    return torch.nn.functional.pad(x, flat)
kernel_name = 'standalone__autoregressive_conv_wavernn__speech'

def setup_inputs():

    _w = lambda a: (lambda t: t.to(torch.bfloat16) if t.is_floating_point() else t)(torch.as_tensor(a))
    B, T, D, K = (2, 1000, 256, 15)
    return {'x': _w((lambda *s: torch.randn(*s, dtype=torch.bfloat16) * 0.05)(B, T, D)), 'w': _w((lambda *s: torch.randn(*s, dtype=torch.bfloat16) * 0.05)(K, D, 2 * D))}

def reference(x, w):
    B, T, D = x.shape
    K = w.shape[0]
    dil = 2
    pad = (K - 1) * dil
    xp = _pad(x, ((0, 0), (pad, 0), (0, 0)))
    h = torch.einsum('btd,de->bte', xp[:, 0:T, :], w[0])
    for i in range(1, K):
        h = h + torch.einsum('btd,de->bte', xp[:, i * dil:i * dil + T, :], w[i])
    f, g = (h[..., :D].clone(), h[..., D:].clone())
    return torch.tanh(f) * _sigmoid(g)
```

```python
import sys, math

NAME = "standalone__autoregressive_conv_wavernn__speech_kernel"
LOG2E = 1.4426950408889634
import struct
def f2u(x): return struct.unpack("<I", struct.pack("<f", x))[0]

DEF = dict(RING=29, NX=5, n_early=11, lead=9, safe=5, K0=20, rate=(1,1,2), mapping="a", diag=0,
           x1_after=14, clr_after=8, tb_back=60, hb_back=10, prio=1, spin=200000, codepf=0)

XCH = 1056
XL = 20*XCH

def mfma_seq(q, cfg):
    ne = cfg["n_early"]
    own = (2*q, 2*q+1)
    seq = []
    for tau in range(67):
        for c in range(7, -1, -1):
            sg = tau - c
            if 0 <= sg < 60 and (c not in own or sg < ne):
                seq.append((c, sg, 1, tau))
    p1 = len(seq)
    for tau in range(ne, 61):
        for c in (own[1], own[0]):
            sg = tau - (c - own[0])
            if ne <= sg < 60:
                seq.append((c, sg, 2, 100+tau))
    assert len(seq) == 480
    return seq, p1

class Compute:
    def __init__(self, q, cfg):
        self.q, self.cfg = q, cfg
        RING, NX = cfg["RING"], cfg["NX"]
        self.XBASE = RING*4096
        self.vWA0, self.vWA1, self.vXA, self.vSEND, self.vOUT0, self.vOUT1, self.vHA = 1, 2, 3, 4, 5, 6, 7
        self.ACC = 8
        self.XB = self.ACC + 32
        self.WB = self.XB + 4*NX
        self.NW = (256 - self.WB)//4
        seq, p1 = mfma_seq(q, cfg)
        self.seq, self.p1 = seq, p1
        ne = cfg["n_early"]
        E = max(0, 60 - ne - self.NW)
        a = 60 - RING + 3
        self.evict = set(range(a, a+E))
        self.hslots = [(60-RING+k) % RING for k in range(3)]
        xin, win = {}, {}
        self.xi, self.wi = [], []
        for k, (c, sg, ph, step) in enumerate(seq):
            ds, i = divmod(sg, 15)
            key = (ds, c+i, step)
            xin.setdefault(key, []).append(k); self.xi.append(key)
            wkey = (sg, 2 if (ph == 2 and sg in self.evict) else 1)
            win.setdefault(wkey, []).append(k); self.wi.append(wkey)
        self.xin, self.win = xin, win

    def acc(self, c): return self.ACC + 4*c

    def build(self):
        cfg, q, seq = self.cfg, self.q, self.seq
        RING, NX, lead, safe = cfg["RING"], cfg["NX"], cfg["lead"], cfg["safe"]
        h = q & 1
        ops = []
        for key, uses in self.xin.items(): ops.append((uses[0], 0, "x", key))
        for key, uses in self.win.items(): ops.append((uses[0], 1, "w", key))
        ops.sort()
        ws = [o[3][0] for o in ops if o[2] == "w" and o[3][1] == 1]
        assert ws == sorted(ws)
        out = []
        self.ninst = 0
        def emit(s):
            out.append("    " + s); self.ninst += 1
        xfree = list(range(NX)); wfree = list(range(self.NW))
        xreg, wreg = {}, {}
        lds_issued = []
        lastidx = {}
        covered = 0
        nbar = 0
        self.free_bar = {}
        self.x1_bar = None
        pend_free = []
        release = {}
        for key, uses in self.xin.items(): release.setdefault(uses[-1], []).append(("x", key))
        for key, uses in self.win.items(): release.setdefault(uses[-1], []).append(("w", key))
        lastuse = {}
        for k, (c, sg, ph, st) in enumerate(seq): lastuse[c] = k
        sends = []
        for d in range(4):
            if d != q: sends.append([max(lastuse[2*d], lastuse[2*d+1]), d])
        sends.sort()
        valu_q = []
        mf_inst = {}
        oi = 0
        half = None
        tb, hb = 480 - cfg["tb_back"], 480 - cfg["hb_back"]
        HR = self.WB
        def barrier():
            nonlocal nbar
            for sg in list(pend_free):
                if lastidx[("w", (sg, 1))] < covered:
                    self.free_bar[sg] = nbar; pend_free.remove(sg)
            emit("s_barrier"); nbar += 1
        def wread(key, hf, g):
            sg = key[0]; off = (sg % RING)*4096 + 512*hf
            va = self.vWA0
            if off >= 65536: off -= 65536; va = self.vWA1
            r = self.WB + 4*wreg[key] + 2*hf
            emit(f"ds_read_b64_tr_b16 v[{r}:{r+1}], v{va} offset:{off}")
            lds_issued.append((g, key)); lastidx[("w", key)] = len(lds_issued)-1
        def try_issue(g, urgent_only):
            nonlocal oi, half
            if half is not None:
                wread(half, 1, g)
                if half[1] == 1: pend_free.append(half[0])
                half = None
                return True
            if oi >= len(ops): return False
            need, _, kind, key = ops[oi]
            if need - g > (lead - 3 if urgent_only else lead): return False
            if kind == "x":
                if not xfree: return False
                ds, u, _ = key
                if nbar == 0: barrier()
                if ds >= 2 and self.x1_bar is None: self.x1_bar = nbar - 1
                xreg[key] = xfree.pop(0)
                off = (ds >> 1)*XL + (u >> 3)*2*XCH + (u & 7)*128 + (ds & 1)*64
                r = self.XB + 4*xreg[key]
                emit(f"ds_read_b128 v[{r}:{r+3}], v{self.vXA} offset:{off}")
                lds_issued.append((g, key)); lastidx[("x", key)] = len(lds_issued)-1
            else:
                if not wfree: return False
                if key[1] == 1:
                    while nbar <= key[0]: barrier()
                wreg[key] = wfree.pop(0)
                wread(key, 0, g); half = key
            oi += 1
            return True
        def wait_for(idx, g):
            nonlocal covered
            if idx < covered: return
            j = idx
            while j+1 < len(lds_issued) and lds_issued[j+1][0] <= g - safe: j += 1
            n = len(lds_issued) - 1 - j
            assert n <= 15, n
            emit(f"s_waitcnt lgkmcnt({n})"); covered = j+1
        started = set()
        for k in range(480):
            g = k-1
            c, sg, ph, st = seq[k]
            if k == 0:
                for _ in range(3): try_issue(g, False)
            else:
                n = 0
                if try_issue(g, False): n += 1
                if try_issue(g, True): n += 1
                while sends and sends[0][0] in mf_inst and self.ninst - mf_inst[sends[0][0]] >= 9:
                    d = sends.pop(0)[1]; a0, a1 = self.acc(2*d), self.acc(2*d+1)
                    valu_q += [f"v_cvt_pk_bf16_f32 v{a0}, v{a0}, v{a0+1}", f"v_cvt_pk_bf16_f32 v{a0+1}, v{a0+2}, v{a0+3}",
                               f"v_cvt_pk_bf16_f32 v{a0+2}, v{a1}, v{a1+1}", f"v_cvt_pk_bf16_f32 v{a0+3}, v{a1+2}, v{a1+3}"]
                    valu_q += [f"v_min_u32 v{a0+j}, -2, v{a0+j}" for j in range(4)]
                    valu_q += [f"buffer_store_dwordx4 v[{a0}:{a0+3}], v{self.vSEND}, s[28:31], s{40+d} offen sc1"]
                while valu_q and n < 2:
                    emit(valu_q.pop(0)); n += 1
                if k == tb:
                    assert nbar == 60 and not sends and not valu_q
                    barrier()
                if k == hb:
                    barrier()
                    rr = []
                    for j in range(3):
                        s_ = wfree.pop(0); r = self.WB + 4*s_; rr.append(r)
                        off = self.hslots[j]*4096
                        emit(f"ds_read_b128 v[{r}:{r+3}], v{self.vHA} offset:{off}")
                        lds_issued.append((g, ("h", j)))
                    self.hregs = rr; hidx = len(lds_issued)-1
            while ("x", self.xi[k]) not in lastidx or ("w", self.wi[k]) not in lastidx or half == self.wi[k]:
                ok = try_issue(g, False)
                assert ok, (k, self.xi[k], self.wi[k])
            wait_for(max(lastidx[("x", self.xi[k])], lastidx[("w", self.wi[k])]), g)
            a = self.acc(c); wr = self.WB + 4*wreg[self.wi[k]]; xr = self.XB + 4*xreg[self.xi[k]]
            cs = f"v[{a}:{a+3}]" if c in started else "0"
            started.add(c)
            emit(f"v_mfma_f32_16x16x32_bf16 v[{a}:{a+3}], v[{wr}:{wr+3}], v[{xr}:{xr+3}], {cs}")
            mf_inst[k] = self.ninst
            for kind, key in release.get(k, []):
                (xfree if kind == "x" else wfree).append((xreg if kind == "x" else wreg)[key])
        assert nbar == 62
        P, Y0, Y1 = self.hregs
        T = [self.WB + 4*wfree.pop(0) for _ in range(2)]
        emit("s_waitcnt lgkmcnt(0)")
        for j in range(4):
            t = T[j >> 1] + 2*(j & 1)
            emit(f"v_lshlrev_b32 v{t}, 16, v{P+j}")
            emit(f"v_and_b32 v{t+1}, 0xffff0000, v{P+j}")
        for cc in (0, 1):
            a = self.acc(2*q+cc); t = T[cc]; Y = (Y0, Y1)[cc]
            for j in range(4): emit(f"v_add_f32 v{t+j}, v{a+j}, v{t+j}")
            for j in range(4): emit(f"v_mul_f32 v{t+j}, s36, v{t+j}")
            for j in range(4): emit(f"v_exp_f32 v{t+j}, v{t+j}")
            for j in range(4): emit(f"v_add_f32 v{t+j}, 1.0, v{t+j}")
            for j in range(4): emit(f"v_rcp_f32 v{t+j}, v{t+j}")
            if h == 0:
                for j in range(4): emit(f"v_fma_f32 v{t+j}, v{t+j}, -2.0, 1.0")
            for j in range(4): emit(f"v_mul_f32 v{t+j}, v{t+j}, v{Y+j}")
            emit(f"v_cvt_pk_bf16_f32 v{t}, v{t}, v{t+1}")
            emit(f"v_cvt_pk_bf16_f32 v{t+1}, v{t+2}, v{t+3}")
            emit(f"buffer_store_dwordx2 v[{t}:{t+1}], v{(self.vOUT0, self.vOUT1)[cc]}, s[24:27], 0 offen")
        return "\n".join(out) + "\n"

def gen(**kw):
    cfg = dict(DEF); cfg.update(kw)
    RING = cfg["RING"]; diag = cfg["diag"]
    comps = [Compute(q, cfg) for q in range(4)]
    bodies = [c.build() for c in comps]
    free_bar = {sg: max(c.free_bar[sg] for c in comps) for sg in range(60 - RING)}
    x1_bar = min(c.x1_bar for c in comps)
    XBASE = RING*4096
    lds = XBASE + 2*XL
    c0 = comps[0]
    s = f"; generated by gen1.py  cfg={cfg}\n"
    s += f"; @launch grid=(256,1,1) block=(512,1,1) lds={lds}\n"
    s += f""".amdgcn_target "amdgcn-amd-amdhsa--gfx950"
.text
.globl {NAME}
.p2align 8
.type {NAME},@function
{NAME}:
    s_cmp_ge_u32 s2, 256
    s_cbranch_scc1 L_end
"""
    if diag: s += "    s_memrealtime s[94:95]\n    s_memtime s[96:97]\n"
    s += f"""    s_load_dwordx2 s[16:17], s[0:1], 0      ; x
    s_load_dwordx2 s[20:21], s[0:1], 8      ; w
    s_load_dwordx2 s[24:25], s[0:1], 16     ; out
    s_load_dwordx2 s[32:33], s[0:1], 24     ; debug
    s_load_dwordx2 s[28:29], s[0:1], 32     ; ws
    v_lshrrev_b32 v1, 6, v0
    v_and_b32 v0, 63, v0                    ; lane
    v_readfirstlane_b32 s3, v1              ; wave
    s_and_b32 s4, s2, 3                     ; role q
    s_lshr_b32 s9, s2, 2                    ; group
"""
    if cfg["mapping"] == "a":
        s += """    s_bfe_u32 s5, s2, 0x10002               ; batch
    s_bfe_u32 s6, s2, 0x20003
    s_lshr_b32 s7, s2, 5
"""
    else:
        s += """    s_bfe_u32 s6, s2, 0x20002
    s_bfe_u32 s5, s2, 0x10004               ; batch
    s_lshr_b32 s7, s2, 5
"""
    s += f"""    s_mul_i32 s8, s5, 512000
    s_mov_b32 s18, 512000
    s_mov_b32 s19, 0x20000
    s_mov_b32 s22, 3932160
    s_mov_b32 s23, 0x20000
    s_mov_b32 s26, 512000
    s_mov_b32 s27, 0x20000
    s_mov_b32 s30, {(8<<20) if diag else (4<<20)}
    s_mov_b32 s31, 0x20000
    s_mov_b32 s34, 512
    s_mov_b32 s35, 0x20000
    s_and_b32 s10, s3, 3                    ; wave & 3
    s_cmp_ge_u32 s3, 4
    s_cbranch_scc1 L_compute
    s_lshr_b32 s11, s4, 1                   ; kh
    s_lshl_b32 s12, s7, 7
    s_lshr_b32 s13, s3, 1
    s_lshl_b32 s13, s13, 4
    s_add_u32 s12, s12, s13
    s_and_b32 s13, s3, 1
    s_add_u32 s12, s12, s13
    s_sub_u32 s12, s12, 28
    s_lshl_b32 s12, s12, 9
    s_lshl_b32 s14, s11, 8
    s_add_u32 s12, s12, s14
    v_lshrrev_b32 v2, 3, v0
    v_lshlrev_b32 v2, 10, v2
    v_and_b32 v3, 7, v0
    v_lshlrev_b32 v3, 4, v3
    v_add3_u32 v8, v2, v3, s12              ; x voffset m=0
    v_add_u32 v9, 0x4000, v8
    v_add_u32 v10, 0x8000, v8
    v_add_u32 v11, 0xc000, v8
    v_add_u32 v12, 0x10000, v8
    s_lshl_b32 s13, s13, 6
    v_and_b32 v4, 16, v0
    v_lshlrev_b32 v4, 1, v4
    v_or_b32 v4, s13, v4
    v_xor_b32 v3, v3, v4
    s_lshl_b32 s12, s3, 13
    s_lshl_b32 s14, s11, 17
    s_add_u32 s12, s12, s14
    s_and_b32 s14, s4, 1
    s_lshl_b32 s14, s14, 9
    s_add_u32 s12, s12, s14
    s_lshl_b32 s14, s6, 7
    s_add_u32 s12, s12, s14
    v_add3_u32 v7, v2, v3, s12              ; w voffset
    s_mul_i32 s36, s3, {XCH}
    s_add_u32 s36, s36, {XBASE}
    s_lshl_b32 s37, s3, 10
    s_waitcnt lgkmcnt(0)
    s_add_u32 s16, s16, s8
    s_addc_u32 s17, s17, 0
"""
    if diag: s += "    s_memtime s[98:99]\n"
    order = [("x", 0, m) for m in range(5)]
    for sg in range(60):
        order.append(("w", sg))
        k = sg - cfg["x1_after"]
        if 0 <= k < 10 and k % 2 == 0: order.append(("x", 1, k//2))
        k = sg - cfg["clr_after"]
        if 0 <= k < 3: order.append(("clr", k))
    issued = []
    def op_asm(op):
        if op[0] == "x":
            _, L, m = op
            return (f"    s_add_u32 m0, s36, {L*(XL-128) + 4*m*XCH}\n    s_nop 0\n"
                    f"    buffer_load_dwordx4 v{8+m}, s[16:19], 0 offen offset:{128*L} lds\n")
        if op[0] == "w":
            sg = op[1]; ds, i = divmod(sg, 15)
            return (f"    s_add_u32 m0, s37, {(sg % RING)*4096}\n    s_mov_b32 s38, {i*262144 + ds*32768}\n"
                    f"    buffer_load_dwordx4 v7, s[20:23], s38 offen lds\n")
        if op[0] == "clr":
            return f"    buffer_store_dwordx4 v[16:19], v13, s[28:31], s{44+op[1]} offen sc1\n"
        if op[0] == "flag":
            return f"    buffer_store_byte v15, v14, s[32:35], 0 offen sc1\n"
    setup2 = f"""    v_lshlrev_b32 v13, 4, v0
    v_add_u32 v13, s37, v13
    s_lshl_b32 s12, s9, 16                  ; group*64K
"""
    for p in (1, 2, 3):
        setup2 += f"""    s_xor_b32 s13, s4, {p}
    s_lshl_b32 s14, s13, 2
    s_add_u32 s14, s14, s4
    s_lshl_b32 s14, s14, 12
    s_add_u32 s{43+p}, s14, s12
    s_lshl_b32 s14, s4, 2
    s_add_u32 s14, s14, s13
    s_lshl_b32 s14, s14, 12
    s_add_u32 s{47+p}, s14, s12
"""
    setup2 += f"""    v_mov_b32 v16, -1
    v_mov_b32 v17, -1
    v_mov_b32 v18, -1
    v_mov_b32 v19, -1
    v_mov_b32 v15, 1
    v_lshlrev_b32 v14, 8, v13
    v_add_u32 v14, s2, v14
    s_lshl_b32 s12, s9, 2
    v_mov_b32 v20, s12                      ; group flags
"""
    oi = 0; flag_done = False; clr_cov_bar = None
    stamps = {0: 0, 1: 1, 8: 2, 15: 3, 30: 4, 45: 5, 59: 6}
    def can(op, nb):
        return not (op[0] == "w" and op[1] >= RING and nb <= free_bar[op[1]-RING])
    for n in range(60):
        quota = cfg["K0"] if n == 0 else cfg["rate"][n % len(cfg["rate"])]
        cnt = 0
        while oi < len(order) and can(order[oi], n) and (cnt < quota or ("w", n) not in issued):
            if order[oi][0] == "clr" and order[oi][1] == 0: s += setup2
            s += op_asm(order[oi]); issued.append(order[oi]); oi += 1; cnt += 1
        if clr_cov_bar is not None and not flag_done and n > clr_cov_bar:
            s += op_asm(("flag",)); issued.append(("flag",)); flag_done = True
        need = issued.index(("w", n))
        if n >= x1_bar: need = max(need, issued.index(("x", 1, 4)))
        if clr_cov_bar is None and ("clr", 2) in issued and need > issued.index(("clr", 2)): clr_cov_bar = n
        vm = len(issued) - 1 - need
        assert vm <= 63
        s += f"    s_waitcnt vmcnt({vm})\n    s_barrier\n"
        if diag and n in stamps: s += f"    s_memtime s[{64+2*stamps[n]}:{65+2*stamps[n]}]\n"
    assert oi == len(order) and flag_done
    h0, h1, h2 = c0.hslots
    s += f"""; wait until the three partners have cleared the slots they will write
    s_mov_b32 s13, 0
L_flag:
    buffer_load_dword v21, v20, s[32:35], 0 offen sc1
    s_add_u32 s13, s13, 1
    s_waitcnt vmcnt(0)
    v_readfirstlane_b32 s12, v21
    s_cmp_ge_u32 s13, {cfg["spin"]}
    s_cbranch_scc1 L_flagok
    s_cmp_eq_u32 s12, 0x01010101
    s_cbranch_scc0 L_flag
L_flagok:
"""
    if diag: s += "    s_memtime s[78:79]\n    s_mov_b32 s92, s13\n"
    s += f"""    s_bitcmp1_b32 s4, 0
    s_mov_b32 s40, {f2u(-LOG2E):#x}
    s_cselect_b32 s40, {f2u(2*LOG2E):#x}, s40
    s_cselect_b32 s41, -2.0, 1.0
    s_cselect_b32 s42, 1.0, 0
    v_mov_b32 v22, s42
    s_mov_b32 s13, 0
    s_barrier
"""
    if diag: s += "    s_memtime s[80:81]\n"
    s += f"""L_poll:
    buffer_load_dwordx4 v[24:27], v13, s[28:31], s48 offen sc1
    buffer_load_dwordx4 v[28:31], v13, s[28:31], s50 offen sc1
    buffer_load_dwordx4 v[32:35], v13, s[28:31], s49 offen sc1
    s_add_u32 s13, s13, 1
    s_waitcnt vmcnt(0)
    v_max3_u32 v36, v24, v25, v26
    v_max3_u32 v37, v27, v28, v29
    v_max3_u32 v38, v30, v31, v32
    v_max3_u32 v39, v33, v34, v35
    v_max3_u32 v36, v36, v37, v38
    v_max_u32 v36, v36, v39
    v_cmp_eq_u32 vcc, -1, v36
    s_cmp_ge_u32 s13, {cfg["spin"]}
    s_cbranch_scc1 L_got
    s_cbranch_vccnz L_poll
L_got:
"""
    if diag: s += "    s_memtime s[82:83]\n    s_mov_b32 s93, s13\n    s_waitcnt lgkmcnt(0)\n"
    s += f"    ds_write_b128 v13, v[32:35] offset:{h0*4096}\n"
    for j in range(4):
        s += f"    v_lshlrev_b32 v{40+2*j}, 16, v{24+j}\n    v_and_b32 v{41+2*j}, 0xffff0000, v{24+j}\n"
        s += f"    v_lshlrev_b32 v{48+2*j}, 16, v{28+j}\n    v_and_b32 v{49+2*j}, 0xffff0000, v{28+j}\n"
    for j in range(8): s += f"    v_add_f32 v{40+j}, v{40+j}, v{48+j}\n"
    for j in range(8): s += f"    v_mul_f32 v{40+j}, s40, v{40+j}\n"
    for j in range(8): s += f"    v_exp_f32 v{40+j}, v{40+j}\n"
    for j in range(8): s += f"    v_add_f32 v{40+j}, 1.0, v{40+j}\n"
    for j in range(8): s += f"    v_rcp_f32 v{40+j}, v{40+j}\n"
    for j in range(8): s += f"    v_fma_f32 v{40+j}, v{40+j}, s41, v22\n"
    s += f"""    ds_write_b128 v13, v[40:43] offset:{h1*4096}
    ds_write_b128 v13, v[44:47] offset:{h2*4096}
    s_waitcnt lgkmcnt(0)
    s_barrier
"""
    if diag:
        s += "    s_memtime s[84:85]\n    s_waitcnt lgkmcnt(0)\n"
        s += "    v_mov_b32 v24, 0\n"
        vals = ["s94", "s98"] + [f"s{64+2*i}" for i in range(11)] + ["s92", "s93"]
        for i, r in enumerate(vals):
            if 1 <= i <= 12: s += f"    s_sub_u32 {r}, {r}, s96\n"
            s += f"    v_writelane_b32 v24, {r}, {i}\n"
        s += """    s_lshl_b32 s12, s2, 3
    s_add_u32 s12, s12, s3
    s_lshl_b32 s12, s12, 8
    s_add_u32 s12, s12, 0x400000
    v_lshlrev_b32 v25, 2, v0
    buffer_store_dword v24, v25, s[28:31], s12 offen
"""
    s += f"""L_end:
    s_endpgm
L_compute:
    s_setprio {cfg["prio"]}
    v_and_b32 v8, 15, v0                    ; r / i
    v_lshrrev_b32 v9, 4, v0                 ; kc / G
    v_mul_u32_u24 v3, {XCH}, v8
    v_lshl_add_u32 v3, v9, 4, v3
    v_add_u32 v3, {XBASE}, v3
    v_lshrrev_b32 v10, 2, v8
    v_lshl_add_u32 v10, v9, 3, v10          ; k row
    v_lshrrev_b32 v11, 3, v8
    v_and_b32 v12, 1, v9
    v_lshl_or_b32 v11, v12, 1, v11          ; swizzle
    v_xor_b32 v11, s10, v11
    v_lshlrev_b32 v11, 5, v11
    v_lshl_add_u32 v1, v10, 7, v11
    v_and_b32 v12, 3, v8
    v_lshl_add_u32 v1, v12, 3, v1
    v_add_u32 v2, 0x10000, v1
    s_lshl_b32 s12, s10, 10
    v_lshl_add_u32 v4, v0, 4, s12
    v_mov_b32 v7, v4
    v_lshrrev_b32 v10, 1, v8
    v_and_b32 v11, 1, v8
    v_lshl_add_u32 v10, v10, 4, v11         ; 16p + par
    s_lshl_b32 s12, s7, 7
    s_lshl_b32 s13, s4, 2
    s_add_u32 s12, s12, s13
    s_lshl_b32 s12, s12, 9
    s_lshl_b32 s13, s6, 7
    s_add_u32 s12, s12, s13
    s_lshl_b32 s13, s10, 5
    s_add_u32 s12, s12, s13
    v_lshl_add_u32 v5, v10, 9, s12
    v_lshl_add_u32 v5, v9, 3, v5
    v_add_u32 v6, 0x400, v5
    s_lshl_b32 s12, s9, 16
    s_lshl_b32 s13, s4, 12
    s_add_u32 s40, s12, s13
    s_add_u32 s41, s40, 0x4000
    s_add_u32 s42, s40, 0x8000
    s_add_u32 s43, s40, 0xc000
    s_bitcmp1_b32 s4, 0
    s_mov_b32 s36, {f2u(2*LOG2E):#x}
    s_cselect_b32 s36, {f2u(-LOG2E):#x}, s36
    s_waitcnt lgkmcnt(0)
    s_add_u32 s24, s24, s8
    s_addc_u32 s25, s25, 0
    s_cmp_eq_u32 s4, 1
    s_cbranch_scc1 L_role1
    s_cmp_eq_u32 s4, 2
    s_cbranch_scc1 L_role2
    s_cmp_eq_u32 s4, 3
    s_cbranch_scc1 L_role3
"""
    for q in range(4):
        s += f"L_role{q}:\n" + bodies[q]
        if diag:
            s += """    s_memtime s[64:65]
    s_waitcnt vmcnt(0)
    s_memtime s[66:67]
    s_memrealtime s[68:69]
    s_waitcnt lgkmcnt(0)
    s_sub_u32 s64, s64, s96
    s_sub_u32 s66, s66, s96
    v_mov_b32 v24, 0
    v_writelane_b32 v24, s94, 0
    v_writelane_b32 v24, s64, 1
    v_writelane_b32 v24, s66, 2
    v_writelane_b32 v24, s68, 3
    s_lshl_b32 s12, s2, 3
    s_add_u32 s12, s12, s3
    s_lshl_b32 s12, s12, 8
    s_add_u32 s12, s12, 0x400000
    v_lshlrev_b32 v25, 2, v0
    buffer_store_dword v24, v25, s[28:31], s12 offen
"""
        s += "    s_endpgm\n"
    s += f""".section .rodata,"a"
.p2align 6
.amdhsa_kernel {NAME}
  .amdhsa_next_free_vgpr 256
  .amdhsa_next_free_sgpr 102
  .amdhsa_accum_offset 256
  .amdhsa_group_segment_fixed_size 0
  .amdhsa_kernarg_size 40
  .amdhsa_user_sgpr_count 2
  .amdhsa_user_sgpr_kernarg_segment_ptr 1
  .amdhsa_system_sgpr_workgroup_id_x 1
.end_amdhsa_kernel
"""
    return s, lds

if __name__ == "__main__":
    kw = {}
    for a in sys.argv[2:]:
        k, v = a.split("=")
        kw[k] = eval(v)
    s, lds = gen(**kw)
    open(sys.argv[1], "w").write(s)
    print("written", sys.argv[1], "lds", lds, "lines", s.count("\n"))
```

```python
import sys, os, subprocess, ctypes, struct
sys.path.insert(0, "cdna_kernels")
import numpy as np
import cdna_launch as cl
from cdna_launch import AsmKernel, DeviceBuffer, with_harness_metadata, parse_launch_directive, pack_ptr_kernargs, _hip, _check

def build(asm_text, kname, tag):
    hs = f"bench/{tag}.harness.s"
    co = f"bench/{tag}.co"
    open(hs, "w").write(with_harness_metadata(asm_text, kname, 5))
    r = subprocess.run(["clang", "-x", "assembler", "-target", "amdgcn-amd-amdhsa", "-mcpu=gfx950", hs, "-o", co], capture_output=True, text=True)
    if r.returncode != 0:
        print(r.stderr[:4000])
        raise SystemExit("asm failed")
    return co

HEADER = """; @launch grid=({grid},1,1) block=({block},1,1) lds={lds}
.amdgcn_target "amdgcn-amd-amdhsa--gfx950"
.text
.globl {name}
.p2align 8
.type {name},@function
{name}:
"""
FOOTER = """
s_endpgm
.section .rodata,"a"
.p2align 6
.amdhsa_kernel {name}
  .amdhsa_next_free_vgpr {vgpr}
  .amdhsa_next_free_sgpr 102
  .amdhsa_accum_offset {accum}
  .amdhsa_group_segment_fixed_size 0
  .amdhsa_kernarg_size 40
  .amdhsa_user_sgpr_count 2
  .amdhsa_user_sgpr_kernarg_segment_ptr 1
  .amdhsa_system_sgpr_workgroup_id_x 1
.end_amdhsa_kernel
"""

class Env:
    def __init__(self, ws_bytes=64<<20):
        rng = np.random.default_rng(0)
        def bf16(a):
            u = a.astype(np.float32).view(np.uint32)
            return ((u + 0x7fff + ((u >> 16) & 1)) >> 16).astype(np.uint16)
        self.hx = bf16(rng.standard_normal((2,1000,256)) * 0.05)
        self.hw = bf16(rng.standard_normal((15,256,512)) * 0.05)
        self.x = DeviceBuffer.from_numpy(self.hx)
        self.w = DeviceBuffer.from_numpy(self.hw)
        self.out = DeviceBuffer(2*1000*256*2)
        self.dbg = DeviceBuffer(4096)
        self.ws = DeviceBuffer(ws_bytes)
        self.flush = None
        self.ka = pack_ptr_kernargs([self.x.ptr, self.w.ptr, self.out.ptr, self.dbg.ptr, self.ws.ptr])
    def sync(self):
        _check(_hip.hipDeviceSynchronize())
    def memset(self, buf, val, n=None):
        _check(_hip.hipMemset(ctypes.c_void_p(buf.ptr), val, n or buf.nbytes))
    def flush_caches(self, nbytes=512<<20):
        if self.flush is None:
            self.flush = DeviceBuffer(nbytes)
        self.memset(self.flush, 1)
        self.sync()

SWEEP = HEADER.format(grid=2048, block=256, lds=0, name="sweep_kernel") + """
    s_load_dwordx2 s[4:5], s[0:1], 0
    s_mov_b32 s6, 0x20000000
    s_mov_b32 s7, 0x20000
    v_lshlrev_b32 v1, 4, v0
    s_lshl_b32 s8, s2, 18
    s_mov_b32 s9, 0
    s_waitcnt lgkmcnt(0)
S_loop:
    buffer_load_dwordx4 v[4:7], v1, s[4:7], s8 offen
    s_add_u32 s8, s8, 4096
    s_add_u32 s9, s9, 1
    s_waitcnt vmcnt(8)
    s_cmp_lt_u32 s9, 64
    s_cbranch_scc1 S_loop
    s_waitcnt vmcnt(0)
""" + FOOTER.format(name="sweep_kernel", vgpr=16, accum=16)

def flush_clean(env, nwg=2048, sync=True):
    if getattr(env, "sweepk", None) is None:
        env.sweepbuf = DeviceBuffer(512 << 20)
        env.memset(env.sweepbuf, 3)
        env.sweepk = AsmKernel(build(SWEEP, "sweep_kernel", "sweep"), "sweep_kernel")
        env.sweepka = pack_ptr_kernargs([env.sweepbuf.ptr]*5)
    env.sweepk.launch((nwg,1,1), (256,1,1), env.sweepka, 0)
    if sync: env.sync()

TOUCH = HEADER.format(grid=256, block=64, lds=0, name="touch_kernel") + """
    s_load_dwordx8 s[4:11], s[0:1], 0
    s_load_dwordx2 s[12:13], s[0:1], 32
    v_mov_b32 v1, 0
    v_mov_b32 v2, 0x200000
    v_mov_b32 v3, 0x400000
    s_waitcnt lgkmcnt(0)
    global_load_dword v4, v1, s[4:5]
    global_load_dword v5, v1, s[6:7]
    global_load_dword v6, v2, s[6:7]
    global_load_dword v7, v1, s[8:9]
    global_load_dword v8, v1, s[10:11]
    global_load_dword v9, v1, s[12:13]
    global_load_dword v10, v2, s[12:13]
    global_load_dword v11, v3, s[12:13]
    s_waitcnt vmcnt(0)
""" + FOOTER.format(name="touch_kernel", vgpr=16, accum=16)
def tlb_warm(env):
    if getattr(env, "touchk", None) is None:
        env.touchk = AsmKernel(build(TOUCH, "touch_kernel", "touch"), "touch_kernel")
    env.touchk.launch((256,1,1), (64,1,1), env.ka, 0)
    env.sync()
```

```python
import sys
from common import *

def gen(kind, reads, name="pw_kernel"):
    s = HEADER.format(grid=256, block=256, lds=65536, name=name)
    s += f"""
    s_load_dwordx2 s[4:5], s[0:1], 8
    s_load_dwordx2 s[12:13], s[0:1], 32
    v_and_b32 v1, 63, v0
    v_lshrrev_b32 v2, 6, v0
    s_nop 0
    v_readfirstlane_b32 s20, v2
    s_mov_b32 s6, 3932160
    s_mov_b32 s7, 0x20000
    s_mov_b32 s14, 0x100000
    s_mov_b32 s15, 0x20000
    v_lshlrev_b32 v3, 4, v0
    s_and_b32 s21, s2, 15
    s_lshl_b32 s21, s21, 17
    s_waitcnt lgkmcnt(0)
"""
    NF = 40
    for i in range(NF):
        s += f"    buffer_load_dwordx4 v[{72+4*i}:{75+4*i}], v3, s[4:7], s21 offen\n    s_add_u32 s21, s21, 4096\n"
    s += "    s_waitcnt vmcnt(0)\n"
    for i in range(16):
        s += f"    ds_write_b128 v3, v[{72+4*i}:{75+4*i}] offset:{4096*i}\n"
    if kind == "zero":
        for r in range(72, 72+4*NF): s += f"    v_mov_b32 v{r}, 0\n"
    for r in range(8, 72): s += f"    v_mov_b32 v{r}, 0\n"
    for r in range(64): s += f"    v_accvgpr_write_b32 a{r}, 0\n"
    s += "    s_waitcnt lgkmcnt(0)\n    s_barrier\n    s_mov_b32 s24, 0\n    s_memrealtime s[28:29]\n    s_memtime s[30:31]\n    s_waitcnt lgkmcnt(0)\nLp:\n"
    F = lambda i: f"v[{72+4*(i%NF)}:{75+4*(i%NF)}]"
    W = lambda i: F(i % 20); X = lambda i: F(20 + i % 16)
    n = 0
    for st in range(20):
        for c in range(6):
            acc = f"v[{8+4*c}:{11+4*c}]"
            if kind in ("wstat", "zero"): a, b = W(st), X(st+c)
            elif kind == "wstat_swap": a, b = X(st+c), W(st)
            elif kind == "agpr": a, b = W(st), X(st+c); acc = f"a[{4*c}:{4*c+3}]"
            elif kind == "chain": a, b = W(st+c), X(st+2*c); acc = f"v[{8+4*(st%6)}:{11+4*(st%6)}]"
            elif kind == "allchange": a, b = W(st+c), X(st+2*c)
            elif kind == "alt2":
                j = st*3 + c//2; a = W(j); b = X(j + (c & 1)); acc = f"v[{8+4*(c&1)}:{11+4*(c&1)}]"
            elif kind == "same": a, b = W(0), X(0)
            if kind == "m32":
                if c < 3: s += f"    v_mfma_f32_32x32x16_bf16 v[{8+16*c}:{23+16*c}], {W(st)}, {X(st+c)}, v[{8+16*c}:{23+16*c}]\n"
            else:
                s += f"    v_mfma_f32_16x16x32_bf16 {acc}, {a}, {b}, {acc}\n"
            if c < reads:
                s += f"    ds_read_b128 v[{72+4*(36+n%4)}:{75+4*(36+n%4)}], v3 offset:{4096*(n%16)}\n"; n += 1
        if reads: s += "    s_waitcnt lgkmcnt(4)\n"
    s += f"""
    s_add_u32 s24, s24, 1
    s_cmp_lt_u32 s24, 4
    s_cbranch_scc1 Lp
    s_waitcnt lgkmcnt(0)
    s_memtime s[32:33]
    s_memrealtime s[34:35]
    s_waitcnt lgkmcnt(0)
    s_sub_u32 s36, s32, s30
    s_sub_u32 s37, s34, s28
    v_mov_b32 v4, s36
    v_mov_b32 v5, s37
    s_lshl_b32 s38, s2, 4
    s_add_u32 s38, s38, s20
    s_lshl_b32 s38, s38, 3
    v_mov_b32 v7, s38
    v_cmp_eq_u32 vcc, 0, v1
    s_and_saveexec_b64 s[40:41], vcc
    buffer_store_dwordx2 v[4:5], v7, s[12:15], 0 offen
    s_waitcnt vmcnt(0)
"""
    s += FOOTER.format(name=name, vgpr=320, accum=256)
    return s

if __name__ == "__main__":
    local = not os.path.exists('/dev/kfd')
    env = None if local else Env()
    tests = [(k, 0) for k in ["wstat", "wstat_swap", "agpr", "chain", "allchange", "alt2", "same", "zero", "m32"]] + [("wstat", 1), ("wstat", 2), ("wstat", 3), ("wstat_swap", 2), ("wstat", 0)]
    ks = []
    for i, (kind, reads) in enumerate(tests):
        co = build(gen(kind, reads), "pw_kernel", f"power{i}")
        if not local: ks.append(AsmKernel(co, "pw_kernel"))
    if local: sys.exit(0)
    res = [[] for _ in tests]
    for rep in range(9):
        for i, k in enumerate(ks):
            flush_clean(env, 512, sync=False)
            k.launch((256,1,1), (256,1,1), env.ka, 65536)
            env.sync()
            r = env.ws.to_numpy(np.uint32, (256,16,2))[:, :4, :]
            if rep: res[i].append((np.mean(r[:,:,0]), np.mean(r[:,:,1])*10))
    for t, r in zip(tests, res):
        m = np.median(np.array(r), axis=0)
        print(t, f"clk={m[0]:.0f} ns={m[1]:.0f} MHz={m[0]/m[1]*1000:.0f}")
```

```python
import sys, math, struct

NAME = "standalone__autoregressive_conv_wavernn__speech_kernel"
LOG2E = 1.4426950408889634
def f2u(x): return struct.unpack("<I", struct.pack("<f", x))[0]

DEF = dict(RING=29, n_early=0, n_late=18, lead=8, safe=5, wcap=6, wsplit=1, x4b=1, w1at=2, burst0=8, gapmax=2,
           mapping="b", diag=0, single=4, grp=2,
           pre=["x0", "x1", "x2", "x3", "w", "P:1:60", "PX", "c0", "c1", "c2", "w", "x4", "w", "w"],
           ins={10: ["y0"], 12: ["y1"], 14: ["y2"], 16: ["y3"], 18: ["y4"]},
           opc=68, cap=10, cap2=14, lat=350, ev=600, t12=56, t3=50, chk_back=17, hbpos=2, prio=1, lprio=0, flagbar=0,
           spin=200000, nclr=3, clrflags="sc1", outflags="")

def groups(cfg):
    g = [[sg] for sg in range(cfg["single"])]
    sg = cfg["single"]
    while sg < 60:
        g.append(list(range(sg, min(60, sg + cfg["grp"])))); sg += cfg["grp"]
    return g

import re
_INL = {"0.5","-0.5","1.0","-1.0","2.0","-2.0","4.0","-4.0"}
_V8 = ("v_mfma","v_add3","v_lshl_add","v_lshl_or","v_max3","v_fma_","v_cvt_pk","v_writelane","v_readlane","v_mul_lo","v_and_or","v_bfe","v_perm","v_mad","v_add_lshl","v_xad")
def isize(line):
    t = line.split(";")[0].strip()
    if not t or t.endswith(":") or t.startswith("."): return 0
    mn = t.split()[0]
    if mn.startswith(("ds_","buffer_","global_","s_load","s_memtime","s_memrealtime","s_atomic")) or mn.startswith(_V8): return 8
    if mn.startswith(("s_waitcnt","s_barrier","s_nop","s_branch","s_cbranch","s_setprio","s_endpgm","s_movk","s_addk","s_sleep")): return 4
    for o in t[len(mn):].split(","):
        o = o.strip()
        if o in _INL or re.match(r"^(s|v)(\d|\[)|^(vcc|exec|m0|scc)", o): continue
        try:
            v = int(o, 0)
            if -16 <= v <= 64: continue
        except ValueError: pass
        return 8
    return 4
def tsize(text): return sum(isize(l) for l in text.split("\n"))
def add_pads(text, off0, names, targets, prefer=None):
    lines = text.split("\n"); out = []; off = off0; k = 0
    for i, l in enumerate(lines):
        if k < len(names) and off >= 1024*(k+1):
            last = off + isize(l) >= 1024*(k+1) + 60
            good = prefer is None or prefer(lines, i)
            if (good or last) and isize(l):
                out.append(f"{names[k]}:\n    s_cbranch_execz {targets[k]}"); off += 4; k += 1
        out.append(l); off += isize(l)
    return "\n".join(out), k, off

XCH = 1056
XL = 20*XCH

def mfma_seq(q, cfg):
    ne, nl = cfg["n_early"], cfg["n_late"]
    own = (2*q, 2*q+1); t = q ^ 2; third = (2*t, 2*t+1)
    seq = []
    for sg in range(60):
        cs = [c for c in range(8) if not (c in own and sg >= ne) and not (c in third and sg >= 60-nl)]
        if sg == 59 and nl == 0:
            cs = [c for c in cs if c not in third] + [c for c in cs if c in third]
        for c in cs: seq.append((c, sg, 1))
    for sg in range(60-nl, 60):
        for c in third: seq.append((c, sg, 2))
    for sg in range(ne, 60):
        for c in own: seq.append((c, sg, 3))
    assert len(seq) == 480
    return seq

class Compute:
    def __init__(self, q, cfg):
        self.q, self.cfg = q, cfg
        self.vWA0, self.vWA1, self.vXA, self.vSEND, self.vOUT0, self.vOUT1, self.vHA = 1, 2, 3, 4, 5, 6, 7
        self.ACC = 8
        self.PB = self.ACC + 32
        self.NP = (256 - self.PB)//4
        self.seq = mfma_seq(q, cfg)

    def acc(self, c): return self.ACC + 4*c

    def plan(self, splits):
        cfg, seq = self.cfg, self.seq
        lead = cfg["lead"]
        inst = {}; xi = []; wi = []
        cur = {}
        for k, (c, sg, ph) in enumerate(seq):
            ds, i = divmod(sg, 15)
            xk = ("x", ds, c+i, ph)
            inst.setdefault(xk, []).append(k); xi.append(xk)
            if (sg, ph) in splits: cur[sg] = ph
            wk = ("w", sg, cur.get(sg, 1))
            inst.setdefault(wk, []).append(k); wi.append(wk)
        occ = {}
        G0 = -1
        def units(g): return sum(2 if e[0][0] == "x" else 1 for e in occ.get(g, [])) if g > G0 else 0
        def free(g, cost):
            if g <= G0: return True
            if units(g) + cost > 2: return False
            for a in range(g-3, g+1):
                if sum(units(j) for j in range(a, a+4)) + cost > cfg["wcap"]: return False
            return True
        def place(key, hf, latest):
            g = latest
            while not free(g, 2 if key[0] == "x" else 1): g -= 1
            g = max(g, G0)
            occ.setdefault(g, []).append((key, hf)); return g
        first = sorted([k for k in inst if k[0] == "w" and k[2] == 1], key=lambda k: -k[1])
        lim = 10**9
        issue = {}
        for key in first:
            g1 = place(key, 1, min(inst[key][0] - lead, lim))
            g0 = place(key, 0, g1 - cfg["wsplit"])
            issue[key] = g0; lim = g0 - 1
        rest = sorted([k for k in inst if k not in issue], key=lambda k: -inst[k][0])
        for key in rest:
            if key[0] == "x": issue[key] = place(key, 0, inst[key][0] - lead)
            else:
                g1 = place(key, 1, inst[key][0] - lead); issue[key] = place(key, 0, g1)
        for g in occ: occ[g].sort(key=lambda e: (inst[e[0]][0], e[0][0] == "x", e[1]))
        return inst, xi, wi, occ, issue

    def choose_splits(self):
        RING = self.cfg["RING"]
        splits = set()
        phase_of = [s[2] for s in self.seq]
        while True:
            inst, xi, wi, occ, issue = self.plan(splits)
            ev = [0]*482
            for key, uses in inst.items():
                ev[issue[key]+1] += 1; ev[uses[-1]+1] -= 1
            live = 0; bad = None
            for g in range(-1, 480):
                live += ev[g+1]
                if live > self.NP: bad = g; break
            if bad is None: return splits
            best = None
            for key, uses in inst.items():
                if key[0] != "w" or key[1] < 60-RING: continue
                prev = [u for u in uses if u <= bad]; nxt = [u for u in uses if u > bad]
                if prev and nxt and phase_of[nxt[0]] != phase_of[prev[-1]] and nxt[0] - bad > self.cfg["lead"] + 6:
                    if best is None or nxt[0] > best[0]: best = (nxt[0], (key[1], phase_of[nxt[0]]))
            assert best, ("register pressure", self.q, bad)
            splits.add(best[1])

    def build(self):
        cfg, q, seq = self.cfg, self.q, self.seq
        RING, safe = cfg["RING"], cfg["safe"]
        h = q & 1
        grp = groups(cfg); NB = len(grp)
        bar_of = {sg: n for n, g in enumerate(grp) for sg in g}
        self.splits = self.choose_splits()
        inst, xi, wi, occ, issue = self.plan(self.splits)
        out = []; self.ninst = 0; self.gaphist = [0]*6
        def emit(s): out.append("    " + s); self.ninst += 1
        pool = list(range(self.NP)); reg = {}
        lds = []; lastidx = {}; covered = 0; nbar = 0
        self.free_bar = {}; self.x1_bar = None; self.x4_bar = None; self.bar_k = []
        pend_free = []
        release = {}
        for key, uses in inst.items(): release.setdefault(uses[-1], []).append(key)
        lastuse = {}
        for k, (c, sg, ph) in enumerate(seq): lastuse[c] = k
        sends = sorted([max(lastuse[2*d], lastuse[2*d+1]), d] for d in range(4) if d != q)
        p2 = min(k for k in range(480) if seq[k][2] >= 2); p3 = min(k for k in range(480) if seq[k][2] == 3)
        tb = p2 + cfg["t12"]; t3 = max(p3 + cfg["t3"], tb+1); chk = 480 - cfg["chk_back"]
        lastL0 = max(inst[k][0] for k in inst if k[0] == "x" and k[1] < 2)
        tb2 = max(lastL0 + 1, tb + 1)
        assert tb2 < 480 and t3 < chk
        valu_q = []; mf_inst = {}
        cur_k = 0
        def barrier():
            nonlocal nbar
            for sg in list(pend_free):
                if lastidx[("w", sg, 1)] < covered:
                    self.free_bar[sg] = nbar; pend_free.remove(sg)
            emit("s_barrier"); nbar += 1; self.bar_k.append(cur_k)
        def do_read(key, hf, g):
            if hf == 0: reg[key] = self.PB + 4*pool.pop(0)
            r = reg[key]
            if key[0] == "x":
                _, ds, u, _ = key
                if nbar == 0: barrier()
                if ds >= 2 and self.x1_bar is None: self.x1_bar = nbar - 1
                if u >= 8 and self.x4_bar is None: self.x4_bar = nbar - 1
                off = (ds >> 1)*XL + (u >> 3)*2*XCH + (u & 7)*128 + (ds & 1)*64
                emit(f"ds_read_b128 v[{r}:{r+3}], v{self.vXA} offset:{off}")
            else:
                sg = key[1]
                if key[2] == 1:
                    while nbar <= bar_of[sg]: barrier()
                    if hf: pend_free.append(sg)
                off = (sg % RING)*4096 + 512*hf; va = self.vWA0
                if off >= 65536: off -= 65536; va = self.vWA1
                emit(f"ds_read_b64_tr_b16 v[{r+2*hf}:{r+2*hf+1}], v{va} offset:{off}")
            lds.append(g); lastidx[key] = len(lds)-1 if (key[0] == "x" or hf) else 10**9
        def wait_for(idx, g):
            nonlocal covered
            if idx < covered: return
            j = idx
            while j+1 < len(lds) and lds[j+1] <= g - safe: j += 1
            n = len(lds) - 1 - j
            assert n <= 15, n
            emit(f"s_waitcnt lgkmcnt({n})"); covered = j+1
        started = set()
        backlog = list(occ.get(-1, []))
        x4b = cfg["x4b"]
        def wantbar(g):
            return any(key[0] == "w" and key[2] == 1 and hf == 0 and grp[bar_of[key[1]]][0] == key[1] for key, hf in occ.get(g+1, []))
        def planned(g):
            return len(occ.get(g, [])) + wantbar(g) + (g+1 in (tb, tb2, t3))
        for k in range(480):
            g = k-1; cur_k = k
            c, sg, ph = seq[k]
            n0 = self.ninst
            if k > 0: backlog += occ.get(g, [])
            lim = cfg["burst0"] if k == 0 else 2
            n = 0
            while backlog and n < lim:
                cand = [e for e in backlog if not (e[0][0] == "x" and e[0][2] >= 8 and nbar <= x4b)
                        and not (k < cfg["w1at"] and e[0][0] == "w" and e[0][1] > 0)]
                if not cand: break
                key, hf = cand[0]
                backlog.remove((key, hf)); do_read(key, hf, g); n += 1
            if k == t3:
                assert not sends and not valu_q
                P = self.PB + 4*pool.pop(0)
                emit(f"buffer_load_dwordx4 v[{P}:{P+3}], v{self.vSEND}, s[28:31], s44 offen sc1")
            if k == chk:
                T = [self.PB + 4*pool.pop(0) for _ in range(2)]
                valu_q += ["s_waitcnt vmcnt(0)", f"v_max3_u32 v{T[0]}, v{P}, v{P+1}, v{P+2}", f"v_max_u32 v{T[0]}, v{T[0]}, v{P+3}",
                           f"v_cmp_eq_u32 vcc, -1, v{T[0]}", "|", f"s_cbranch_vccnz L_again{q}\nL_fin{q}:"]
                for j in range(4):
                    t = T[j >> 1] + 2*(j & 1)
                    valu_q += [f"v_lshlrev_b32 v{t}, 16, v{P+j}", f"v_and_b32 v{t+1}, 0xffff0000, v{P+j}"]
                valu_q += [f"v_mul_f32 v{T[j >> 2] + (j & 3)}, s36, v{T[j >> 2] + (j & 3)}" for j in range(8)]
            while lastidx.get(xi[k], 10**9) == 10**9 or lastidx.get(wi[k], 10**9) == 10**9:
                key, hf = backlog.pop(0)
                while key[0] == "x" and key[2] >= 8 and nbar <= x4b: barrier()
                do_read(key, hf, g)
            idx = max(lastidx[xi[k]], lastidx[wi[k]])
            if k+1 < 480 and planned(g+1) >= 2 and self.ninst - n0 < 2:
                nx = max(lastidx.get(xi[k+1], 10**9), lastidx.get(wi[k+1], 10**9))
                if nx < len(lds) and lds[nx] <= g - 4: idx = max(idx, nx)
            endbar = (k in (tb, tb2)) or (wantbar(g) and not backlog and k >= cfg["w1at"])
            needw = (idx >= covered) + endbar
            while sends and sends[0][0] in mf_inst and self.ninst - mf_inst[sends[0][0]] >= 8:
                d = sends.pop(0)[1]; a0, a1 = self.acc(2*d), self.acc(2*d+1)
                valu_q += [f"v_cvt_pk_bf16_f32 v{a0}, v{a0}, v{a0+1}", f"v_cvt_pk_bf16_f32 v{a0+1}, v{a0+2}, v{a0+3}",
                           f"v_cvt_pk_bf16_f32 v{a0+2}, v{a1}, v{a1+1}", f"v_cvt_pk_bf16_f32 v{a0+3}, v{a1+2}, v{a1+3}"]
                valu_q += [f"v_min_u32 v{a0+j}, -2, v{a0+j}" for j in range(4)]
                valu_q += [f"buffer_store_dwordx4 v[{a0}:{a0+3}], v{self.vSEND}, s[28:31], s{40+d} offen sc1"]
            while valu_q and self.ninst - n0 + needw < cfg["gapmax"]:
                v = valu_q.pop(0)
                if v == "|": break
                emit(v)
            wait_for(idx, g)
            if endbar:
                if k == tb: assert nbar == NB
                barrier()
            self.gaphist[min(self.ninst - n0, 5)] += 1
            a = self.acc(c); wr = reg[wi[k]]; xr = reg[xi[k]]
            cs = f"v[{a}:{a+3}]" if c in started else "0"
            started.add(c)
            emit(f"v_mfma_f32_16x16x32_bf16 v[{a}:{a+3}], v[{wr}:{wr+3}], v[{xr}:{xr+3}], {cs}")
            mf_inst[k] = self.ninst
            for key in release.get(k, []): pool.append((reg[key] - self.PB)//4)
        assert nbar == NB + 2 and not backlog
        if cfg["diag"]: emit("s_memtime s[70:71]")
        Y = [self.PB + 4*pool.pop(0) for _ in range(2)]
        def handover():
            emit("s_barrier")
            for j in range(2): emit(f"ds_read_b128 v[{Y[j]}:{Y[j]+3}], v{self.vHA} offset:{4096*j}")
        for v in valu_q:
            if v != '|': emit(v)
        if cfg["hbpos"] == 0: handover()
        pad = 8 - (self.ninst - mf_inst[478])
        if pad > 0: emit(f"s_nop {pad-1}")
        R = [T[j >> 2] + (j & 3) for j in range(8)]
        A = [self.acc(2*q + (j >> 2)) + (j & 3) for j in range(8)]
        for j in range(8): emit(f"v_fmac_f32 v{R[j]}, s36, v{A[j]}")
        if cfg["hbpos"] == 1: handover()
        for j in range(8): emit(f"v_exp_f32 v{R[j]}, v{R[j]}")
        if cfg["hbpos"] == 2: handover()
        for j in range(8): emit(f"v_add_f32 v{R[j]}, 1.0, v{R[j]}")
        for j in range(8): emit(f"v_rcp_f32 v{R[j]}, v{R[j]}")
        if h == 0:
            for j in range(8): emit(f"v_fma_f32 v{R[j]}, v{R[j]}, -2.0, 1.0")
        if cfg["hbpos"] == 3: handover()
        for cc in (0, 1):
            t = T[cc]
            emit(f"s_waitcnt lgkmcnt({0 if (cc or cfg['diag']) else 1})")
            for j in range(4): emit(f"v_mul_f32 v{t+j}, v{t+j}, v{Y[cc]+j}")
            emit(f"v_cvt_pk_bf16_f32 v{t}, v{t}, v{t+1}")
            emit(f"v_cvt_pk_bf16_f32 v{t+1}, v{t+2}, v{t+3}")
            emit(f"buffer_store_dwordx2 v[{t}:{t+1}], v{(self.vOUT0, self.vOUT1)[cc]}, s[24:27], 0 offen {cfg['outflags']}")
        self.again = f"""L_again{q}:
    s_add_u32 s13, s13, 1
    s_cmp_ge_u32 s13, {cfg["spin"]}
    s_cbranch_scc1 L_fin{q}
    buffer_load_dwordx4 v[{P}:{P+3}], v{self.vSEND}, s[28:31], s44 offen sc1
    s_waitcnt vmcnt(0)
    v_max3_u32 v{T[0]}, v{P}, v{P+1}, v{P+2}
    v_max_u32 v{T[0]}, v{T[0]}, v{P+3}
    v_cmp_eq_u32 vcc, -1, v{T[0]}
    s_cbranch_vccnz L_again{q}
    s_branch L_fin{q}
"""
        return "\n".join(out) + "\n"

def gen(**kw):
    cfg = dict(DEF); cfg.update(kw)
    RING = cfg["RING"]; diag = cfg["diag"]
    comps = [Compute(q, cfg) for q in range(4)]
    bodies = [c.build() for c in comps]
    free_bar = {sg: max(c.free_bar[sg] for c in comps) for sg in range(60 - RING)}
    x1_bar = min(c.x1_bar for c in comps); x4_bar = min(c.x4_bar for c in comps)
    XBASE = RING*4096
    lds = XBASE + 2*XL
    s = f"; generated by gen4.py  cfg={cfg}\n"
    s += f"; @launch grid=(256,1,1) block=(512,1,1) lds={lds}\n"
    head = f""".amdgcn_target "amdgcn-amd-amdhsa--gfx950"
.text
.p2align 12
{".fill 832, 4, 0xbf800000" if diag else ""}
.globl {NAME}
.p2align 8
.type {NAME},@function
{NAME}:
"""
    hdr = s; s = """    s_cmp_ge_u32 s2, 256
    s_cbranch_scc1 L_end
"""
    if diag: s += "    s_memrealtime s[94:95]\n    s_memtime s[96:97]\n"
    s += f"""    s_load_dwordx2 s[16:17], s[0:1], 0      ; x
    s_load_dwordx2 s[20:21], s[0:1], 8      ; w
    s_load_dwordx2 s[28:29], s[0:1], 32     ; ws
    s_load_dwordx2 s[24:25], s[0:1], 16     ; out
    s_load_dwordx2 s[32:33], s[0:1], 24     ; debug
    v_lshrrev_b32 v1, 6, v0
    v_and_b32 v0, 63, v0                    ; lane
    v_readfirstlane_b32 s3, v1              ; wave
    s_and_b32 s4, s2, 3                     ; role q
    s_lshr_b32 s9, s2, 2                    ; group
"""
    if cfg["mapping"] == "a":
        s += """    s_and_b32 s5, s9, 1                     ; batch
    s_bfe_u32 s6, s2, 0x20003
"""
    else:
        s += """    s_and_b32 s6, s9, 3
    s_bfe_u32 s5, s2, 0x10004               ; batch
"""
    s += f"""    s_lshr_b32 s7, s2, 5
    s_mov_b32 s18, 512000
    s_mov_b32 s19, 0x20000
    s_mul_i32 s8, s5, s18
    s_mov_b32 s22, 3932160
    s_mov_b32 s23, s19
    s_mov_b32 s26, s18
    s_mov_b32 s27, s19
    s_mov_b32 s30, {(8<<20) if diag else (4<<20)}
    s_mov_b32 s31, s19
    s_movk_i32 s34, 256
    s_mov_b32 s35, s19
    s_cmp_lt_u32 s3, 4
    s_cbranch_scc1 L_loader
    s_getpc_b64 s[46:47]
L_pc:
    s_and_b32 s10, s3, 3                    ; wave & 3
    s_lshr_b32 s12, s2, 3
    s_lshl2_add_u32 s12, s12, s10
    s_lshl_b32 s12, s12, 6
    s_and_b32 s13, s12, 0xfc0
    s_load_dword s54, s[46:47], s13
    s_lshl_b32 s13, s4, 13
    s_add_u32 s12, s12, s13
    s_add_u32 s12, s12, L_role0-L_pc
    s_load_dword s55, s[46:47], s12
    s_mov_b64 exec, 0
    s_cmp_eq_u32 s10, 0
    s_cbranch_scc1 L_padL0
    s_cmp_eq_u32 s4, 1
    s_cbranch_scc1 L_role1
    s_cmp_eq_u32 s4, 2
    s_cbranch_scc1 L_role2
    s_cmp_eq_u32 s4, 3
    s_cbranch_scc1 L_role3
    s_branch L_role0
L_loader:
    s_lshr_b32 s11, s4, 1                   ; kh
    s_lshr_b32 s13, s3, 1
    s_lshl3_add_u32 s12, s7, s13
    s_and_b32 s13, s3, 1
    s_lshl4_add_u32 s12, s12, s13
    s_sub_u32 s12, s12, 28
    s_lshl1_add_u32 s12, s12, s11
    s_lshl_b32 s12, s12, 8
    v_lshrrev_b32 v2, 3, v0
    v_lshlrev_b32 v2, 10, v2
    v_and_b32 v3, 7, v0
    v_lshlrev_b32 v3, 4, v3
    v_add3_u32 v8, v2, v3, s12              ; x voffset m=0
    s_movk_i32 s39, 0x4000
    v_add_u32 v9, s39, v8
    v_add_u32 v10, s39, v9
    v_add_u32 v11, s39, v10
    v_add_u32 v12, s39, v11
    s_lshl_b32 s13, s13, 6
    v_and_b32 v4, 16, v0
    v_lshlrev_b32 v4, 1, v4
    v_or_b32 v4, s13, v4
    v_xor_b32 v3, v3, v4
    s_and_b32 s14, s4, 1
    s_lshl2_add_u32 s14, s14, s6            ; h*4 + ct
    s_lshl_b32 s15, s11, 10
    s_add_u32 s15, s15, s14
    s_lshl_b32 s15, s15, 7
    s_lshl_b32 s37, s3, 10
    s_lshl3_add_u32 s12, s37, s15
    v_add3_u32 v7, v2, v3, s12              ; w voffset
    s_mul_i32 s36, s3, {XCH}
    s_add_u32 s36, s36, {XBASE}
    s_movk_i32 s51, 0x1000
    s_mov_b32 s52, 0x40000
    s_mov_b32 m0, s36
    s_waitcnt lgkmcnt(0)
    s_add_u32 s16, s16, s8
    s_addc_u32 s17, s17, 0
"""
    if diag: s += "    s_memtime s[98:99]\n"
    order = []; nw = 0
    def add(tok):
        nonlocal nw
        if tok == "w":
            order.append(("w", nw)); nw += 1
            for t in cfg["ins"].get(nw-1, []): add(t)
        elif tok[0] == "x": order.append(("x", 0, int(tok[1])))
        elif tok[0] == "y": order.append(("x", 1, int(tok[1])))
        elif tok[0] == "c": order.append(("clr", int(tok[1])))
        elif tok == "PX": order.append(("px",))
        elif tok[0] == "P": order.append(("p",) + tuple(int(v) for v in tok.split(":")[1:]))
        else: raise ValueError(tok)
    for t in cfg["pre"]: add(t)
    K0 = len(order)
    while nw < 60: add("w")
    setup_clr = f"""    v_lshl_add_u32 v13, v0, 4, s37
    s_lshl2_add_u32 s13, s2, s4
    s_lshl_b32 s13, s13, 12
    s_xor_b32 s44, s13, s39
    s_xor_b32 s45, s13, 0x8000
    s_xor_b32 s46, s45, s39
    s_xor_b32 s48, s13, s51
    s_xor_b32 s50, s13, 0x3000
    v_mov_b32 v16, -1
    v_mov_b32 v17, -1
    v_mov_b32 v18, -1
    v_mov_b32 v19, -1
"""
    st = dict(m0=("x", 0), so=None)
    def setm0(kind, off):
        prev = st["m0"]; st["m0"] = (kind, off)
        if prev == (kind, off): return ""
        if prev[0] == kind and off - prev[1] == 4096: return "    s_add_u32 m0, m0, s51\n"
        if prev[0] == kind and abs(off - prev[1]) < 32768: return f"    s_addk_i32 m0, {off - prev[1]}\n"
        return f"    s_add_u32 m0, {'s36' if kind == 'x' else 's37'}, {off}\n"
    def op_asm(op):
        if op[0] == "x":
            _, L, m = op
            t = setm0("x", L*(XL-128) + 4*m*XCH)
            return (t + ("    s_nop 0\n" if t else "") +
                    f"    buffer_load_dwordx4 v{8+m}, s[16:19], 0 offen offset:{128*L} lds\n")
        if op[0] == "w":
            sg = op[1]; ds, i = divmod(sg, 15)
            so = "    s_add_u32 s38, s38, s52\n" if i else f"    s_mov_b32 s38, {ds*32768}\n"
            return setm0("w", (sg % RING)*4096) + so + "    buffer_load_dwordx4 v7, s[20:23], s38 offen lds\n"
        if op[0] == "clr":
            if op[1] >= cfg["nclr"]:
                return (setup_clr if op[1] == 0 else "") + f"    v_bfrev_b32 v22, 1\n    buffer_store_dword v16, v22, s[28:31], 0 offen\n"
            return (setup_clr if op[1] == 0 else "") + f"    buffer_store_dwordx4 v[16:19], v13, s[28:31], s{44+op[1]} offen {cfg['clrflags']}\n"
        if op[0] == "p":
            _, a, b = op
            if cfg["mapping"] == "a":
                prow = """    s_lshl3_add_u32 s12, s5, s7
    s_and_b32 s13, s3, 1
    s_lshl1_add_u32 s12, s12, s13
    s_lshl_b32 s12, s12, 10
    s_add_u32 s12, s12, s15
"""
            else:
                prow = """    s_lshr_b32 s12, s2, 3
    s_lshl_b32 s12, s12, 10
    s_add_u32 s12, s12, s15
    s_and_b32 s13, s3, 1
    s_lshl_b32 s13, s13, 8
    s_xor_b32 s12, s12, s13
"""
            return f"""    s_lshr_b32 s12, s3, 1
    s_add_u32 s12, s12, {a}
    v_lshl_add_u32 v20, v0, 1, s12          ; stage
    v_mul_u32_u24 v21, 4370, v20
    v_lshrrev_b32 v21, 16, v21              ; d-step
    v_mul_u32_u24 v21, {15*262144-32768}, v21
    v_lshlrev_b32 v22, 18, v20
    v_sub_u32 v21, v22, v21
{prow}    v_cmp_gt_u32 vcc, {b}, v20
    v_add_u32 v21, s12, v21
    v_bfrev_b32 v22, 1
    v_cndmask_b32 v21, v22, v21, vcc
    buffer_load_dword v23, v21, s[20:23], 0 offen
"""
        if op[0] == "px":
            return f"""    s_lshl2_add_u32 s12, s14, s3
    s_lshl_b32 s12, s12, 11
    s_lshl_b32 s13, s7, 8
    s_add_u32 s13, s13, s11
    s_lshl_b32 s13, s13, 8
    s_add_u32 s12, s12, s13
    s_addk_i32 s12, 128
    v_lshl_add_u32 v21, v0, 9, s12
    s_lshr_b32 s12, s37, 1
    s_add_u32 s13, s13, s12
    s_add_u32 s13, s13, {100*512}
    v_bfrev_b32 v22, 1
    v_cmp_gt_u32 vcc, 4, v0
    v_writelane_b32 v22, s13, 4
    s_nop 0
    v_cndmask_b32 v21, v22, v21, vcc
    buffer_load_dword v23, v21, s[16:19], 0 offen
"""
    issued = []
    oi = 0; flag_done = False; clr_cov_bar = None
    grp = groups(cfg); NB = len(grp)
    bar_of = {sg: n for n, g in enumerate(grp) for sg in g}
    stamps = {}
    for i, sg in enumerate((0, 1, 8, 15, 30, 45, 59)): stamps.setdefault(bar_of[sg], []).append(i)
    tbar = [16*min(c.bar_k[n] for c in comps) for n in range(NB)]
    def can(op, nb):
        return not (op[0] == "w" and op[1] >= RING and nb <= free_bar[op[1]-RING])
    def cost(op):
        if op[0] in ("w", "x"): return cfg["opc"]
        if op[0] == "p": return 3*(op[2]-op[1])
        if op[0] == "px": return 40
        return 140 + (cfg["ev"] if op[1] == 2 else 0)
    tpipe = 0; shift = 0; done_t = {}; sched = []
    for n in range(NB):
        needs = [("w", grp[n][-1])] + [("x", 0, m) for m in range(4)]
        if n >= x4_bar: needs.append(("x", 0, 4))
        if n >= x1_bar: needs += [("x", 1, m) for m in range(5)]
        cnt = 0
        now = tbar[n-1] + shift if n else 0
        while oi < len(order) and can(order[oi], n):
            op = order[oi]
            forced = any(x not in issued for x in needs)
            if n > 0 and not forced:
                nxt = max([tbar[n] + shift] + [done_t[x] for x in needs])
                t = now + 56*cnt
                if cnt >= max(1, (nxt - now + 8)//64) or sum(d > t for d in done_t.values()) >= (cfg["cap2"] if max(done_t[x] for x in needs) - now > 400 else cfg["cap"]): break
            if n == 0 and not forced and cnt >= K0: break
            s += op_asm(op); issued.append(op); oi += 1; cnt += 1
            if n == 0 and forced: done_t[op] = 0
            else:
                tpipe = max(tpipe + cost(op), now + 56*cnt + cfg["lat"] if n else 0); done_t[op] = tpipe
        if clr_cov_bar is not None and not flag_done and n > max(clr_cov_bar, cfg["flagbar"]):
            s += f"""    s_cmp_lg_u32 s3, 0
    s_cbranch_scc1 L_noflag
    s_lshl_b32 s12, s9, 2
    s_mov_b32 s53, 1
    s_atomic_add s53, s[32:33], s12
L_noflag:
"""
            flag_done = True
        need = max(issued.index(x) for x in needs)
        shift = max(shift, done_t[issued[need]] - tbar[n])
        if clr_cov_bar is None and ("clr", 2) in issued and need > issued.index(("clr", 2)): clr_cov_bar = n
        vm = len(issued) - 1 - need
        sched.append((cnt, vm, shift))
        assert vm <= 63
        if diag and n == 0: s += f"    s_memtime s[88:89]\n    s_waitcnt vmcnt({vm})\n    s_memtime s[90:91]\n"
        s += f"    s_waitcnt vmcnt({vm})\n    s_barrier\n"
        if n == 0: sz0 = tsize(s)
        if diag:
            for i in stamps.get(n, []): s += f"    s_memtime s[{64+2*i}:{65+2*i}]\n"
    hdr = hdr.replace("; @launch", f"; loader (issued, vmcnt, modelled stall) per barrier: {sched}\n; @launch")
    assert oi == len(order) and flag_done
    s += f"""; wait until all four workgroups of the group have cleared the slots they will write
    s_lshl_b32 s12, s9, 2
    v_mov_b32 v20, s12
    s_mov_b32 s13, 0
L_flag:
    buffer_load_dword v21, v20, s[32:35], 0 offen sc1
    s_add_u32 s13, s13, 1
    s_waitcnt vmcnt(0)
    v_readfirstlane_b32 s12, v21
    s_cmp_ge_u32 s13, {cfg["spin"]}
    s_cbranch_scc1 L_flagok
    s_cmp_eq_u32 s12, 4
    s_cbranch_scc0 L_flag
L_flagok:
"""
    if diag: s += "    s_memtime s[78:79]\n    s_mov_b32 s92, s13\n"
    s += f"""    s_bitcmp1_b32 s4, 0
    s_mov_b32 s40, {f2u(-LOG2E):#x}
    s_cselect_b32 s40, {f2u(2*LOG2E):#x}, s40
    s_cselect_b32 s41, -2.0, 1.0
    s_cselect_b32 s42, 1.0, 0
    v_mov_b32 v22, s42
    v_add_u32 v14, {XBASE}, v13
    s_mov_b32 s13, 0
    s_barrier
"""
    if diag: s += "    s_memtime s[80:81]\n"
    s += f"""    buffer_load_dwordx4 v[24:27], v13, s[28:31], s48 offen sc1
    buffer_load_dwordx4 v[28:31], v13, s[28:31], s50 offen sc1
    s_barrier
L_poll:
    s_add_u32 s13, s13, 1
    s_waitcnt vmcnt(0)
    v_max3_u32 v36, v24, v25, v26
    v_max3_u32 v37, v27, v28, v29
    v_max3_u32 v36, v36, v30, v31
    v_max_u32 v36, v36, v37
    v_cmp_eq_u32 vcc, -1, v36
    s_cmp_ge_u32 s13, {cfg["spin"]}
    s_cbranch_scc1 L_got
    s_cbranch_vccz L_got
    buffer_load_dwordx4 v[24:27], v13, s[28:31], s48 offen sc1
    buffer_load_dwordx4 v[28:31], v13, s[28:31], s50 offen sc1
    s_branch L_poll
L_got:
    s_setprio {cfg["lprio"]}
"""
    if diag: s += "    s_memtime s[82:83]\n    s_mov_b32 s93, s13\n"
    for j in range(4):
        s += f"    v_lshlrev_b32 v{40+2*j}, 16, v{24+j}\n    v_and_b32 v{41+2*j}, 0xffff0000, v{24+j}\n"
        s += f"    v_lshlrev_b32 v{48+2*j}, 16, v{28+j}\n    v_and_b32 v{49+2*j}, 0xffff0000, v{28+j}\n"
    for j in range(8): s += f"    v_add_f32 v{40+j}, v{40+j}, v{48+j}\n"
    for j in range(8): s += f"    v_mul_f32 v{40+j}, s40, v{40+j}\n"
    for j in range(8): s += f"    v_exp_f32 v{40+j}, v{40+j}\n"
    for j in range(8): s += f"    v_add_f32 v{40+j}, 1.0, v{40+j}\n"
    for j in range(8): s += f"    v_rcp_f32 v{40+j}, v{40+j}\n"
    for j in range(8): s += f"    v_fma_f32 v{40+j}, v{40+j}, s41, v22\n"
    s += f"""    ds_write_b128 v14, v[40:43]
    ds_write_b128 v14, v[44:47] offset:4096
    s_waitcnt lgkmcnt(0)
"""
    if diag: s += "    s_memtime s[86:87]\n"
    s += "    s_barrier\n"
    if diag:
        s += "    s_memtime s[84:85]\n    s_waitcnt lgkmcnt(0)\n"
        s += "    v_mov_b32 v24, 0\n"
        vals = ["s94", "s98"] + [f"s{64+2*i}" for i in range(11)] + ["s92", "s93", "s86", "s88", "s90"]
        for i, r in enumerate(vals):
            if 1 <= i <= 12 or i >= 15: s += f"    s_sub_u32 {r}, {r}, s96\n"
            s += f"    v_writelane_b32 v24, {r}, {i}\n"
        s += """    s_lshl_b32 s12, s2, 3
    s_add_u32 s12, s12, s3
    s_lshl_b32 s12, s12, 8
    s_add_u32 s12, s12, 0x400000
    v_lshlrev_b32 v25, 2, v0
    buffer_store_dword v24, v25, s[28:31], s12 offen
"""
    s += f"""L_end:
    s_endpgm
L_compute:
    s_mov_b64 exec, -1
    s_setprio {cfg["prio"]}
{"    s_memtime s[72:73]" if diag else ""}
    v_and_b32 v8, 15, v0                    ; r / i
    v_lshrrev_b32 v9, 4, v0                 ; kc / G
    v_mul_u32_u24 v3, {XCH}, v8
    v_lshl_add_u32 v3, v9, 4, v3
    v_add_u32 v3, {XBASE}, v3
    v_lshrrev_b32 v10, 2, v8
    v_lshl_add_u32 v10, v9, 3, v10          ; k row
    v_lshrrev_b32 v11, 3, v8
    v_and_b32 v12, 1, v9
    v_lshl_or_b32 v11, v12, 1, v11          ; swizzle
    v_xor_b32 v11, s10, v11
    v_lshlrev_b32 v11, 5, v11
    v_lshl_add_u32 v1, v10, 7, v11
    v_and_b32 v12, 3, v8
    v_lshl_add_u32 v1, v12, 3, v1
    v_add_u32 v2, 0x10000, v1
    s_lshl_b32 s12, s10, 10
    v_lshl_add_u32 v4, v0, 4, s12
    v_add_u32 v7, {XBASE}, v4
    v_lshrrev_b32 v10, 1, v8
    v_and_b32 v11, 1, v8
    v_lshl_add_u32 v10, v10, 4, v11         ; 16p + par
    s_lshl_b32 s12, s7, 7
    s_lshl_b32 s13, s4, 2
    s_add_u32 s12, s12, s13
    s_lshl_b32 s12, s12, 9
    s_lshl_b32 s13, s6, 7
    s_add_u32 s12, s12, s13
    s_lshl_b32 s13, s10, 5
    s_add_u32 s12, s12, s13
    v_lshl_add_u32 v5, v10, 9, s12
    v_lshl_add_u32 v5, v9, 3, v5
    v_add_u32 v6, 0x400, v5
    s_lshl_b32 s12, s9, 16
    s_lshl_b32 s13, s4, 12
    s_add_u32 s40, s12, s13
    s_add_u32 s41, s40, 0x4000
    s_add_u32 s42, s40, 0x8000
    s_add_u32 s43, s40, 0xc000
    s_lshl_b32 s13, s4, 14
    s_add_u32 s44, s40, s13
    s_xor_b32 s44, s44, 0x2000
    s_mov_b32 s13, 0
    s_bitcmp1_b32 s4, 0
    s_mov_b32 s36, {f2u(2*LOG2E):#x}
    s_cselect_b32 s36, {f2u(-LOG2E):#x}, s36
    s_waitcnt lgkmcnt(0)
    s_add_u32 s24, s24, s8
    s_addc_u32 s25, s25, 0
    s_cmp_eq_u32 s4, 1
    s_cbranch_scc1 L_main1
    s_cmp_eq_u32 s4, 2
    s_cbranch_scc1 L_main2
    s_cmp_eq_u32 s4, 3
    s_cbranch_scc1 L_main3
    s_branch L_main0
"""
    npl = tsize(s)//1024
    s, k, end0 = add_pads(s, 0, [f"L_padL{k}" for k in range(npl)], [f"L_padL{k+1}" for k in range(npl-1)] + ["L_compute"],
                          lambda L, i: not L[i].strip().startswith(("buffer_load", "s_cbranch", "s_nop", "v_cndmask", "s_cselect", "s_addc")))
    assert k == npl and end0 <= (4096 if diag else 3328), end0
    page0 = s; s = ""
    sizes = [sz0, end0]
    for q in range(4):
        pre_s = s
        s = f"""    s_cmp_eq_u32 s10, 1
    s_cbranch_scc1 L_pad{q}_0
    s_cmp_eq_u32 s10, 2
    s_cbranch_scc1 L_pad{q}_1
    s_branch L_pad{q}_2
L_main{q}:
""" + ("    s_memtime s[74:75]\n    s_waitcnt lgkmcnt(0)\n" if diag else "") + bodies[q]
        if diag:
            s += """    s_memtime s[64:65]
    s_waitcnt vmcnt(0)
    s_memtime s[66:67]
    s_memrealtime s[68:69]
    s_waitcnt lgkmcnt(0)
    s_sub_u32 s64, s64, s96
    s_sub_u32 s66, s66, s96
    s_sub_u32 s70, s70, s96
    v_mov_b32 v24, 0
    v_writelane_b32 v24, s94, 0
    v_writelane_b32 v24, s64, 1
    v_writelane_b32 v24, s66, 2
    v_writelane_b32 v24, s68, 3
    v_writelane_b32 v24, s70, 4
    v_writelane_b32 v24, s13, 5
    s_sub_u32 s72, s72, s96
    s_sub_u32 s74, s74, s96
    v_writelane_b32 v24, s72, 6
    v_writelane_b32 v24, s74, 7
    s_lshl_b32 s12, s2, 3
    s_add_u32 s12, s12, s3
    s_lshl_b32 s12, s12, 8
    s_add_u32 s12, s12, 0x400000
    v_lshlrev_b32 v25, 2, v0
    buffer_store_dword v24, v25, s[28:31], s12 offen
"""
        s += "    s_endpgm\n" + comps[q].again
        npd = 7 if tsize(s) + 24 >= 7168 + 64 else 6
        s, k, end = add_pads(s, 0, [f"L_pad{q}_{k}" for k in range(npd)], [f"L_pad{q}_{k+3}" if k+3 < npd else "L_compute" for k in range(npd)],
                             lambda L, i: L[i].strip().startswith("v_mfma") and L[i-1].strip().startswith("v_mfma"))
        assert k == npd and end <= 8192, (k, end)
        sizes.append(end)
        s = pre_s + f".p2align 12\nL_role{q}:\n" + s
    s = hdr.replace("; @launch", f"; code bytes: {sizes}\n; @launch") + head + page0 + s + ".p2align 12\n"
    s += f""".section .rodata,"a"
.p2align 6
.amdhsa_kernel {NAME}
  .amdhsa_next_free_vgpr 256
  .amdhsa_next_free_sgpr 102
  .amdhsa_accum_offset 256
  .amdhsa_group_segment_fixed_size 0
  .amdhsa_kernarg_size 40
  .amdhsa_user_sgpr_count 2
  .amdhsa_user_sgpr_kernarg_segment_ptr 1
  .amdhsa_system_sgpr_workgroup_id_x 1
.end_amdhsa_kernel
"""
    return s, lds

if __name__ == "__main__":
    kw = {}
    for a in sys.argv[2:]:
        k, v = a.split("=", 1)
        kw[k] = eval(v)
    s, lds = gen(**kw)
    open(sys.argv[1], "w").write(s)
    print("written", sys.argv[1], "lds", lds, "lines", s.count("\n")); print(s.split("\n")[1]); print(s.split("\n")[2]); print(s.split("\n")[3])
```

```python
import sys, math, struct

NAME = "standalone__autoregressive_conv_wavernn__speech_kernel"
LOG2E = 1.4426950408889634
def f2u(x): return struct.unpack("<I", struct.pack("<f", x))[0]

DEF = dict(RING=29, n_early=10, n_late=10, lead=8, safe=5, wcap=6, wsplit=1, x4b=1, w1at=2, burst0=8, gapmax=2,
           mapping="b", diag=0, single=4, grp=2,
           pre=["x0", "x1", "x2", "x3", "w", "P:1:29", "w", "x4", "w", "w", "w"],
           ins={20: ["P:29:60", "PX", "c0", "c1", "c2"], 24: ["y0"], 25: ["y1"], 26: ["y2"], 27: ["y3"], 28: ["y4"]},
           opc=68, cap=10, cap2=14, lat=350, ev=600, t12=50, t3=45, chk_back=17, hbpos=2, prio=1, lprio=0, flagbar=0,
           spin=200000, nclr=3, clrflags="sc1", outflags="")

def groups(cfg):
    g = [[sg] for sg in range(cfg["single"])]
    sg = cfg["single"]
    while sg < 60:
        g.append(list(range(sg, min(60, sg + cfg["grp"])))); sg += cfg["grp"]
    return g

import re
_INL = {"0.5","-0.5","1.0","-1.0","2.0","-2.0","4.0","-4.0"}
_V8 = ("v_mfma","v_add3","v_lshl_add","v_lshl_or","v_max3","v_fma_","v_cvt_pk","v_writelane","v_readlane","v_mul_lo","v_and_or","v_bfe","v_perm","v_mad","v_add_lshl","v_xad")
def isize(line):
    t = line.split(";")[0].strip()
    if not t or t.endswith(":") or t.startswith("."): return 0
    mn = t.split()[0]
    if mn.startswith(("ds_","buffer_","global_","s_load","s_memtime","s_memrealtime","s_atomic")) or mn.startswith(_V8): return 8
    if mn.startswith(("s_waitcnt","s_barrier","s_nop","s_branch","s_cbranch","s_setprio","s_endpgm","s_movk","s_addk","s_sleep")): return 4
    for o in t[len(mn):].split(","):
        o = o.strip()
        if o in _INL or re.match(r"^(s|v)(\d|\[)|^(vcc|exec|m0|scc)", o): continue
        try:
            v = int(o, 0)
            if -16 <= v <= 64: continue
        except ValueError: pass
        return 8
    return 4
def tsize(text): return sum(isize(l) for l in text.split("\n"))
def add_pads(text, off0, names, targets, prefer=None):
    lines = text.split("\n"); out = []; off = off0; k = 0
    for i, l in enumerate(lines):
        if k < len(names) and off >= 1024*(k+1):
            last = off + isize(l) >= 1024*(k+1) + 60
            good = prefer is None or prefer(lines, i)
            if (good or last) and isize(l):
                out.append(f"{names[k]}:\n    s_cbranch_execz {targets[k]}"); off += 4; k += 1
        out.append(l); off += isize(l)
    return "\n".join(out), k, off

XCH = 1056
XL = 20*XCH

def mfma_seq(q, cfg):
    ne, nl = cfg["n_early"], cfg["n_late"]
    own = (2*q, 2*q+1); t = q ^ 2; third = (2*t, 2*t+1)
    seq = []
    for sg in range(60):
        cs = [c for c in range(8) if not (c in own and sg >= ne) and not (c in third and sg >= 60-nl)]
        if sg == 59 and nl == 0:
            cs = [c for c in cs if c not in third] + [c for c in cs if c in third]
        for c in cs: seq.append((c, sg, 1))
    for sg in range(60-nl, 60):
        for c in third: seq.append((c, sg, 2))
    for sg in range(ne, 60):
        for c in own: seq.append((c, sg, 3))
    assert len(seq) == 480
    return seq

class Compute:
    def __init__(self, q, cfg):
        self.q, self.cfg = q, cfg
        self.vWA0, self.vWA1, self.vXA, self.vSEND, self.vOUT0, self.vOUT1, self.vHA = 1, 2, 3, 4, 5, 6, 7
        self.ACC = 8
        self.PB = self.ACC + 32
        self.NP = (256 - self.PB)//4
        self.seq = mfma_seq(q, cfg)

    def acc(self, c): return self.ACC + 4*c

    def plan(self, splits):
        cfg, seq = self.cfg, self.seq
        lead = cfg["lead"]
        inst = {}; xi = []; wi = []
        cur = {}
        for k, (c, sg, ph) in enumerate(seq):
            ds, i = divmod(sg, 15)
            xk = ("x", ds, c+i, ph)
            inst.setdefault(xk, []).append(k); xi.append(xk)
            if (sg, ph) in splits: cur[sg] = ph
            wk = ("w", sg, cur.get(sg, 1))
            inst.setdefault(wk, []).append(k); wi.append(wk)
        occ = {}
        G0 = -1
        def units(g): return sum(2 if e[0][0] == "x" else 1 for e in occ.get(g, [])) if g > G0 else 0
        def free(g, cost):
            if g <= G0: return True
            if units(g) + cost > 2: return False
            for a in range(g-3, g+1):
                if sum(units(j) for j in range(a, a+4)) + cost > cfg["wcap"]: return False
            return True
        def place(key, hf, latest):
            g = latest
            while not free(g, 2 if key[0] == "x" else 1): g -= 1
            g = max(g, G0)
            occ.setdefault(g, []).append((key, hf)); return g
        first = sorted([k for k in inst if k[0] == "w" and k[2] == 1], key=lambda k: -k[1])
        lim = 10**9
        issue = {}
        for key in first:
            g1 = place(key, 1, min(inst[key][0] - lead, lim))
            g0 = place(key, 0, g1 - cfg["wsplit"])
            issue[key] = g0; lim = g0 - 1
        rest = sorted([k for k in inst if k not in issue], key=lambda k: -inst[k][0])
        for key in rest:
            if key[0] == "x": issue[key] = place(key, 0, inst[key][0] - lead)
            else:
                g1 = place(key, 1, inst[key][0] - lead); issue[key] = place(key, 0, g1)
        for g in occ: occ[g].sort(key=lambda e: (inst[e[0]][0], e[0][0] == "x", e[1]))
        return inst, xi, wi, occ, issue

    def choose_splits(self):
        RING = self.cfg["RING"]
        splits = set()
        phase_of = [s[2] for s in self.seq]
        while True:
            inst, xi, wi, occ, issue = self.plan(splits)
            ev = [0]*482
            for key, uses in inst.items():
                ev[issue[key]+1] += 1; ev[uses[-1]+1] -= 1
            live = 0; bad = None
            for g in range(-1, 480):
                live += ev[g+1]
                if live > self.NP: bad = g; break
            if bad is None: return splits
            best = None
            for key, uses in inst.items():
                if key[0] != "w" or key[1] < 60-RING: continue
                prev = [u for u in uses if u <= bad]; nxt = [u for u in uses if u > bad]
                if prev and nxt and phase_of[nxt[0]] != phase_of[prev[-1]] and nxt[0] - bad > self.cfg["lead"] + 6:
                    if best is None or nxt[0] > best[0]: best = (nxt[0], (key[1], phase_of[nxt[0]]))
            assert best, ("register pressure", self.q, bad)
            splits.add(best[1])

    def build(self):
        cfg, q, seq = self.cfg, self.q, self.seq
        RING, safe = cfg["RING"], cfg["safe"]
        h = q & 1
        grp = groups(cfg); NB = len(grp)
        bar_of = {sg: n for n, g in enumerate(grp) for sg in g}
        self.splits = self.choose_splits()
        inst, xi, wi, occ, issue = self.plan(self.splits)
        out = []; self.ninst = 0; self.gaphist = [0]*6
        def emit(s): out.append("    " + s); self.ninst += 1
        pool = list(range(self.NP)); reg = {}
        lds = []; lastidx = {}; covered = 0; nbar = 0
        self.free_bar = {}; self.x1_bar = None; self.x4_bar = None; self.bar_k = []
        pend_free = []
        release = {}
        for key, uses in inst.items(): release.setdefault(uses[-1], []).append(key)
        lastuse = {}
        for k, (c, sg, ph) in enumerate(seq): lastuse[c] = k
        sends = sorted([max(lastuse[2*d], lastuse[2*d+1]), d] for d in range(4) if d != q)
        p2 = min(k for k in range(480) if seq[k][2] >= 2); p3 = min(k for k in range(480) if seq[k][2] == 3)
        tb = p2 + cfg["t12"]; t3 = max(p3 + cfg["t3"], tb+1); chk = 480 - cfg["chk_back"]
        lastL0 = max(inst[k][0] for k in inst if k[0] == "x" and k[1] < 2)
        tb2 = max(lastL0 + 1, tb + 1)
        assert tb2 < 480 and t3 < chk
        valu_q = []; mf_inst = {}
        cur_k = 0
        def barrier():
            nonlocal nbar
            for sg in list(pend_free):
                if lastidx[("w", sg, 1)] < covered:
                    self.free_bar[sg] = nbar; pend_free.remove(sg)
            emit("s_barrier"); nbar += 1; self.bar_k.append(cur_k)
        def do_read(key, hf, g):
            if hf == 0: reg[key] = self.PB + 4*pool.pop(0)
            r = reg[key]
            if key[0] == "x":
                _, ds, u, _ = key
                if nbar == 0: barrier()
                if ds >= 2 and self.x1_bar is None: self.x1_bar = nbar - 1
                if u >= 8 and self.x4_bar is None: self.x4_bar = nbar - 1
                off = (ds >> 1)*XL + (u >> 3)*2*XCH + (u & 7)*128 + (ds & 1)*64
                emit(f"ds_read_b128 v[{r}:{r+3}], v{self.vXA} offset:{off}")
            else:
                sg = key[1]
                if key[2] == 1:
                    while nbar <= bar_of[sg]: barrier()
                    if hf: pend_free.append(sg)
                off = (sg % RING)*4096 + 512*hf; va = self.vWA0
                if off >= 65536: off -= 65536; va = self.vWA1
                emit(f"ds_read_b64_tr_b16 v[{r+2*hf}:{r+2*hf+1}], v{va} offset:{off}")
            lds.append(g); lastidx[key] = len(lds)-1 if (key[0] == "x" or hf) else 10**9
        def wait_for(idx, g):
            nonlocal covered
            if idx < covered: return
            j = idx
            while j+1 < len(lds) and lds[j+1] <= g - safe: j += 1
            n = len(lds) - 1 - j
            assert n <= 15, n
            emit(f"s_waitcnt lgkmcnt({n})"); covered = j+1
        started = set()
        backlog = list(occ.get(-1, []))
        x4b = cfg["x4b"]
        def wantbar(g):
            return any(key[0] == "w" and key[2] == 1 and hf == 0 and grp[bar_of[key[1]]][0] == key[1] for key, hf in occ.get(g+1, []))
        def planned(g):
            return len(occ.get(g, [])) + wantbar(g) + (g+1 in (tb, tb2, t3))
        for k in range(480):
            g = k-1; cur_k = k
            c, sg, ph = seq[k]
            n0 = self.ninst
            if k > 0: backlog += occ.get(g, [])
            lim = cfg["burst0"] if k == 0 else 2
            n = 0
            while backlog and n < lim:
                cand = [e for e in backlog if not (e[0][0] == "x" and e[0][2] >= 8 and nbar <= x4b)
                        and not (k < cfg["w1at"] and e[0][0] == "w" and e[0][1] > 0)]
                if not cand: break
                key, hf = cand[0]
                backlog.remove((key, hf)); do_read(key, hf, g); n += 1
            if k == t3:
                assert not sends and not valu_q
                P = self.PB + 4*pool.pop(0)
                emit(f"buffer_load_dwordx4 v[{P}:{P+3}], v{self.vSEND}, s[28:31], s44 offen sc1")
            if k == chk:
                T = [self.PB + 4*pool.pop(0) for _ in range(2)]
                valu_q += ["s_waitcnt vmcnt(0)", f"v_max3_u32 v{T[0]}, v{P}, v{P+1}, v{P+2}", f"v_max_u32 v{T[0]}, v{T[0]}, v{P+3}",
                           f"v_cmp_eq_u32 vcc, -1, v{T[0]}", "|", f"s_cbranch_vccnz L_again{q}\nL_fin{q}:"]
                for j in range(4):
                    t = T[j >> 1] + 2*(j & 1)
                    valu_q += [f"v_lshlrev_b32 v{t}, 16, v{P+j}", f"v_and_b32 v{t+1}, 0xffff0000, v{P+j}"]
                valu_q += [f"v_mul_f32 v{T[j >> 2] + (j & 3)}, s36, v{T[j >> 2] + (j & 3)}" for j in range(8)]
            while lastidx.get(xi[k], 10**9) == 10**9 or lastidx.get(wi[k], 10**9) == 10**9:
                key, hf = backlog.pop(0)
                while key[0] == "x" and key[2] >= 8 and nbar <= x4b: barrier()
                do_read(key, hf, g)
            idx = max(lastidx[xi[k]], lastidx[wi[k]])
            if k+1 < 480 and planned(g+1) >= 2 and self.ninst - n0 < 2:
                nx = max(lastidx.get(xi[k+1], 10**9), lastidx.get(wi[k+1], 10**9))
                if nx < len(lds) and lds[nx] <= g - 4: idx = max(idx, nx)
            endbar = (k in (tb, tb2)) or (wantbar(g) and not backlog and k >= cfg["w1at"])
            needw = (idx >= covered) + endbar
            while sends and sends[0][0] in mf_inst and self.ninst - mf_inst[sends[0][0]] >= 8:
                d = sends.pop(0)[1]; a0, a1 = self.acc(2*d), self.acc(2*d+1)
                valu_q += [f"v_cvt_pk_bf16_f32 v{a0}, v{a0}, v{a0+1}", f"v_cvt_pk_bf16_f32 v{a0+1}, v{a0+2}, v{a0+3}",
                           f"v_cvt_pk_bf16_f32 v{a0+2}, v{a1}, v{a1+1}", f"v_cvt_pk_bf16_f32 v{a0+3}, v{a1+2}, v{a1+3}"]
                valu_q += [f"v_min_u32 v{a0+j}, -2, v{a0+j}" for j in range(4)]
                valu_q += [f"buffer_store_dwordx4 v[{a0}:{a0+3}], v{self.vSEND}, s[28:31], s{40+d} offen sc1"]
            while valu_q and self.ninst - n0 + needw < cfg["gapmax"]:
                v = valu_q.pop(0)
                if v == "|": break
                emit(v)
            wait_for(idx, g)
            if endbar:
                if k == tb: assert nbar == NB
                barrier()
            self.gaphist[min(self.ninst - n0, 5)] += 1
            a = self.acc(c); wr = reg[wi[k]]; xr = reg[xi[k]]
            cs = f"v[{a}:{a+3}]" if c in started else "0"
            started.add(c)
            emit(f"v_mfma_f32_16x16x32_bf16 v[{a}:{a+3}], v[{wr}:{wr+3}], v[{xr}:{xr+3}], {cs}")
            mf_inst[k] = self.ninst
            for key in release.get(k, []): pool.append((reg[key] - self.PB)//4)
        assert nbar == NB + 2 and not backlog
        if cfg["diag"]: emit("s_memtime s[70:71]")
        Y = [self.PB + 4*pool.pop(0) for _ in range(2)]
        def handover():
            emit("s_barrier")
            for j in range(2): emit(f"ds_read_b128 v[{Y[j]}:{Y[j]+3}], v{self.vHA} offset:{4096*j}")
        for v in valu_q:
            if v != '|': emit(v)
        if cfg["hbpos"] == 0: handover()
        pad = 8 - (self.ninst - mf_inst[478])
        if pad > 0: emit(f"s_nop {pad-1}")
        R = [T[j >> 2] + (j & 3) for j in range(8)]
        A = [self.acc(2*q + (j >> 2)) + (j & 3) for j in range(8)]
        for j in range(8): emit(f"v_fmac_f32 v{R[j]}, s36, v{A[j]}")
        if cfg["hbpos"] == 1: handover()
        for j in range(8): emit(f"v_exp_f32 v{R[j]}, v{R[j]}")
        if cfg["hbpos"] == 2: handover()
        for j in range(8): emit(f"v_add_f32 v{R[j]}, 1.0, v{R[j]}")
        for j in range(8): emit(f"v_rcp_f32 v{R[j]}, v{R[j]}")
        if h == 0:
            for j in range(8): emit(f"v_fma_f32 v{R[j]}, v{R[j]}, -2.0, 1.0")
        if cfg["hbpos"] == 3: handover()
        for cc in (0, 1):
            t = T[cc]
            emit(f"s_waitcnt lgkmcnt({0 if (cc or cfg['diag']) else 1})")
            for j in range(4): emit(f"v_mul_f32 v{t+j}, v{t+j}, v{Y[cc]+j}")
            emit(f"v_cvt_pk_bf16_f32 v{t}, v{t}, v{t+1}")
            emit(f"v_cvt_pk_bf16_f32 v{t+1}, v{t+2}, v{t+3}")
            emit(f"buffer_store_dwordx2 v[{t}:{t+1}], v{(self.vOUT0, self.vOUT1)[cc]}, s[24:27], 0 offen {cfg['outflags']}")
        self.again = f"""L_again{q}:
    s_add_u32 s13, s13, 1
    s_cmp_ge_u32 s13, {cfg["spin"]}
    s_cbranch_scc1 L_fin{q}
    buffer_load_dwordx4 v[{P}:{P+3}], v{self.vSEND}, s[28:31], s44 offen sc1
    s_waitcnt vmcnt(0)
    v_max3_u32 v{T[0]}, v{P}, v{P+1}, v{P+2}
    v_max_u32 v{T[0]}, v{T[0]}, v{P+3}
    v_cmp_eq_u32 vcc, -1, v{T[0]}
    s_cbranch_vccnz L_again{q}
    s_branch L_fin{q}
"""
        return "\n".join(out) + "\n"

def gen(**kw):
    cfg = dict(DEF); cfg.update(kw)
    RING = cfg["RING"]; diag = cfg["diag"]
    comps = [Compute(q, cfg) for q in range(4)]
    bodies = [c.build() for c in comps]
    free_bar = {sg: max(c.free_bar[sg] for c in comps) for sg in range(60 - RING)}
    x1_bar = min(c.x1_bar for c in comps); x4_bar = min(c.x4_bar for c in comps)
    XBASE = RING*4096
    lds = XBASE + 2*XL
    s = f"; generated by gen4.py  cfg={cfg}\n"
    s += f"; @launch grid=(256,1,1) block=(512,1,1) lds={lds}\n"
    head = f""".amdgcn_target "amdgcn-amd-amdhsa--gfx950"
.text
.p2align 12
{".fill 832, 4, 0xbf800000" if diag else ""}
.globl {NAME}
.p2align 8
.type {NAME},@function
{NAME}:
"""
    hdr = s; s = """    s_cmp_ge_u32 s2, 256
    s_cbranch_scc1 L_end
"""
    if diag: s += "    s_memrealtime s[94:95]\n    s_memtime s[96:97]\n"
    s += f"""    s_load_dwordx2 s[16:17], s[0:1], 0      ; x
    s_load_dwordx2 s[20:21], s[0:1], 8      ; w
    s_load_dwordx2 s[28:29], s[0:1], 32     ; ws
    s_load_dwordx2 s[24:25], s[0:1], 16     ; out
    s_load_dwordx2 s[32:33], s[0:1], 24     ; debug
    v_lshrrev_b32 v1, 6, v0
    v_and_b32 v0, 63, v0                    ; lane
    v_readfirstlane_b32 s3, v1              ; wave
    s_and_b32 s4, s2, 3                     ; role q
    s_lshr_b32 s9, s2, 2                    ; group
"""
    if cfg["mapping"] == "a":
        s += """    s_and_b32 s5, s9, 1                     ; batch
    s_bfe_u32 s6, s2, 0x20003
"""
    else:
        s += """    s_and_b32 s6, s9, 3
    s_bfe_u32 s5, s2, 0x10004               ; batch
"""
    s += f"""    s_lshr_b32 s7, s2, 5
    s_mov_b32 s18, 512000
    s_mov_b32 s19, 0x20000
    s_mul_i32 s8, s5, s18
    s_mov_b32 s22, 3932160
    s_mov_b32 s23, s19
    s_mov_b32 s26, s18
    s_mov_b32 s27, s19
    s_mov_b32 s30, {(8<<20) if diag else (4<<20)}
    s_mov_b32 s31, s19
    s_movk_i32 s34, 256
    s_mov_b32 s35, s19
    s_cmp_lt_u32 s3, 4
    s_cbranch_scc1 L_loader
    s_getpc_b64 s[46:47]
L_pc:
    s_and_b32 s10, s3, 3                    ; wave & 3
    s_lshr_b32 s12, s2, 3
    s_lshl2_add_u32 s12, s12, s10
    s_lshl_b32 s12, s12, 6
    s_and_b32 s13, s12, 0xfc0
    s_load_dword s54, s[46:47], s13
    s_lshl_b32 s13, s4, 13
    s_add_u32 s12, s12, s13
    s_add_u32 s12, s12, L_role0-L_pc
    s_load_dword s55, s[46:47], s12
    s_mov_b64 exec, 0
    s_cmp_eq_u32 s10, 0
    s_cbranch_scc1 L_padL0
    s_cmp_eq_u32 s4, 1
    s_cbranch_scc1 L_role1
    s_cmp_eq_u32 s4, 2
    s_cbranch_scc1 L_role2
    s_cmp_eq_u32 s4, 3
    s_cbranch_scc1 L_role3
    s_branch L_role0
L_loader:
    s_lshr_b32 s11, s4, 1                   ; kh
    s_lshr_b32 s13, s3, 1
    s_lshl3_add_u32 s12, s7, s13
    s_and_b32 s13, s3, 1
    s_lshl4_add_u32 s12, s12, s13
    s_sub_u32 s12, s12, 28
    s_lshl1_add_u32 s12, s12, s11
    s_lshl_b32 s12, s12, 8
    v_lshrrev_b32 v2, 3, v0
    v_lshlrev_b32 v2, 10, v2
    v_and_b32 v3, 7, v0
    v_lshlrev_b32 v3, 4, v3
    v_add3_u32 v8, v2, v3, s12              ; x voffset m=0
    s_movk_i32 s39, 0x4000
    v_add_u32 v9, s39, v8
    v_add_u32 v10, s39, v9
    v_add_u32 v11, s39, v10
    v_add_u32 v12, s39, v11
    s_lshl_b32 s13, s13, 6
    v_and_b32 v4, 16, v0
    v_lshlrev_b32 v4, 1, v4
    v_or_b32 v4, s13, v4
    v_xor_b32 v3, v3, v4
    s_and_b32 s14, s4, 1
    s_lshl2_add_u32 s14, s14, s6            ; h*4 + ct
    s_lshl_b32 s15, s11, 10
    s_add_u32 s15, s15, s14
    s_lshl_b32 s15, s15, 7
    s_lshl_b32 s37, s3, 10
    s_lshl3_add_u32 s12, s37, s15
    v_add3_u32 v7, v2, v3, s12              ; w voffset
    s_mul_i32 s36, s3, {XCH}
    s_add_u32 s36, s36, {XBASE}
    s_movk_i32 s51, 0x1000
    s_mov_b32 s52, 0x40000
    s_mov_b32 m0, s36
    s_waitcnt lgkmcnt(0)
    s_add_u32 s16, s16, s8
    s_addc_u32 s17, s17, 0
"""
    if diag: s += "    s_memtime s[98:99]\n"
    order = []; nw = 0
    def add(tok):
        nonlocal nw
        if tok == "w":
            order.append(("w", nw)); nw += 1
            for t in cfg["ins"].get(nw-1, []): add(t)
        elif tok[0] == "x": order.append(("x", 0, int(tok[1])))
        elif tok[0] == "y": order.append(("x", 1, int(tok[1])))
        elif tok[0] == "c": order.append(("clr", int(tok[1])))
        elif tok == "PX": order.append(("px",))
        elif tok[0] == "P": order.append(("p",) + tuple(int(v) for v in tok.split(":")[1:]))
        else: raise ValueError(tok)
    for t in cfg["pre"]: add(t)
    K0 = len(order)
    while nw < 60: add("w")
    setup_clr = f"""    v_lshl_add_u32 v13, v0, 4, s37
    s_lshl2_add_u32 s13, s2, s4
    s_lshl_b32 s13, s13, 12
    s_xor_b32 s44, s13, s39
    s_xor_b32 s45, s13, 0x8000
    s_xor_b32 s46, s45, s39
    s_xor_b32 s48, s13, s51
    s_xor_b32 s50, s13, 0x3000
    v_mov_b32 v16, -1
    v_mov_b32 v17, -1
    v_mov_b32 v18, -1
    v_mov_b32 v19, -1
"""
    st = dict(m0=("x", 0), so=None)
    def setm0(kind, off):
        prev = st["m0"]; st["m0"] = (kind, off)
        if prev == (kind, off): return ""
        if prev[0] == kind and off - prev[1] == 4096: return "    s_add_u32 m0, m0, s51\n"
        if prev[0] == kind and abs(off - prev[1]) < 32768: return f"    s_addk_i32 m0, {off - prev[1]}\n"
        return f"    s_add_u32 m0, {'s36' if kind == 'x' else 's37'}, {off}\n"
    def op_asm(op):
        if op[0] == "x":
            _, L, m = op
            t = setm0("x", L*(XL-128) + 4*m*XCH)
            return (t + ("    s_nop 0\n" if t else "") +
                    f"    buffer_load_dwordx4 v{8+m}, s[16:19], 0 offen offset:{128*L} lds\n")
        if op[0] == "w":
            sg = op[1]; ds, i = divmod(sg, 15)
            so = "    s_add_u32 s38, s38, s52\n" if i else f"    s_mov_b32 s38, {ds*32768}\n"
            return setm0("w", (sg % RING)*4096) + so + "    buffer_load_dwordx4 v7, s[20:23], s38 offen lds\n"
        if op[0] == "clr":
            if op[1] >= cfg["nclr"]:
                return (setup_clr if op[1] == 0 else "") + f"    v_bfrev_b32 v22, 1\n    buffer_store_dword v16, v22, s[28:31], 0 offen\n"
            return (setup_clr if op[1] == 0 else "") + f"    buffer_store_dwordx4 v[16:19], v13, s[28:31], s{44+op[1]} offen {cfg['clrflags']}\n"
        if op[0] == "p":
            _, a, b = op
            if cfg["mapping"] == "a":
                prow = """    s_lshl3_add_u32 s12, s5, s7
    s_and_b32 s13, s3, 1
    s_lshl1_add_u32 s12, s12, s13
    s_lshl_b32 s12, s12, 10
    s_add_u32 s12, s12, s15
"""
            else:
                prow = """    s_lshr_b32 s12, s2, 3
    s_lshl_b32 s12, s12, 10
    s_add_u32 s12, s12, s15
    s_and_b32 s13, s3, 1
    s_lshl_b32 s13, s13, 8
    s_xor_b32 s12, s12, s13
"""
            return f"""    s_lshr_b32 s12, s3, 1
    s_add_u32 s12, s12, {a}
    v_lshl_add_u32 v20, v0, 1, s12          ; stage
    v_mul_u32_u24 v21, 4370, v20
    v_lshrrev_b32 v21, 16, v21              ; d-step
    v_mul_u32_u24 v21, {15*262144-32768}, v21
    v_lshlrev_b32 v22, 18, v20
    v_sub_u32 v21, v22, v21
{prow}    v_cmp_gt_u32 vcc, {b}, v20
    v_add_u32 v21, s12, v21
    v_bfrev_b32 v22, 1
    v_cndmask_b32 v21, v22, v21, vcc
    buffer_load_dword v23, v21, s[20:23], 0 offen
"""
        if op[0] == "px":
            return f"""    s_lshl2_add_u32 s12, s14, s3
    s_lshl_b32 s12, s12, 11
    s_lshl_b32 s13, s7, 8
    s_add_u32 s13, s13, s11
    s_lshl_b32 s13, s13, 8
    s_add_u32 s12, s12, s13
    s_addk_i32 s12, 128
    v_lshl_add_u32 v21, v0, 9, s12
    s_lshr_b32 s12, s37, 1
    s_add_u32 s13, s13, s12
    s_add_u32 s13, s13, {100*512}
    v_bfrev_b32 v22, 1
    v_cmp_gt_u32 vcc, 4, v0
    v_writelane_b32 v22, s13, 4
    s_nop 0
    v_cndmask_b32 v21, v22, v21, vcc
    buffer_load_dword v23, v21, s[16:19], 0 offen
"""
    issued = []
    oi = 0; flag_done = False; clr_cov_bar = None
    grp = groups(cfg); NB = len(grp)
    bar_of = {sg: n for n, g in enumerate(grp) for sg in g}
    stamps = {}
    for i, sg in enumerate((0, 1, 8, 15, 30, 45, 59)): stamps.setdefault(bar_of[sg], []).append(i)
    tbar = [16*min(c.bar_k[n] for c in comps) for n in range(NB)]
    def can(op, nb):
        return not (op[0] == "w" and op[1] >= RING and nb <= free_bar[op[1]-RING])
    def cost(op):
        if op[0] in ("w", "x"): return cfg["opc"]
        if op[0] == "p": return 3*(op[2]-op[1])
        if op[0] == "px": return 40
        return 140 + (cfg["ev"] if op[1] == 2 else 0)
    tpipe = 0; shift = 0; done_t = {}; sched = []
    for n in range(NB):
        needs = [("w", grp[n][-1])] + [("x", 0, m) for m in range(4)]
        if n >= x4_bar: needs.append(("x", 0, 4))
        if n >= x1_bar: needs += [("x", 1, m) for m in range(5)]
        cnt = 0
        now = tbar[n-1] + shift if n else 0
        while oi < len(order) and can(order[oi], n):
            op = order[oi]
            forced = any(x not in issued for x in needs)
            if n > 0 and not forced:
                nxt = max([tbar[n] + shift] + [done_t[x] for x in needs])
                t = now + 56*cnt
                if cnt >= max(1, (nxt - now + 8)//64) or sum(d > t for d in done_t.values()) >= (cfg["cap2"] if max(done_t[x] for x in needs) - now > 400 else cfg["cap"]): break
            if n == 0 and not forced and cnt >= K0: break
            s += op_asm(op); issued.append(op); oi += 1; cnt += 1
            if n == 0 and forced: done_t[op] = 0
            else:
                tpipe = max(tpipe + cost(op), now + 56*cnt + cfg["lat"] if n else 0); done_t[op] = tpipe
        if clr_cov_bar is not None and not flag_done and n > max(clr_cov_bar, cfg["flagbar"]):
            s += f"""    s_cmp_lg_u32 s3, 0
    s_cbranch_scc1 L_noflag
    s_lshl_b32 s12, s9, 2
    s_mov_b32 s53, 1
    s_atomic_add s53, s[32:33], s12
L_noflag:
"""
            flag_done = True
        need = max(issued.index(x) for x in needs)
        shift = max(shift, done_t[issued[need]] - tbar[n])
        if clr_cov_bar is None and ("clr", 2) in issued and need > issued.index(("clr", 2)): clr_cov_bar = n
        vm = len(issued) - 1 - need
        sched.append((cnt, vm, shift))
        assert vm <= 63
        if diag and n == 0: s += f"    s_memtime s[88:89]\n    s_waitcnt vmcnt({vm})\n    s_memtime s[90:91]\n"
        s += f"    s_waitcnt vmcnt({vm})\n    s_barrier\n"
        if n == 0: sz0 = tsize(s)
        if diag:
            for i in stamps.get(n, []): s += f"    s_memtime s[{64+2*i}:{65+2*i}]\n"
    hdr = hdr.replace("; @launch", f"; loader (issued, vmcnt, modelled stall) per barrier: {sched}\n; @launch")
    assert oi == len(order) and flag_done
    s += f"""; wait until all four workgroups of the group have cleared the slots they will write
    s_lshl_b32 s12, s9, 2
    v_mov_b32 v20, s12
    s_mov_b32 s13, 0
L_flag:
    buffer_load_dword v21, v20, s[32:35], 0 offen sc1
    s_add_u32 s13, s13, 1
    s_waitcnt vmcnt(0)
    v_readfirstlane_b32 s12, v21
    s_cmp_ge_u32 s13, {cfg["spin"]}
    s_cbranch_scc1 L_flagok
    s_cmp_ge_u32 s12, 4
    s_cbranch_scc0 L_flag
L_flagok:
"""
    if diag: s += "    s_memtime s[78:79]\n    s_mov_b32 s92, s13\n"
    s += f"""    s_bitcmp1_b32 s4, 0
    s_mov_b32 s40, {f2u(-LOG2E):#x}
    s_cselect_b32 s40, {f2u(2*LOG2E):#x}, s40
    s_cselect_b32 s41, -2.0, 1.0
    s_cselect_b32 s42, 1.0, 0
    v_mov_b32 v22, s42
    v_add_u32 v14, {XBASE}, v13
    s_mov_b32 s13, 0
    s_barrier
"""
    if diag: s += "    s_memtime s[80:81]\n"
    s += f"""    buffer_load_dwordx4 v[24:27], v13, s[28:31], s48 offen sc1
    buffer_load_dwordx4 v[28:31], v13, s[28:31], s50 offen sc1
    s_barrier
L_poll:
    s_add_u32 s13, s13, 1
    s_waitcnt vmcnt(0)
    v_max3_u32 v36, v24, v25, v26
    v_max3_u32 v37, v27, v28, v29
    v_max3_u32 v36, v36, v30, v31
    v_max_u32 v36, v36, v37
    v_cmp_eq_u32 vcc, -1, v36
    s_cmp_ge_u32 s13, {cfg["spin"]}
    s_cbranch_scc1 L_got
    s_cbranch_vccz L_got
    buffer_load_dwordx4 v[24:27], v13, s[28:31], s48 offen sc1
    buffer_load_dwordx4 v[28:31], v13, s[28:31], s50 offen sc1
    s_branch L_poll
L_got:
    s_setprio {cfg["lprio"]}
"""
    if diag: s += "    s_memtime s[82:83]\n    s_mov_b32 s93, s13\n"
    for j in range(4):
        s += f"    v_lshlrev_b32 v{40+2*j}, 16, v{24+j}\n    v_and_b32 v{41+2*j}, 0xffff0000, v{24+j}\n"
        s += f"    v_lshlrev_b32 v{48+2*j}, 16, v{28+j}\n    v_and_b32 v{49+2*j}, 0xffff0000, v{28+j}\n"
    for j in range(8): s += f"    v_add_f32 v{40+j}, v{40+j}, v{48+j}\n"
    for j in range(8): s += f"    v_mul_f32 v{40+j}, s40, v{40+j}\n"
    for j in range(8): s += f"    v_exp_f32 v{40+j}, v{40+j}\n"
    for j in range(8): s += f"    v_add_f32 v{40+j}, 1.0, v{40+j}\n"
    for j in range(8): s += f"    v_rcp_f32 v{40+j}, v{40+j}\n"
    for j in range(8): s += f"    v_fma_f32 v{40+j}, v{40+j}, s41, v22\n"
    s += f"""    ds_write_b128 v14, v[40:43]
    ds_write_b128 v14, v[44:47] offset:4096
    s_waitcnt lgkmcnt(0)
"""
    if diag: s += "    s_memtime s[86:87]\n"
    s += "    s_barrier\n"
    if diag:
        s += "    s_memtime s[84:85]\n    s_waitcnt lgkmcnt(0)\n"
        s += "    v_mov_b32 v24, 0\n"
        vals = ["s94", "s98"] + [f"s{64+2*i}" for i in range(11)] + ["s92", "s93", "s86", "s88", "s90"]
        for i, r in enumerate(vals):
            if 1 <= i <= 12 or i >= 15: s += f"    s_sub_u32 {r}, {r}, s96\n"
            s += f"    v_writelane_b32 v24, {r}, {i}\n"
        s += """    s_lshl_b32 s12, s2, 3
    s_add_u32 s12, s12, s3
    s_lshl_b32 s12, s12, 8
    s_add_u32 s12, s12, 0x400000
    v_lshlrev_b32 v25, 2, v0
    buffer_store_dword v24, v25, s[28:31], s12 offen
"""
    s += f"""L_end:
    s_endpgm
L_compute:
    s_mov_b64 exec, -1
    s_setprio {cfg["prio"]}
{"    s_memtime s[72:73]" if diag else ""}
    v_and_b32 v8, 15, v0                    ; r / i
    v_lshrrev_b32 v9, 4, v0                 ; kc / G
    v_mul_u32_u24 v3, {XCH}, v8
    v_lshl_add_u32 v3, v9, 4, v3
    v_add_u32 v3, {XBASE}, v3
    v_lshrrev_b32 v10, 2, v8
    v_lshl_add_u32 v10, v9, 3, v10          ; k row
    v_lshrrev_b32 v11, 3, v8
    v_and_b32 v12, 1, v9
    v_lshl_or_b32 v11, v12, 1, v11          ; swizzle
    v_xor_b32 v11, s10, v11
    v_lshlrev_b32 v11, 5, v11
    v_lshl_add_u32 v1, v10, 7, v11
    v_and_b32 v12, 3, v8
    v_lshl_add_u32 v1, v12, 3, v1
    v_add_u32 v2, 0x10000, v1
    s_lshl_b32 s12, s10, 10
    v_lshl_add_u32 v4, v0, 4, s12
    v_add_u32 v7, {XBASE}, v4
    v_lshrrev_b32 v10, 1, v8
    v_and_b32 v11, 1, v8
    v_lshl_add_u32 v10, v10, 4, v11         ; 16p + par
    s_lshl_b32 s12, s7, 7
    s_lshl_b32 s13, s4, 2
    s_add_u32 s12, s12, s13
    s_lshl_b32 s12, s12, 9
    s_lshl_b32 s13, s6, 7
    s_add_u32 s12, s12, s13
    s_lshl_b32 s13, s10, 5
    s_add_u32 s12, s12, s13
    v_lshl_add_u32 v5, v10, 9, s12
    v_lshl_add_u32 v5, v9, 3, v5
    v_add_u32 v6, 0x400, v5
    s_lshl_b32 s12, s9, 16
    s_lshl_b32 s13, s4, 12
    s_add_u32 s40, s12, s13
    s_add_u32 s41, s40, 0x4000
    s_add_u32 s42, s40, 0x8000
    s_add_u32 s43, s40, 0xc000
    s_lshl_b32 s13, s4, 14
    s_add_u32 s44, s40, s13
    s_xor_b32 s44, s44, 0x2000
    s_mov_b32 s13, 0
    s_bitcmp1_b32 s4, 0
    s_mov_b32 s36, {f2u(2*LOG2E):#x}
    s_cselect_b32 s36, {f2u(-LOG2E):#x}, s36
    s_waitcnt lgkmcnt(0)
    s_add_u32 s24, s24, s8
    s_addc_u32 s25, s25, 0
    s_cmp_eq_u32 s4, 1
    s_cbranch_scc1 L_main1
    s_cmp_eq_u32 s4, 2
    s_cbranch_scc1 L_main2
    s_cmp_eq_u32 s4, 3
    s_cbranch_scc1 L_main3
    s_branch L_main0
"""
    npl = tsize(s)//1024
    s, k, end0 = add_pads(s, 0, [f"L_padL{k}" for k in range(npl)], [f"L_padL{k+1}" for k in range(npl-1)] + ["L_compute"],
                          lambda L, i: not L[i].strip().startswith(("buffer_load", "s_cbranch", "s_nop", "v_cndmask", "s_cselect", "s_addc")))
    assert k == npl and end0 <= (4096 if diag else 3328), end0
    page0 = s; s = ""
    sizes = [sz0, end0]
    for q in range(4):
        pre_s = s
        s = f"""    s_cmp_eq_u32 s10, 1
    s_cbranch_scc1 L_pad{q}_0
    s_cmp_eq_u32 s10, 2
    s_cbranch_scc1 L_pad{q}_1
    s_branch L_pad{q}_2
L_main{q}:
""" + ("    s_memtime s[74:75]\n    s_waitcnt lgkmcnt(0)\n" if diag else "") + bodies[q]
        if diag:
            s += """    s_memtime s[64:65]
    s_waitcnt vmcnt(0)
    s_memtime s[66:67]
    s_memrealtime s[68:69]
    s_waitcnt lgkmcnt(0)
    s_sub_u32 s64, s64, s96
    s_sub_u32 s66, s66, s96
    s_sub_u32 s70, s70, s96
    v_mov_b32 v24, 0
    v_writelane_b32 v24, s94, 0
    v_writelane_b32 v24, s64, 1
    v_writelane_b32 v24, s66, 2
    v_writelane_b32 v24, s68, 3
    v_writelane_b32 v24, s70, 4
    v_writelane_b32 v24, s13, 5
    s_sub_u32 s72, s72, s96
    s_sub_u32 s74, s74, s96
    v_writelane_b32 v24, s72, 6
    v_writelane_b32 v24, s74, 7
    s_lshl_b32 s12, s2, 3
    s_add_u32 s12, s12, s3
    s_lshl_b32 s12, s12, 8
    s_add_u32 s12, s12, 0x400000
    v_lshlrev_b32 v25, 2, v0
    buffer_store_dword v24, v25, s[28:31], s12 offen
"""
        s += "    s_endpgm\n" + comps[q].again
        npd = 7 if tsize(s) + 24 >= 7168 + 64 else 6
        s, k, end = add_pads(s, 0, [f"L_pad{q}_{k}" for k in range(npd)], [f"L_pad{q}_{k+3}" if k+3 < npd else "L_compute" for k in range(npd)],
                             lambda L, i: L[i].strip().startswith("v_mfma") and L[i-1].strip().startswith("v_mfma"))
        assert k == npd and end <= 8192, (k, end)
        sizes.append(end)
        s = pre_s + f".p2align 12\nL_role{q}:\n" + s
    s = hdr.replace("; @launch", f"; code bytes: {sizes}\n; @launch") + head + page0 + s + ".p2align 12\n"
    s += f""".section .rodata,"a"
.p2align 6
.amdhsa_kernel {NAME}
  .amdhsa_next_free_vgpr 256
  .amdhsa_next_free_sgpr 102
  .amdhsa_accum_offset 256
  .amdhsa_group_segment_fixed_size 0
  .amdhsa_kernarg_size 40
  .amdhsa_user_sgpr_count 2
  .amdhsa_user_sgpr_kernarg_segment_ptr 1
  .amdhsa_system_sgpr_workgroup_id_x 1
.end_amdhsa_kernel
"""
    return s, lds

if __name__ == "__main__":
    kw = {}
    for a in sys.argv[2:]:
        k, v = a.split("=", 1)
        kw[k] = eval(v)
    s, lds = gen(**kw)
    open(sys.argv[1], "w").write(s)
    print("written", sys.argv[1], "lds", lds, "lines", s.count("\n")); print(s.split("\n")[1]); print(s.split("\n")[2]); print(s.split("\n")[3])
```

```python
import sys, re, struct

NAME = "standalone__autoregressive_conv_wavernn__speech_kernel"
LOG2E = 1.4426950408889634
def f2u(x): return struct.unpack("<I", struct.pack("<f", x))[0]

DEF = dict(RING=29, n_early=0, n_late=22, lead=8, lead0=5, nlead0=0, safe=5, wcap=7, x4b=1, w1at=2, burst0=8,
           mapping="b", diag=0, single=4, grp=2, snake=1, chain2=1, chainl=1,
           pre=["x0", "x1", "x2", "x3", "w", "P:1:29", "x4", "w", "w", "w", "w"],
           ins={16: ["y0"], 18: ["y1"], 20: ["y2"], 22: ["y3"], 24: ["y4"], 59: ["T"]},
           sfrom=29, sx=1, s0=0, s1=4, s2=5, srow=1, ssch=None, stamps=0, touch=3, sgap=0, sgapb=0, sxpos=0, borrow=1,
           opc=70, cap=9, cap2=12, lat=300, ev=900, ev0=200, slack=80,
           t12=50, t3=46, chk_back=16, prio=1, lprio=0,
           tagld=40, tagwr=52, spin=200000, outflags="")
TAGK = 0x9e3779
XCH = 1056
XL = 20*XCH
BIG = 10**9
HRS = 272
HCS = 16*HRS
HREG = 2*HCS

def groups(cfg):
    g = [[sg] for sg in range(cfg["single"])]
    sg = cfg["single"]
    while sg < 60:
        g.append(list(range(sg, min(60, sg + cfg["grp"])))); sg += cfg["grp"]
    return g

_INL = {"0.5","-0.5","1.0","-1.0","2.0","-2.0","4.0","-4.0"}
_V8 = ("v_mfma","v_add3","v_lshl_add","v_lshl_or","v_max3","v_fma_","v_cvt_pk","v_writelane","v_readlane","v_mul_lo",
       "v_and_or","v_bfe","v_perm_","v_mad","v_add_lshl","v_xad","v_mbcnt","v_or3","v_pk_")
def isize(line):
    t = line.split(";")[0].strip()
    if not t or t.endswith(":") or t.startswith("."): return 0
    mn = t.split()[0]
    if mn.startswith("v_cmp") and not t.split()[1].startswith("vcc"): return 8
    if mn.startswith(("ds_","buffer_","global_","s_load","s_buffer_load","s_memtime","s_memrealtime","s_atomic")) or mn.startswith(_V8): return 8
    if mn.startswith(("s_waitcnt","s_barrier","s_nop","s_branch","s_cbranch","s_setprio","s_endpgm","s_movk","s_addk")): return 4
    for o in t[len(mn):].split(","):
        o = o.strip()
        if o in _INL or re.match(r"^(s|v)(\d|\[)|^(vcc|exec|m0|scc)", o): continue
        try:
            if -16 <= int(o, 0) <= 64: continue
        except ValueError: pass
        return 8
    return 4
def tsize(text): return sum(isize(l) for l in text.split("\n"))
def add_pads(text, names, targets, prefer):
    lines = text.split("\n"); out = []; off = 0; k = 0
    for i, l in enumerate(lines):
        if k < len(names) and off >= 1024*(k+1) and isize(l):
            if prefer(lines, i) or off + isize(l) >= 1024*(k+1) + 60:
                out.append(f"{names[k]}:\n    s_cbranch_execz {targets[k]}"); off += 4; k += 1
        out.append(l); off += isize(l)
    assert k == len(names)
    return "\n".join(out), off

def mfma_seq(q, cfg):
    ne, nl = cfg["n_early"], cfg["n_late"]
    own = (2*q, 2*q+1); t = q ^ 2; third = (2*t, 2*t+1)
    act = lambda sg: [c for c in range(8) if not (c in own and sg >= ne) and not (c in third and sg >= 60-nl)]
    seq = []
    for g in groups(cfg):
        if cfg["snake"]:
            for c in range(8):
                seq += [(c, sg, 1) for sg in g if c in act(sg)]
        else:
            for sg in g: seq += [(c, sg, 1) for c in act(sg)]
    def pair(cs, lo, ph):
        sg = lo
        while sg < 60:
            L = cfg["chainl"] if (ph == 3 and 60 - sg <= cfg["chainl"]) else cfg["chain2"]
            hi = min(sg + L, (sg//15 + 1)*15)
            if ph == 3 and sg < 60 - cfg["chainl"]: hi = min(hi, 60 - cfg["chainl"])
            for c in cs: seq.extend((c, s, ph) for s in range(sg, hi))
            sg = hi
    pair(third, 60-nl, 2); pair(own, ne, 3)
    assert len(seq) == 480 and len(set((c, s) for c, s, _ in seq)) == 480
    return seq

def final_addr(cfg, L, t0, t1, HW, HR, OUT, sw, cset, h, q):
    XB = cfg["RING"]*4096
    o = f"""    v_and_b32 v{t0}, 15, v{L}
    v_lshrrev_b32 v{t1}, 4, v{L}
    v_mul_u32_u24 v{HW}, {HRS}, v{t0}
    v_lshl_add_u32 v{HW}, v{t1}, 4, v{HW}
    s_lshl_b32 s12, {sw}, 6
"""
    if h is None: o += f"    s_bitcmp0_b32 s4, 0\n    s_cselect_b32 s34, {HREG}, 0\n    s_add_u32 s12, s12, s34\n"
    o += f"""    s_add_u32 s12, s12, {XB + (h or 0)*HREG}
    v_add_u32 v{HW}, s12, v{HW}
    v_mul_u32_u24 v{HR}, {HRS}, v{t1}
    v_lshl_add_u32 v{HR}, v{t0}, 4, v{HR}
    s_mul_i32 s12, {sw}, {4*HRS}
    s_add_u32 s12, s12, {XB + cset*HCS}
    v_add_u32 v{HR}, s12, v{HR}
    v_lshrrev_b32 v{OUT}, 1, v{t1}
    v_and_b32 v{t1}, 1, v{t1}
    v_lshl_add_u32 v{OUT}, v{OUT}, 4, v{t1}
    v_lshlrev_b32 v{t0}, 3, v{t0}
    v_lshl_add_u32 v{OUT}, v{OUT}, 9, v{t0}
    s_lshl2_add_u32 s12, s7, {sw}
    s_lshl3_add_u32 s12, s12, s4
    s_lshl4_add_u32 s12, s12, s6
    s_lshl_b32 s12, s12, 7
"""
    if cset: o += "    s_addk_i32 s12, 1024\n"
    return o + f"    v_add_u32 v{OUT}, s12, v{OUT}\n"
def final_stage(cfg, HR, OUT, F, G):
    return f"""    s_waitcnt lgkmcnt(0)
    s_barrier
    ds_read_b128 v[{F}:{F+3}], v{HR}
    ds_read_b128 v[{G}:{G+3}], v{HR} offset:{HREG}
    s_waitcnt lgkmcnt(0)
    v_pk_mul_f32 v[{F}:{F+1}], v[{F}:{F+1}], v[{G}:{G+1}]
    v_pk_mul_f32 v[{F+2}:{F+3}], v[{F+2}:{F+3}], v[{G+2}:{G+3}]
    v_pk_fma_f32 v[{F}:{F+1}], v[{F}:{F+1}], -2.0, v[{G}:{G+1}] op_sel_hi:[1,0,1]
    v_pk_fma_f32 v[{F+2}:{F+3}], v[{F+2}:{F+3}], -2.0, v[{G+2}:{G+3}] op_sel_hi:[1,0,1]
    v_cvt_pk_bf16_f32 v{F}, v{F}, v{F+1}
    v_cvt_pk_bf16_f32 v{F+1}, v{F+2}, v{F+3}
    buffer_store_dwordx2 v[{F}:{F+1}], v{OUT}, s[24:27], 0 offen {cfg['outflags']}
"""

class Compute:
    vTAG, vWA0, vWA1, vXA, vSEND, vLANE, vSENDB, vTMP = range(8)
    ACC = 8; PB = 40; NP = (256 - 40)//4
    def __init__(self, q, cfg):
        self.q, self.cfg = q, cfg
        self.seq = seq = mfma_seq(q, cfg)
        self.grp = groups(cfg)
        self.bar_of = {sg: n for n, g in enumerate(self.grp) for sg in g}
        self.p2 = min(k for k in range(480) if seq[k][2] >= 2); self.p3 = min(k for k in range(480) if seq[k][2] == 3)
        self.tb = self.p2 + cfg["t12"]; self.t3 = max(self.p3 + cfg["t3"], self.tb + 1)
        lastL0 = max(k for k in range(480) if seq[k][1] < 30)
        self.tb2 = max(lastL0 + 1, self.tb + 1)
        while self.tb2 in (self.t3, self.t3 + 1): self.tb2 += 1
        self.chk = 480 - cfg["chk_back"]
    def acc(self, c): return self.ACC + 4*c
    def extra(self, g):
        if not self.cfg["borrow"]: return 0
        return (2 if self.cfg["n_early"] == 0 and g < self.p3 - 16 else 0) + (4 if g >= self.p2 + 14 + 2*self.cfg["sgap"] + self.cfg["sgapb"] else 0)

    def plan(self, splits):
        cfg, seq, lead = self.cfg, self.seq, self.cfg["lead"]
        inst = {}; xi = []; wi = []; cur = {}
        for k, (c, sg, ph) in enumerate(seq):
            ds, i = divmod(sg, 15)
            xk = ("x", ds, c+i, ph)
            inst.setdefault(xk, []).append(k); xi.append(xk)
            if (sg, ph) in splits: cur[sg] = ph
            wk = ("w", sg, cur.get(sg, 1))
            inst.setdefault(wk, []).append(k); wi.append(wk)
        occ = {}; head = []
        for k in (self.tb, self.tb2, self.t3, self.t3 + 1): occ[k-1] = (("rsv",), 0)
        un = lambda g: {"x": 2, "w": 1}.get(occ[g][0][0], 0) if g in occ else 0
        def place(key, hf, latest):
            cost = {"x": 2, "w": 1}.get(key[0], 0); g = latest
            while g >= 0 and (g in occ or any(sum(un(j) for j in range(a, a+4)) + cost > cfg["wcap"] for a in range(g-3, g+1))): g -= 1
            if g < 0:
                if key[0] != "b": head.append((key, hf))
                return -1
            occ[g] = (key, hf); return g
        issue = {}; lim = BIG
        for sg in range(59, -1, -1):
            key = ("w", sg, 1)
            g1 = place(key, 1, min(inst[key][0] - (cfg["lead0"] if sg < cfg["nlead0"] else lead), lim)); g0 = place(key, 0, g1 - 1)
            issue[key] = g0; lim = g0 - 1
            if self.grp[self.bar_of[sg]][0] == sg: lim = place(("b", self.bar_of[sg]), 0, g0 - 1) - 1
        for key in sorted([k for k in inst if k not in issue], key=lambda k: -inst[k][0]):
            if key[0] == "x": issue[key] = place(key, 0, inst[key][0] - lead)
            else: issue[key] = place(key, 0, place(key, 1, inst[key][0] - lead) - 1)
        head.sort(key=lambda e: (inst[e[0]][0], e[0][0] == "x", e[1]))
        return inst, xi, wi, occ, head, issue

    def choose_splits(self):
        RING = self.cfg["RING"]; splits = set(); phase_of = [s[2] for s in self.seq]
        while True:
            inst, xi, wi, occ, head, issue = self.plan(splits)
            ev = [0]*482
            for key, uses in inst.items():
                ev[issue[key]+1] += 1; ev[uses[-1]+1] -= 1
            live = 0; bad = None
            for g in range(-1, 480):
                live += ev[g+1]
                if live > self.NP + self.extra(g): bad = g; break
            if bad is None: return splits
            best = None
            for key, uses in inst.items():
                if key[0] != "w" or key[1] < 60-RING: continue
                prev = [u for u in uses if u <= bad]; nxt = [u for u in uses if u > bad]
                if prev and nxt and phase_of[nxt[0]] != phase_of[prev[-1]] and nxt[0] - bad > self.cfg["lead"] + 6:
                    if best is None or nxt[0] > best[0]: best = (nxt[0], (key[1], phase_of[nxt[0]]))
            assert best, ("register pressure", self.q, bad)
            splits.add(best[1])

    def build(self):
        cfg, q, seq = self.cfg, self.q, self.seq
        RING, safe, h = cfg["RING"], cfg["safe"], q & 1
        grp, bar_of = self.grp, self.bar_of; NB = len(grp)
        self.splits = self.choose_splits()
        inst, xi, wi, occ, backlog, issue = self.plan(self.splits)
        out = []; self.ninst = 0; self.nlds = 0
        def emit(s): out.append("    " + s); self.ninst += 1
        pool = list(range(self.NP)); reg = {}
        take = lambda: self.PB + 4*pool.pop(0)
        lds = []; lastidx = {}
        own_regs = [self.acc(2*q), self.acc(2*q+1)]
        own_free = list(own_regs) if cfg["borrow"] and cfg["n_early"] == 0 else []
        st = dict(covered=0, nbar=0, k=0)
        self.free_bar = {}; self.x1_bar = None; self.x4_bar = None; self.bar_k = []
        pend_free = []; release = {}; lastuse = {}
        for key, uses in inst.items(): release.setdefault(uses[-1], []).append(key)
        for k, (c, sg, ph) in enumerate(seq): lastuse[c] = k
        sends = sorted([max(lastuse[2*d], lastuse[2*d+1]), d] for d in range(4) if d != q)
        tb, tb2, t3, chk = self.tb, self.tb2, self.t3, self.chk
        assert tb2 < 480 and t3 + 1 < chk
        Q = []; mf_inst = {}; tagidx = None; x4b = cfg["x4b"]
        def barrier():
            for sg in list(pend_free):
                if lastidx[("w", sg, 1)] < st["covered"]:
                    self.free_bar[sg] = st["nbar"]; pend_free.remove(sg)
            emit("s_barrier"); st["nbar"] += 1; self.bar_k.append(st["k"])
            if cfg["diag"]:
                for i, sg in enumerate((0, 1, 8, 15, 30, 45, 59)):
                    if bar_of[sg] == st["nbar"]-1: out.append(f"    s_memtime s[{76+2*i}:{77+2*i}]")
        def lds_read(text): emit(text); lds.append(st["k"]-1); return len(lds)-1
        def do_read(key, hf):
            if hf == 0:
                if own_free and inst[key][-1] < self.p3: reg[key] = own_free.pop(0)
                else: reg[key] = take()
            r = reg[key]
            if key[0] == "x":
                _, ds, u, _ = key
                while st["nbar"] <= (x4b if u >= 8 else 0): barrier()
                if ds >= 2 and self.x1_bar is None: self.x1_bar = st["nbar"] - 1
                if u >= 8 and self.x4_bar is None: self.x4_bar = st["nbar"] - 1
                off = (ds >> 1)*XL + (u >> 3)*2*XCH + (u & 7)*128 + (ds & 1)*64
                lastidx[key] = lds_read(f"ds_read_b128 v[{r}:{r+3}], v{self.vXA} offset:{off}")
            else:
                sg = key[1]
                if key[2] == 1:
                    while st["nbar"] <= bar_of[sg]: barrier()
                    if hf: pend_free.append(sg)
                off = (sg % RING)*4096 + 512*hf; va = self.vWA0
                if off >= 65536: off -= 65536; va = self.vWA1
                i = lds_read(f"ds_read_b64_tr_b16 v[{r+2*hf}:{r+2*hf+1}], v{va} offset:{off}")
                if hf: lastidx[key] = i
        def wait_for(idx):
            if idx < st["covered"]: return False
            j = idx
            while j+1 < len(lds) and lds[j+1] <= st["k"] - 1 - safe: j += 1
            n = len(lds) - 1 - j
            assert n <= 15, n
            emit(f"s_waitcnt lgkmcnt({n})"); st["covered"] = j+1
            return True
        def kind(t):
            if t.startswith("buffer_store"): return "S"
            if t.startswith(("v_exp", "v_rcp", "v_permlane")): return "t"
            if t.startswith("v_"): return "v"
            return "s"
        def ready():
            if not Q: return False
            t, after = Q[0]
            if after is None: return True
            if after[0] == "k": return st["k"] >= after[1]
            if after[0] == "m": return after[1] in mf_inst and self.ninst - mf_inst[after[1]] >= 8
            return after[1] < st["covered"]
        def missing():
            if Q and Q[0][1] and Q[0][1][0] == "m" and Q[0][1][1] in mf_inst: return 8 - (self.ninst - mf_inst[Q[0][1][1]])
            return 0
        def nop(n): emit(f"s_nop {n-1}"); self.ninst += n-1
        def fill(slots):
            n = min(missing(), slots)
            if n > 0: nop(n); slots -= n
            while ready():
                kd = kind(Q[0][0]); c = 2 if kd == "t" else 1
                if kd == "S" or c > slots: break
                emit(Q.pop(0)[0]); slots -= c
                if Q and Q[0][0] == "|": Q.pop(0); break
        def enq(items, after=None):
            for i, t in enumerate(items): Q.append((t, after if i == 0 else None))
        def act(cc, pk):
            t = T[cc]; a = self.acc(2*q+cc)
            if pk:
                o = [f"v_pk_fma_f32 v[{t+j}:{t+j+1}], v[{a+j}:{a+j+1}], s[36:37], v[{t+j}:{t+j+1}]" for j in (0, 2)]
                one = [f"v_pk_add_f32 v[{t+j}:{t+j+1}], v[{t+j}:{t+j+1}], 1.0 op_sel_hi:[1,0]" for j in (0, 2)]
            else:
                o = [f"v_fmac_f32 v{t+j}, s36, v{a+j}" for j in range(4)]
                one = [f"v_add_f32 v{t+j}, 1.0, v{t+j}" for j in range(4)]
            return o, [f"v_exp_f32 v{t+j}, v{t+j}" for j in range(4)], one, [f"v_rcp_f32 v{t+j}, v{t+j}" for j in range(4)]
        XB = RING*4096; L, TM = self.vLANE, self.vTMP
        enq([f"s_lshl_b32 s12, s10, 10", f"v_lshl_add_u32 v{self.vSEND}, v{L}, 4, s12",
             f"v_lshrrev_b32 v{self.vTAG}, 2, v{self.vSEND}", f"v_add_u32 v{self.vTAG}, {XB + 2*XL}, v{self.vTAG}",
             f"v_and_b32 v{self.vSENDB}, 31, v{L}", f"v_lshrrev_b32 v{TM}, 5, v{L}", f"v_lshl_add_u32 v{self.vSENDB}, v{self.vSENDB}, 1, v{TM}",
             "s_lshl_b32 s12, s10, 9", "s_bitset1_b32 s12, 16", f"v_lshl_add_u32 v{self.vSENDB}, v{self.vSENDB}, 3, s12",
             f"v_lshl_or_b32 v{self.vSENDB}, v{TM}, 31, v{self.vSENDB}",
             "s_lshl_b32 s40, s9, 17"] + ([f"s_addk_i32 s40, {q << 12}"] if q else []) +
            ["s_add_u32 s41, s40, s39", "s_add_u32 s42, s41, s39", "s_add_u32 s43, s42, s39",
             f"s_xor_b32 s44, s{40+q}, 0x2000", "s_mov_b32 s13, 0",
             f"s_mov_b32 s36, {f2u(-LOG2E if h else 2*LOG2E):#x}", "s_mov_b32 s37, s36",
             "s_add_u32 s24, s24, s8", "s_addc_u32 s25, s25, 0"], ("k", 14))
        started = set(); early0 = cfg["chainl"] >= 4
        for k in range(480):
            g = k-1; st["k"] = k
            c, sg, ph = seq[k]
            while sends and sends[0][0] < k:
                e, d = sends.pop(0); a0 = self.acc(2*d); a1 = a0 + 4
                assert tagidx is not None and tagidx < st["covered"]
                enq([f"v_cvt_pk_bf16_f32 v{a0}, v{a0}, v{a0+1}", f"v_cvt_pk_bf16_f32 v{a0+1}, v{a0+2}, v{a0+3}",
                     f"v_cvt_pk_bf16_f32 v{a0+2}, v{a1}, v{a1+1}", f"v_mov_b32 v{a0+3}, v{self.vTAG}",
                     f"buffer_store_dwordx4 v[{a0}:{a0+3}], v{self.vSEND}, s[28:31], s{40+d} offen sc1",
                     f"v_cvt_pk_bf16_f32 v{a1}, v{a1+2}, v{a1+3}", f"v_cvt_pk_bf16_f32 v{a1+2}, v{a1+2}, v{a1+3}",
                     f"v_mov_b32 v{a1+1}, v{self.vTAG}", f"v_mov_b32 v{a1+3}, v{self.vTAG}",
                     f"v_permlane32_swap_b32 v{a1}, v{a1+2}",
                     f"buffer_store_dwordx4 v[{a1}:{a1+3}], v{self.vSENDB}, s[28:31], s{40+d} offen sc1"], ("m", e))
                if not sends:
                    HW, HR, OUT = a0+1, a0+2, a0+3
                    enq([f"v_and_b32 v{self.vSENDB}, 0x7fffffff, v{self.vSENDB}"] + [x.strip() for x in final_addr(cfg, L, TM, a0, HW, HR, OUT, "s10", 1, h, q).strip().split("\n")])
            if k == chk:
                T = [take(), take()]
                chkP = ["s_waitcnt vmcnt(0)", f"v_cmp_ne_u32 vcc, v{P+3}, v{self.vTAG}", f"v_cmp_ne_u32 s[56:57], v{PB2+1}, v{self.vTAG}",
                        "s_or_b64 vcc, vcc, s[56:57]"]
                enq(chkP[:3] + ["|", chkP[3], f"s_cbranch_scc1 L_again{q}\nL_fin{q}:"])
                for cc in (0, 1):
                    for j in (0, 1):
                        t = T[cc] + 2*j; src = P + 2*cc + j if 2*cc + j < 3 else PB2
                        enq([f"v_lshlrev_b32 v{t}, 16, v{src}", f"v_and_b32 v{t+1}, 0xffff0000, v{src}"])
                    enq([f"v_mul_f32 v{T[cc]+j}, s36, v{T[cc]+j}" for j in range(4)])
                if early0: enq(sum(act(0, False), []), ("m", lastuse[2*q]))
            item = occ.get(g)
            if item and item[0][0] in "xw": backlog.append(item); item = None
            if k == 0:
                for _ in range(cfg["burst0"]):
                    cand = [e for e in backlog if not (e[0][0] == "x" and e[0][2] >= 8) and not (e[0][0] == "w" and e[0][1] > 0)]
                    if cand: backlog.remove(cand[0]); do_read(*cand[0])
            late = xi[k] not in lastidx or wi[k] not in lastidx
            waited = False
            if not late: waited = wait_for(max(lastidx[xi[k]], lastidx[wi[k]]))
            if not waited and Q and Q[0][1] and Q[0][1][0] == "l" and lds[Q[0][1][1]] <= g - safe: waited = wait_for(Q[0][1][1])
            if not waited and ready() and kind(Q[0][0]) == "s" and not item:
                emit(Q.pop(0)[0]); waited = True
            if not waited and missing() > 0 and not item: nop(1); waited = True
            cand = [e for e in backlog if not (e[0][0] == "x" and e[0][2] >= 8 and st["nbar"] <= x4b)
                    and not (k < cfg["w1at"] and e[0][0] == "w" and e[0][1] > 0)] if k else []
            if k in (tb, tb2) or (item and item[0][0] == "b" and item[0][1] == st["nbar"]):
                if k == tb: assert st["nbar"] == NB
                barrier()
                if not waited: fill(1)
            elif k in (t3, t3+1):
                if k == t3:
                    assert not sends and not Q
                    P = take(); PB2 = take()
                    ldP = [f"buffer_load_dwordx4 v[{P}:{P+3}], v{self.vSEND}, s[28:31], s44 offen sc1",
                           f"buffer_load_dwordx2 v[{PB2}:{PB2+1}], v{self.vSENDB}, s[28:31], s44 offen sc1"]
                emit(ldP[k-t3])
            else:
                slots = 2
                if ready() and kind(Q[0][0]) == "S" and k - st.get("lastS", -99) >= (cfg["sgap"] if st.get("nS", 0) & 1 else cfg["sgapb"]):
                    t = Q.pop(0)[0]; emit(t); slots = 4; st["lastS"] = k; st["nS"] = st.get("nS", 0) + 1
                    if cfg["borrow"] and st["nS"] <= 4: release.setdefault(k, []).append(("s", st["nS"])); reg[("s", st["nS"])] = int(re.match(r"\S+ v\[(\d+)", t).group(1))
                if cand:
                    backlog.remove(cand[0]); do_read(*cand[0]); slots -= 1
                    if len(cand) > 2: backlog.remove(cand[1]); do_read(*cand[1]); slots -= 1
                elif tagidx is None and st["nbar"] > bar_of[cfg["tagwr"]] + 1:
                    tagidx = lds_read(f"ds_read_b32 v{self.vTAG}, v{self.vTAG}"); slots -= 1
                fill(slots)
            if late:
                while xi[k] not in lastidx or wi[k] not in lastidx: do_read(*backlog.pop(0))
                wait_for(max(lastidx[xi[k]], lastidx[wi[k]]))
            a = self.acc(c); wr = reg[wi[k]]; xr = reg[xi[k]]
            cs = f"v[{a}:{a+3}]" if c in started else "0"
            started.add(c)
            emit(f"v_mfma_f32_16x16x32_bf16 v[{a}:{a+3}], v[{wr}:{wr+3}], v[{xr}:{xr+3}], {cs}")
            mf_inst[k] = self.ninst
            for key in release.get(k, []):
                if reg[key] in own_regs: own_free.append(reg[key])
                else: pool.append((reg[key] - self.PB)//4)
        assert st["nbar"] == NB + 2 and not backlog
        self.nlds = len(lds); self.left = len(Q)
        st["k"] = 490
        def drain():
            while Q:
                if missing() > 0: nop(missing())
                t, after = Q.pop(0)
                if t != "|": emit(t)
        if cfg["diag"]: emit("s_memtime s[70:71]")
        wr = lambda cc: f"ds_write_b128 v{HW}, v[{T[cc]}:{T[cc]+3}] offset:{cc*HCS}"
        A1 = act(1, True)
        if early0:
            drain(); enq(A1[0], ("m", lastuse[2*q+1])); enq([wr(0)] + A1[1] + A1[2] + A1[3])
        else:
            A0 = act(0, True)
            enq(A0[0], ("m", lastuse[2*q])); enq(A0[1]); enq(A1[0], ("m", lastuse[2*q+1]))
            enq(A0[2] + A0[3] + A1[1] + [wr(0)] + A1[2] + A1[3])
        enq(["s_nop 0", wr(1)]); drain()
        for x in final_stage(cfg, HR, OUT, take(), take()).strip().split("\n"): emit(x.strip())
        self.again = f"""L_again{q}:
    s_add_u32 s13, s13, 1
    s_cmp_ge_u32 s13, {cfg["spin"]}
    s_cbranch_scc1 L_fin{q}
""" + "".join(f"    {x}\n" for x in ldP + chkP) + f"""    s_cbranch_scc1 L_again{q}
    s_branch L_fin{q}
"""
        return "\n".join(out) + "\n"

DIAG_ST = """    s_lshl_b32 s12, s2, 3
    s_add_u32 s12, s12, s3
    s_lshl_b32 s12, s12, 8
    s_add_u32 s12, s12, 0x800000
    v_mbcnt_lo_u32_b32 v25, -1, 0
    v_mbcnt_hi_u32_b32 v25, -1, v25
    v_lshlrev_b32 v25, 2, v25
    buffer_store_dword v24, v25, s[28:31], s12 offen
"""

def gen(**kw):
    cfg = dict(DEF); cfg.update(kw)
    RING = cfg["RING"]; diag = cfg["diag"]
    comps = [Compute(q, cfg) for q in range(4)]
    bodies = [c.build() for c in comps]
    free_bar = {sg: max(c.free_bar[sg] for c in comps) for sg in range(60 - RING)}
    x1_bar = min(c.x1_bar for c in comps); x4_bar = min(c.x4_bar for c in comps)
    XBASE = RING*4096; TBASE = XBASE + 2*XL; lds = TBASE + 1024
    info = [f"generated by gen8.py  cfg={cfg}",
            f"re-reads {[len(c.splits) for c in comps]} lds reads {[c.nlds for c in comps]} left {[c.left for c in comps]} x1_bar={x1_bar} x4_bar={x4_bar}"]
    s = """    s_cmp_ge_u32 s2, 256
    s_cbranch_scc1 L_end
"""
    if diag: s += "    s_memrealtime s[94:95]\n    s_memtime s[96:97]\n"
    s += f"""    s_load_dwordx2 s[16:17], s[0:1], 0      ; x
    s_load_dwordx2 s[20:21], s[0:1], 8      ; w
    s_load_dwordx2 s[28:29], s[0:1], 32     ; ws
    s_load_dwordx2 s[24:25], s[0:1], 16     ; out
    s_load_dwordx2 s[32:33], s[0:1], 24     ; debug
    v_lshrrev_b32 v1, 6, v0
    v_and_b32 v0, 63, v0                    ; lane
    v_readfirstlane_b32 s3, v1              ; wave
    s_and_b32 s4, s2, 3
    s_lshr_b32 s9, s2, 2                    ; group
"""
    if cfg["mapping"] == "a":
        s += "    s_and_b32 s5, s9, 1                     ; batch\n    s_bfe_u32 s6, s2, 0x20003\n"
    else:
        s += "    s_and_b32 s6, s9, 3\n    s_bfe_u32 s5, s2, 0x10004               ; batch\n"
    s += f"""    s_lshr_b32 s7, s2, 5
    s_mov_b32 s18, 512000
    s_mov_b32 s19, 0x20000
    s_mul_i32 s8, s5, s18
    s_mov_b32 s22, 3932160
    s_mov_b32 s23, s19
    s_mov_b32 s26, s18
    s_mov_b32 s27, s19
    s_mov_b32 s30, {(10<<20) if diag else (8<<20)}
    s_mov_b32 s31, s19
    s_movk_i32 s39, 0x4000
    s_cmp_lt_u32 s3, 4
    s_cbranch_scc1 L_loader
    s_getpc_b64 s[46:47]
L_pc:
    s_and_b32 s10, s3, 3                    ; wave & 3
    s_lshr_b32 s12, s2, 3
    s_lshl2_add_u32 s12, s12, s10
    s_lshl_b32 s12, s12, 6
    s_and_b32 s13, s12, 0xfc0
    s_load_dword s54, s[46:47], s13
    s_lshl_b32 s13, s4, 13
    s_add_u32 s12, s12, s13
    s_add_u32 s12, s12, L_role0-L_pc
    s_load_dword s55, s[46:47], s12
    v_and_b32 v8, 15, v0
    v_lshrrev_b32 v9, 4, v0                 ; k chunk
    v_mul_u32_u24 v3, {XCH}, v8
    v_lshl_add_u32 v3, v9, 4, v3
    v_add_u32 v3, {XBASE}, v3
    v_lshrrev_b32 v10, 2, v8
    v_lshl_add_u32 v10, v9, 3, v10          ; k row
    v_lshrrev_b32 v11, 3, v8
    v_and_b32 v12, 1, v9
    v_lshl_or_b32 v11, v12, 1, v11          ; swizzle
    v_xor_b32 v11, s10, v11
    v_lshl_add_u32 v10, v10, 2, v11
    v_and_b32 v12, 3, v8
    v_lshl_add_u32 v1, v10, 2, v12
    v_lshlrev_b32 v1, 3, v1
    v_add_u32 v2, 0x10000, v1
    v_mov_b32 v5, v0
    s_mov_b64 exec, 0
    s_cmp_eq_u32 s10, 0
    s_cbranch_scc1 L_padL0
L_disp:
    s_cmp_eq_u32 s4, 1
    s_cbranch_scc1 L_role1
    s_cmp_eq_u32 s4, 2
    s_cbranch_scc1 L_role2
    s_cmp_eq_u32 s4, 3
    s_cbranch_scc1 L_role3
    s_branch L_role0
L_loader:
    s_lshr_b32 s11, s4, 1                   ; d half
    s_lshr_b32 s13, s3, 1
    s_lshl3_add_u32 s12, s7, s13
    s_and_b32 s13, s3, 1
    s_lshl4_add_u32 s12, s12, s13
    s_sub_u32 s12, s12, 28
    s_lshl1_add_u32 s12, s12, s11
    s_lshl_b32 s12, s12, 8
    v_lshrrev_b32 v2, 3, v0
    v_lshlrev_b32 v2, 10, v2
    v_and_b32 v3, 7, v0
    v_lshlrev_b32 v3, 4, v3
    v_add3_u32 v8, v2, v3, s12
    v_add_u32 v9, s39, v8
    v_add_u32 v10, s39, v9
    v_add_u32 v11, s39, v10
    v_add_u32 v12, s39, v11
    s_lshl_b32 s13, s13, 6
    v_and_b32 v4, 16, v0
    v_lshlrev_b32 v4, 1, v4
    v_or_b32 v4, s13, v4
    v_xor_b32 v3, v3, v4
    s_and_b32 s14, s4, 1
    s_lshl2_add_u32 s14, s14, s6            ; h*4 + ct
    s_lshl_b32 s15, s11, 10
    s_add_u32 s15, s15, s14
    s_lshl_b32 s15, s15, 7
    s_lshl_b32 s37, s3, 10
    s_lshl3_add_u32 s12, s37, s15
    v_add3_u32 v7, v2, v3, s12              ; w offset
    s_mul_i32 s36, s3, {XCH}
    s_add_u32 s36, s36, {XBASE}
    s_movk_i32 s51, 0x1000
    s_mov_b32 s52, 0x40000
    s_mov_b32 m0, s36
"""
    order = []; nw = [0]
    def add(tok):
        if tok == "w":
            order.append(("w", nw[0])); nw[0] += 1
            for t in cfg["ins"].get(nw[0]-1, []): add(t)
        elif tok[0] == "x": order.append(("x", 0, int(tok[1])))
        elif tok[0] == "y": order.append(("x", 1, int(tok[1])))
        elif tok == "PX": order.append(("px",))
        elif tok == "T": order.extend([("t", 0), ("t", 1)])
        elif tok[0] == "P": order.append(("p",) + tuple(int(v) for v in tok.split(":")[1:]))
        else: raise ValueError(tok)
    for t in cfg["pre"]: add(t)
    K0 = len(order)
    while nw[0] < 60: add("w")
    areg = {op: 56 + i for i, op in enumerate(o for o in order if o[0] in ("p", "px"))}
    pst = dict(done=False)
    def addr_asm(op):
        r = areg[op]
        if op[0] == "p":
            _, a, b = op
            t = ""
            if not pst["done"]:
                pst["done"] = True
                if cfg["mapping"] == "a":
                    t = """    s_lshl3_add_u32 s60, s5, s7
    s_and_b32 s13, s3, 1
    s_lshl1_add_u32 s60, s60, s13
    s_lshl_b32 s60, s60, 10
    s_add_u32 s60, s60, s15
"""
                else:
                    t = """    s_lshr_b32 s60, s2, 3
    s_lshl_b32 s60, s60, 10
    s_add_u32 s60, s60, s15
    s_lshl_b32 s13, s13, 2
    s_xor_b32 s60, s60, s13
"""
                t += "    s_lshr_b32 s61, s3, 1\n    v_bfrev_b32 v19, 1\n"
            return t + f"""    s_add_u32 s12, s61, {a}
    v_lshl_add_u32 v20, v0, 1, s12          ; stage
    v_mul_u32_u24 v21, 4370, v20
    v_lshrrev_b32 v21, 16, v21              ; d step
    v_mul_u32_u24 v21, {15*262144-32768}, v21
    v_cmp_gt_u32 vcc, {b}, v20
    v_lshl_add_u32 v20, v20, 18, s60
    v_sub_u32 v21, v20, v21
    v_cndmask_b32 v{r}, v19, v21, vcc
"""
        return f"""    s_lshl2_add_u32 s12, s14, s3
    s_lshl_b32 s12, s12, 11
    s_lshl_b32 s13, s7, 8
    s_add_u32 s13, s13, s11
    s_lshl_b32 s13, s13, 8
    s_add_u32 s12, s12, s13
    s_addk_i32 s12, 128
    v_cmp_gt_u32 vcc, 4, v0
    v_lshl_add_u32 v21, v0, 9, s12
    v_bfrev_b32 v20, 1
    v_cndmask_b32 v{r}, v20, v21, vcc
"""
    for op in order[:K0]:
        if op in areg: s += addr_asm(op)
    s += """    s_waitcnt lgkmcnt(0)
    s_add_u32 s16, s16, s8
    s_addc_u32 s17, s17, 0
"""
    if diag: s += "    s_memtime s[98:99]\n"
    ms = dict(m0=("x", 0))
    def setm0(kind, off):
        prev = ms["m0"]; ms["m0"] = (kind, off)
        if prev == (kind, off): return ""
        if prev[0] == kind and off - prev[1] == 4096: return "    s_add_u32 m0, m0, s51\n"
        if prev[0] == kind and abs(off - prev[1]) < 32768: return f"    s_addk_i32 m0, {off - prev[1]}\n"
        return f"    s_add_u32 m0, {'s36' if kind == 'x' else 's37'}, {off}\n"
    def op_asm(op):
        if op[0] == "x":
            _, L, m = op
            t = setm0("x", L*(XL-128) + 4*m*XCH)
            return t + ("    s_nop 0\n" if t else "") + f"    buffer_load_dwordx4 v{8+m}, s[16:19], 0 offen offset:{128*L} lds\n"
        if op[0] == "w":
            sg = op[1]; ds, i = divmod(sg, 15)
            so = "    s_add_u32 s38, s38, s52\n" if i else f"    s_mov_b32 s38, {ds*32768}\n"
            return setm0("w", (sg % RING)*4096) + so + "    buffer_load_dwordx4 v7, s[20:23], s38 offen lds\n"
        if op[0] == "p": return f"    buffer_load_dword v23, v{areg[op]}, s[20:23], 0 offen\n"
        if op[0] == "px": return f"    buffer_load_dword v23, v{areg[op]}, s[16:19], 0 offen\n"
        return ["    buffer_load_dword v23, off, s[28:31], s62\n", "    buffer_load_dword v23, off, s[24:27], 0\n"][op[1]]
    woff = lambda sg: (sg % 15)*262144 + (sg//15)*32768
    SL = []
    if cfg["sx"]:
        SL += [f"    s_buffer_load_dwordx2 s[54:55], s[16:19], s53 offset:{512*i + 188}\n" for i in range(4)]
    prev = (0, 0)
    for sg in range(cfg["sfrom"], 60, 2):
        cur = (woff(sg), woff(min(sg+1, 59))); dA, dB = cur[0]-prev[0], cur[1]-prev[1]; prev = cur
        t = f"    s_add_u32 s60, s60, {'s63' if dA == 524288 else hex(dA & 0xffffffff)}\n"
        if dA != dB: t += f"    s_mul_i32 s12, s61, {hex((dB-dA) & 0xffffffff)}\n    s_add_u32 s60, s60, s12\n"
        t += f"    s_xor_b32 s12, s60, {((len(SL)*cfg['srow']) & 31) << 10}\n"
        SL.append(t + "    s_buffer_load_dwordx2 s[54:55], s[20:23], s12 offset:60\n")
    if cfg["sx"] and cfg["sxpos"]: SL = SL[4:4+cfg["sxpos"]] + SL[:4] + SL[4+cfg["sxpos"]:]
    later = f"""; while the first loads are under way: the group's first wave reads the tag an earlier launch may have left;
; everybody touches the hand-off and output pages once (address translation)
    s_lshl3_add_u32 s62, s9, s4
    s_lshl2_add_u32 s62, s62, s4
    s_lshl_b32 s62, s62, 12                 ; slot (dst=me, src=me): never written
    s_load_dwordx2 s[54:55], s[28:29], s62 offset:60
    s_load_dwordx2 s[54:55], s[24:25], 60
    s_lshl_b32 s58, s9, 2
    s_or_b32 s59, s3, s4
    s_cbranch_scc1 L_np0
    s_load_dword s56, s[28:29], s62 offset:0x400c glc
L_np0:
    s_lshl3_add_u32 s53, s7, s14
    s_lshl2_add_u32 s53, s53, s3
    s_lshl3_add_u32 s53, s53, s11
    s_lshl_b32 s53, s53, 8
    s_lshl_b32 s63, s52, 1
""" + "".join(addr_asm(op) for op in order[K0:] if op in areg) + """    s_lshl_b32 s12, s61, 14
    s_xor_b32 s60, s60, s12
"""
    tagprep = f"""    v_and_b32 v18, 31, v0
    v_mul_u32_u24 v15, {TAGK:#x}, v18
    v_lshl_add_u32 v13, v0, 4, s37
    v_lshrrev_b32 v16, 2, v13
    v_add_u32 v16, {TBASE}, v16
"""
    pollprep = f"""    v_lshrrev_b32 v17, 5, v0
    v_lshl_add_u32 v17, v18, 1, v17
    s_lshr_b32 s12, s37, 1
    s_bitset1_b32 s12, 16
    v_lshl_add_u32 v17, v17, 3, s12         ; 64K + (lane&31)*16 + (lane>>5)*8 + wave*512
    s_xor_b32 s48, s62, s51                 ; slots (dst=me, src=partner of the other half)
    s_xor_b32 s50, s62, 0x3000
    s_bitcmp1_b32 s4, 0                     ; own half is g -> other is f
    s_mov_b32 s40, {f2u(-LOG2E):#x}
    s_cselect_b32 s40, {f2u(2*LOG2E):#x}, s40
    s_mov_b32 s41, 0xffff0000
    s_add_u32 s24, s24, s8
    s_addc_u32 s25, s25, 0
""" + final_addr(cfg, 0, 20, 21, 14, 19, 22, "s3", 0, None, None)
    issued = []; oi = 0
    grp = groups(cfg); NB = len(grp); bar_of = comps[0].bar_of
    stamps = {}
    tbar = [16*min(c.bar_k[n] for c in comps) for n in range(NB)]
    can = lambda op, nb: not (op[0] == "w" and op[1] >= RING and nb <= free_bar[op[1]-RING])
    cost = lambda op: cfg["opc"] if op[0] in ("w", "x") else (3*(op[2]-op[1]) if op[0] == "p" else 30)
    tpipe = 0; tta = 0; shift = 0; done_t = {}; sched = []
    for n in range(NB):
        needs = [("w", grp[n][-1])] + [("x", 0, m) for m in range(4)]
        if n >= x4_bar: needs.append(("x", 0, 4))
        if n >= x1_bar: needs += [("x", 1, m) for m in range(5)]
        cnt = 0; now = tbar[n-1] + shift if n else 0
        while oi < len(order) and can(order[oi], n):
            op = order[oi]
            forced = any(x not in issued for x in needs)
            ta = max(tta, now + 20) + cost(op)
            if n > 0 and not forced:
                wait = max(done_t[x] for x in needs)
                nxt = max(tbar[n] + shift, wait)
                if ta > nxt + cfg["slack"] or sum(d > ta for d in done_t.values()) >= (cfg["cap2"] if wait - now > 400 else cfg["cap"]): break
            if n == 0 and not forced and cnt >= K0: break
            s += op_asm(op); issued.append(op); oi += 1; cnt += 1
            if n == 0:
                if not forced: tpipe += cost(op) + (cfg["ev0"] if op[0] == "p" else 0)
            else:
                tta = ta
                tpipe = max(tpipe + cost(op), ta + (cfg["ev"] if op[0] == "p" else cfg["lat"]))
            done_t[op] = tpipe
        if n == 0:
            sz0 = tsize(s)
            if diag: s += "    s_memtime s[88:89]\n"
            s += later
        if n == 1:
            s += f"""    s_cmp_lg_u32 s59, 0
    s_cbranch_scc1 L_np1
    s_waitcnt lgkmcnt(0)
    s_add_u32 s56, s56, 2.0
    s_bitset1_b32 s56, 0
    s_atomic_swap s56, s[32:33], s58
L_np1:
"""
        for _ in range(cfg["ssch"].get(n, 0) if cfg["ssch"] else cfg["s0"] if n == 0 else cfg["s1"] if n == 1 else int(n >= cfg["s2"])):
            if SL: s += SL.pop(0)
        if n == 1: s += tagprep
        if n == bar_of[cfg["tagld"]]: s += "    s_load_dword s57, s[32:33], s58\n    s_mov_b32 s13, 0\n"
        if n == bar_of[cfg["tagwr"]]:
            s += f"""    s_waitcnt lgkmcnt(0)
    s_cmp_eq_u32 s57, 0
    s_cbranch_scc1 L_tag
L_tagok:
    v_add_u32 v15, s57, v15
    ds_write_b32 v16, v15
"""
            if diag: s += "    s_mov_b32 s92, s13\n"
        if n == bar_of[cfg["tagwr"]] + 1: s += "    s_waitcnt lgkmcnt(0)\n"
        need = max(issued.index(x) for x in needs)
        shift = max(shift, done_t[issued[need]] - tbar[n])
        vm = len(issued) - 1 - need
        sched.append((cnt, vm, shift))
        assert vm <= 63
        s += f"    s_waitcnt vmcnt({vm})\n"
        s += "    s_barrier\n"
        if n == 0: sz0 = tsize(s)
        if diag:
            for i in stamps.get(n, []): s += f"    s_memtime s[{64+2*i}:{65+2*i}]\n"
    assert oi == len(order) and not SL
    info.append(f"loader (issued, vmcnt, modelled stall) per barrier: {sched}")
    polls = """    buffer_load_dwordx4 v[24:27], v13, s[28:31], s48 offen sc1
    buffer_load_dwordx2 v[32:33], v17, s[28:31], s48 offen sc1
    buffer_load_dwordx4 v[28:31], v13, s[28:31], s50 offen sc1
    buffer_load_dwordx2 v[34:35], v17, s[28:31], s50 offen sc1
"""
    s += pollprep + "    s_mov_b32 s13, 0\n    s_barrier\n"
    if diag: s += "    s_memtime s[80:81]\n"
    s += polls + f"""    s_barrier
    s_setprio {cfg["lprio"]}
L_poll:
    s_waitcnt vmcnt(0)
    v_cmp_ne_u32 vcc, v27, v15
    v_cmp_ne_u32 s[44:45], v33, v15
    v_cmp_ne_u32 s[46:47], v31, v15
    v_cmp_ne_u32 s[54:55], v35, v15
    s_or_b64 vcc, vcc, s[44:45]
    s_or_b64 s[46:47], s[46:47], s[54:55]
    s_or_b64 vcc, vcc, s[46:47]
    s_cbranch_scc1 L_repoll
L_got:
"""
    if diag: s += "    s_memtime s[82:83]\n    s_add_u32 s93, s13, 1\n"
    for cc in (0, 1):
        R = range(4*cc, 4*cc+4)
        for j in (2*cc, 2*cc+1):
            ra, rb = (24+j, 28+j) if j < 3 else (32, 34)
            s += f"    v_lshlrev_b32 v{40+2*j}, 16, v{ra}\n    v_and_b32 v{41+2*j}, s41, v{ra}\n"
            s += f"    v_lshlrev_b32 v{48+2*j}, 16, v{rb}\n    v_and_b32 v{49+2*j}, s41, v{rb}\n"
        for j in R: s += f"    v_add_f32 v{40+j}, v{40+j}, v{48+j}\n"
        for j in R: s += f"    v_mul_f32 v{40+j}, s40, v{40+j}\n"
        for j in R: s += f"    v_exp_f32 v{40+j}, v{40+j}\n"
        for j in R: s += f"    v_add_f32 v{40+j}, 1.0, v{40+j}\n"
        for j in R: s += f"    v_rcp_f32 v{40+j}, v{40+j}\n"
        s += f"    s_nop 0\n    ds_write_b128 v14, v[{40+4*cc}:{43+4*cc}] offset:{HCS*cc}\n"
    fs = final_stage(cfg, 19, 22, 24, 28)
    if diag:
        fs = fs.replace("    s_barrier\n", "    s_memtime s[86:87]\n    s_barrier\n    s_memtime s[84:85]\n")
        fs += "    s_waitcnt vmcnt(0)\n    s_memrealtime s[90:91]\n    s_branch L_diagL\n"
        diagL = "L_diagL:\n    s_waitcnt lgkmcnt(0)\n    v_mov_b32 v24, 0\n"
        vals = ["s94", "s98"] + [f"s{64+2*i}" for i in range(11)] + ["s92", "s93", "s86", "s88", "s88", "s90"]
        for i, r in enumerate(vals):
            if 1 <= i <= 12 or i in (15, 16): diagL += f"    s_sub_u32 {r}, {r}, s96\n"
            diagL += f"    v_writelane_b32 v24, {r}, {i}\n"
        diagL += DIAG_ST + "    s_endpgm\n"
    s += fs
    s += "L_end:\n    s_endpgm\n"
    slow = f"""L_repoll:
    s_add_u32 s13, s13, 1
    s_cmp_ge_u32 s13, {cfg["spin"]}
    s_cbranch_scc1 L_got
""" + polls + "    s_branch L_poll\n"
    slow2 = f"""L_tag:
    s_add_u32 s13, s13, 1
    s_cmp_ge_u32 s13, {cfg["spin"]}
    s_cbranch_scc1 L_tagok
    s_load_dword s57, s[32:33], s58 glc
    s_waitcnt lgkmcnt(0)
    s_cmp_eq_u32 s57, 0
    s_cbranch_scc1 L_tag
    s_branch L_tagok
"""
    s += slow
    npl = (tsize(s) - 64)//1024
    page0, end0 = add_pads(s, [f"L_padL{k}" for k in range(npl)], [f"L_padL{k+1}" for k in range(npl-1)] + ["L_disp"], lambda L, i: True)
    assert end0 <= 4096, end0
    sizes = [sz0, end0]; roles = ""
    for q in range(4):
        s = f"""    s_cmp_eq_u32 s10, 1
    s_cbranch_scc1 L_pad{q}_0
    s_cmp_eq_u32 s10, 2
    s_cbranch_scc1 L_pad{q}_1
    s_cmp_eq_u32 s10, 3
    s_cbranch_scc1 L_pad{q}_2
    s_branch NPD0
L_main{q}:
    s_mov_b64 exec, -1
    s_setprio {cfg["prio"]}
""" + ("    s_memtime s[72:73]\n    s_waitcnt lgkmcnt(0)\n    s_memtime s[74:75]\n" if diag else "") + "    s_waitcnt lgkmcnt(0)\n" + bodies[q]
        if diag: s += "    s_memtime s[64:65]\n    s_waitcnt vmcnt(0)\n    s_memtime s[66:67]\n    s_memrealtime s[68:69]\n    s_branch L_diagC\n"
        s += "    s_endpgm\n" + comps[q].again + (slow2 if q == 3 else "")
        npd = 7 if tsize(s) + 24 >= 7168 + 64 else 6
        if cfg["touch"] < 3: npd = 3*(cfg["touch"] - 1)
        if npd == 0: s = s[s.index("    s_branch NPD0"):]
        s = s.replace("NPD0", f"L_pad{q}_6" if npd == 7 else f"L_main{q}")
        s, end = add_pads(s, [f"L_pad{q}_{k}" for k in range(npd)], [f"L_pad{q}_{k+3}" if k < 3 and k+3 < npd else f"L_main{q}" for k in range(npd)],
                          lambda L, i: L[i].strip().startswith("v_mfma") and L[i-1].strip().startswith("v_mfma"))
        assert end <= 8192, end
        sizes.append(end)
        roles += f".p2align 12\nL_role{q}:\n" + s
    if diag:
        roles += ".p2align 12\nL_diagC:\n    s_waitcnt lgkmcnt(0)\n    v_mov_b32 v24, 0\n"
        for i, r in enumerate(["s94", "s64", "s66", "s68", "s70", "s13", "s72", "s74"] + [f"s{76+2*j}" for j in range(7)]):
            if i in (1, 2, 4) or i > 5: roles += f"    s_sub_u32 {r}, {r}, s96\n"
            roles += f"    v_writelane_b32 v24, {r}, {i}\n"
        roles += DIAG_ST + "    s_endpgm\n" + diagL
    info.append(f"code bytes: {sizes}")
    s = "".join(f"; {l}\n" for l in info) + f"""; @launch grid=(256,1,1) block=(512,1,1) lds={lds}
.amdgcn_target "amdgcn-amd-amdhsa--gfx950"
.text
.p2align 12
{".fill 832, 4, 0xbf800000" if end0 > 3328 else ""}
.globl {NAME}
.p2align 8
.type {NAME},@function
{NAME}:
""" + page0 + roles + f""".p2align 12
.section .rodata,"a"
.p2align 6
.amdhsa_kernel {NAME}
  .amdhsa_next_free_vgpr 256
  .amdhsa_next_free_sgpr 102
  .amdhsa_accum_offset 256
  .amdhsa_group_segment_fixed_size 0
  .amdhsa_kernarg_size 40
  .amdhsa_user_sgpr_count 2
  .amdhsa_user_sgpr_kernarg_segment_ptr 1
  .amdhsa_system_sgpr_workgroup_id_x 1
.end_amdhsa_kernel
"""
    if diag == 2: s = s.replace('s_memtime', 's_memrealtime')
    return s, lds

if __name__ == "__main__":
    kw = {}
    for a in sys.argv[2:]:
        k, v = a.split("=", 1)
        kw[k] = eval(v)
    s, lds = gen(**kw)
    open(sys.argv[1], "w").write(s)
    print("\n".join(s.split("\n")[1:4]))
```

```python
import sys, re, struct

NAME = "standalone__autoregressive_conv_wavernn__speech_kernel"
LOG2E = 1.4426950408889634
def f2u(x): return struct.unpack("<I", struct.pack("<f", x))[0]

DEF = dict(RING=29, n_early=0, n_late=16, lead=8, lead2=8, safe2=5, lead0=5, nlead0=0, safe=5, wcap=7, x4b=1, w1at=2, burst0=8,
           mapping="b", diag=0, single=4, grp=2, snake=1, chain2=2, chainl=1,
           pre=["x0", "x1", "x2", "x3", "w", "P:1:29", "x4", "w", "w", "w", "w"],
           ins={22: ["y0"], 23: ["y1"], 24: ["y2"], 25: ["y3"], 26: ["y4"], 59: ["T"]},
           sfrom=29, sx=1, s0=0, s1=4, s2=5, srow=1, kst=None, ssch=None, stamps=0, touch=3, sgap=0, sgapb=0, sxpos=0, borrow=1,
           opc=70, cap=9, cap2=12, lat=300, ev=900, ev0=200, slack=80, quota={1: 3, 2: 1, 3: 2, 4: 2}, wsoff=0, GS=73856, SS=6144, BO=4096, tb64=0,
           t12=68, t3=60, chk_back=6, prio=1, lprio=0,
           tagk=62, tagc=10, spin=200000, outflags="")
TAGK = 0x9e3779
XCH = 1056
XL = 20*XCH
BIG = 10**9
HRS = 272
HCS = 16*HRS
HREG = 2*HCS

def xbase(cfg): return cfg['RING']*4096 + 1024
def hbase(cfg): return (cfg['RING'] - 4)*4096
def groups(cfg):
    g = [[sg] for sg in range(cfg["single"])]
    sg = cfg["single"]
    while sg < 60:
        g.append(list(range(sg, min(60, sg + cfg["grp"])))); sg += cfg["grp"]
    return g

_INL = {"0.5","-0.5","1.0","-1.0","2.0","-2.0","4.0","-4.0"}
_V8 = ("v_mfma","v_add3","v_lshl_add","v_lshl_or","v_max3","v_fma_","v_cvt_pk","v_writelane","v_readlane","v_mul_lo",
       "v_and_or","v_bfe","v_perm_","v_mad","v_add_lshl","v_xad","v_mbcnt","v_or3","v_pk_")
def isize(line):
    t = line.split(";")[0].strip()
    if not t or t.endswith(":") or t.startswith("."): return 0
    mn = t.split()[0]
    if mn.startswith("v_cmp") and not t.split()[1].startswith("vcc"): return 8
    if mn.startswith(("ds_","buffer_","global_","s_load","s_buffer_load","s_memtime","s_memrealtime","s_atomic")) or mn.startswith(_V8): return 8
    if mn.startswith(("s_waitcnt","s_barrier","s_nop","s_branch","s_cbranch","s_setprio","s_endpgm","s_movk","s_addk")): return 4
    for o in t[len(mn):].split(","):
        o = o.strip()
        if o in _INL or re.match(r"^(s|v)(\d|\[)|^(vcc|exec|m0|scc)", o): continue
        try:
            if -16 <= int(o, 0) <= 64: continue
        except ValueError: pass
        return 8
    return 4
def tsize(text): return sum(isize(l) for l in text.split("\n"))
def add_pads(text, names, targets, prefer):
    lines = text.split("\n"); out = []; off = 0; k = 0
    for i, l in enumerate(lines):
        if k < len(names) and off >= 1024*(k+1) and isize(l):
            if prefer(lines, i) or off + isize(l) >= 1024*(k+1) + 60:
                out.append(f"{names[k]}:\n    s_cbranch_execz {targets[k]}"); off += 4; k += 1
        out.append(l); off += isize(l)
    assert k == len(names)
    return "\n".join(out), off

def mfma_seq(q, cfg):
    ne, nl = cfg["n_early"], cfg["n_late"]
    own = (2*q, 2*q+1); t = q ^ 2; third = (2*t, 2*t+1)
    act = lambda sg: [c for c in range(8) if not (c in own and sg >= ne) and not (c in third and sg >= 60-nl)]
    seq = []
    for g in groups(cfg):
        if cfg["snake"]:
            for c in range(8):
                seq += [(c, sg, 1) for sg in g if c in act(sg)]
        else:
            for sg in g: seq += [(c, sg, 1) for c in act(sg)]
    def pair(cs, lo, ph):
        sg = lo
        while sg < 60:
            L = cfg["chainl"] if (ph == 3 and 60 - sg <= cfg["chainl"]) else cfg["chain2"]
            hi = min(sg + L, (sg//15 + 1)*15)
            if ph == 3 and sg < 60 - cfg["chainl"]: hi = min(hi, 60 - cfg["chainl"])
            for c in cs: seq.extend((c, s, ph) for s in range(sg, hi))
            sg = hi
    pair(third, 60-nl, 2); pair(own, ne, 3)
    assert len(seq) == 480 and len(set((c, s) for c, s, _ in seq)) == 480
    return seq

def final_addr(cfg, L, t0, t1, HW, HR, OUT, sw, cset, h, q):
    XB = hbase(cfg)
    o = f"""    v_and_b32 v{t0}, 15, v{L}
    v_lshrrev_b32 v{t1}, 4, v{L}
    v_mul_u32_u24 v{HW}, {HRS}, v{t0}
    v_lshl_add_u32 v{HW}, v{t1}, 4, v{HW}
    s_lshl_b32 s12, {sw}, 6
"""
    if h is None: o += f"    s_bitcmp0_b32 s4, 0\n    s_cselect_b32 s42, {HREG}, 0\n    s_add_u32 s12, s12, s42\n"
    o += f"""    s_add_u32 s12, s12, {XB + (h or 0)*HREG}
    v_add_u32 v{HW}, s12, v{HW}
    v_mul_u32_u24 v{HR}, {HRS}, v{t1}
    v_lshl_add_u32 v{HR}, v{t0}, 4, v{HR}
    s_mul_i32 s12, {sw}, {4*HRS}
    s_add_u32 s12, s12, {XB + cset*HCS}
    v_add_u32 v{HR}, s12, v{HR}
    v_lshrrev_b32 v{OUT}, 1, v{t1}
    v_and_b32 v{t1}, 1, v{t1}
    v_lshl_add_u32 v{OUT}, v{OUT}, 4, v{t1}
    v_lshlrev_b32 v{t0}, 3, v{t0}
    v_lshl_add_u32 v{OUT}, v{OUT}, 9, v{t0}
    s_lshl2_add_u32 s12, s7, {sw}
    s_lshl3_add_u32 s12, s12, s4
    s_lshl4_add_u32 s12, s12, s6
    s_lshl_b32 s12, s12, 7
"""
    if cset: o += "    s_addk_i32 s12, 1024\n"
    return o + f"    v_add_u32 v{OUT}, s12, v{OUT}\n"
def final_stage(cfg, HR, OUT, F, G):
    return f"""    s_waitcnt lgkmcnt(0)
    s_barrier
    ds_read_b128 v[{F}:{F+3}], v{HR}
    ds_read_b128 v[{G}:{G+3}], v{HR} offset:{HREG}
    s_waitcnt lgkmcnt(0)
    v_pk_mul_f32 v[{F}:{F+1}], v[{F}:{F+1}], v[{G}:{G+1}]
    v_pk_mul_f32 v[{F+2}:{F+3}], v[{F+2}:{F+3}], v[{G+2}:{G+3}]
    v_pk_fma_f32 v[{F}:{F+1}], v[{F}:{F+1}], -2.0, v[{G}:{G+1}] op_sel_hi:[1,0,1]
    v_pk_fma_f32 v[{F+2}:{F+3}], v[{F+2}:{F+3}], -2.0, v[{G+2}:{G+3}] op_sel_hi:[1,0,1]
    v_cvt_pk_bf16_f32 v{F}, v{F}, v{F+1}
    v_cvt_pk_bf16_f32 v{F+1}, v{F+2}, v{F+3}
    buffer_store_dwordx2 v[{F}:{F+1}], v{OUT}, s[24:27], 0 offen {cfg['outflags']}
"""

class Compute:
    vTAG, vWA0, vWA1, vXA, vSEND, vLANE, vSENDB, vTMP = range(8)
    ACC = 8; PB = 40; NP = (256 - 40)//4
    def __init__(self, q, cfg):
        self.q, self.cfg = q, cfg
        self.seq = seq = mfma_seq(q, cfg)
        self.grp = groups(cfg)
        self.bar_of = {sg: n for n, g in enumerate(self.grp) for sg in g}
        self.p2 = min(k for k in range(480) if seq[k][2] >= 2); self.p3 = min(k for k in range(480) if seq[k][2] == 3)
        self.tb = self.p2 + cfg["t12"]; self.t3 = self.p3 + cfg["t3"]
        assert self.tb not in (self.t3, self.t3 + 1)
        self.tk = self.p2 - cfg["tagk"]
        self.chk = 480 - cfg["chk_back"]
    def acc(self, c): return self.ACC + 4*c
    def extra(self, g):
        if not self.cfg["borrow"]: return 0
        return (2 if self.cfg["n_early"] == 0 and g < self.p3 - 16 else 0) + (4 if g >= self.p2 + 14 + 2*self.cfg["sgap"] + self.cfg["sgapb"] else 0)

    def plan(self, splits):
        cfg, seq, lead = self.cfg, self.seq, self.cfg["lead"]
        inst = {}; xi = []; wi = []; cur = {}
        for k, (c, sg, ph) in enumerate(seq):
            ds, i = divmod(sg, 15)
            xk = ("x", ds, c+i, ph)
            inst.setdefault(xk, []).append(k); xi.append(xk)
            if (sg, ph) in splits: cur[sg] = ph
            wk = ("w", sg, cur.get(sg, 1))
            inst.setdefault(wk, []).append(k); wi.append(wk)
        occ = {}; head = []
        for k in (self.tb, self.t3, self.t3 + 1, self.tk): occ[k-1] = (("rsv",), 0)
        un = lambda g: {"x": 2, "w": 1}.get(occ[g][0][0], 0) if g in occ else 0
        def place(key, hf, latest):
            cost = {"x": 2, "w": 1}.get(key[0], 0); g = latest
            while g >= 0 and (g in occ or any(sum(un(j) for j in range(a, a+4)) + cost > cfg["wcap"] for a in range(g-3, g+1))): g -= 1
            if g < 0:
                if key[0] != "b": head.append((key, hf))
                return -1
            occ[g] = (key, hf); return g
        issue = {}; lim = BIG
        for sg in range(59, -1, -1):
            key = ("w", sg, 1)
            g1 = place(key, 1, min(inst[key][0] - (cfg["lead0"] if sg < cfg["nlead0"] else lead), lim)); g0 = place(key, 0, g1 - 1)
            issue[key] = g0; lim = g0 - 1
            if self.grp[self.bar_of[sg]][0] == sg: lim = place(("b", self.bar_of[sg]), 0, g0 - 1) - 1
        for key in sorted([k for k in inst if k not in issue], key=lambda k: -inst[k][0]):
            ld = lead if key[-1] == 1 else cfg["lead2"]
            if key[0] == "x": issue[key] = place(key, 0, inst[key][0] - ld)
            else: issue[key] = place(key, 0, place(key, 1, inst[key][0] - ld) - 1)
        head.sort(key=lambda e: (inst[e[0]][0], e[0][0] == "x", e[1]))
        return inst, xi, wi, occ, head, issue

    def choose_splits(self):
        RING = self.cfg["RING"]; splits = set(); phase_of = [s[2] for s in self.seq]
        while True:
            inst, xi, wi, occ, head, issue = self.plan(splits)
            ev = [0]*482
            for key, uses in inst.items():
                ev[issue[key]+1] += 1; ev[uses[-1]+1] -= 1
            live = 0; bad = None
            for g in range(-1, 480):
                live += ev[g+1]
                if live > self.NP + self.extra(g): bad = g; break
            if bad is None: return splits
            best = None
            for key, uses in inst.items():
                if key[0] != "w" or key[1] < 60-RING or key[1] % RING >= RING-4: continue
                prev = [u for u in uses if u <= bad]; nxt = [u for u in uses if u > bad]
                if prev and nxt and phase_of[nxt[0]] != phase_of[prev[-1]] and nxt[0] - bad > self.cfg["lead"] + 6:
                    if best is None or nxt[0] > best[0]: best = (nxt[0], (key[1], phase_of[nxt[0]]))
            assert best, ("register pressure", self.q, bad)
            splits.add(best[1])

    def build(self):
        cfg, q, seq = self.cfg, self.q, self.seq
        RING, safe, h = cfg["RING"], cfg["safe"], q & 1
        grp, bar_of = self.grp, self.bar_of; NB = len(grp)
        self.splits = self.choose_splits()
        inst, xi, wi, occ, backlog, issue = self.plan(self.splits)
        out = []; self.ninst = 0; self.nlds = 0
        def emit(s): out.append("    " + s); self.ninst += 1
        pool = list(range(self.NP)); reg = {}
        take = lambda: self.PB + 4*pool.pop(0)
        lds = []; lastidx = {}
        own_regs = [self.acc(2*q), self.acc(2*q+1)]
        own_free = list(own_regs) if cfg["borrow"] and cfg["n_early"] == 0 else []
        st = dict(covered=0, nbar=0, k=0)
        self.free_bar = {}; self.x1_bar = None; self.x4_bar = None; self.bar_k = []
        pend_free = []; release = {}; lastuse = {}
        for key, uses in inst.items(): release.setdefault(uses[-1], []).append(key)
        for k, (c, sg, ph) in enumerate(seq): lastuse[c] = k
        sends = sorted([max(lastuse[2*d], lastuse[2*d+1]), d] for d in range(4) if d != q)
        tb, t3, chk = self.tb, self.t3, self.chk
        assert t3 + 1 < chk
        Q = []; mf_inst = {}; tagidx = None; x4b = cfg["x4b"]
        def barrier():
            for sg in list(pend_free):
                if lastidx[("w", sg, 1)] < st["covered"]:
                    self.free_bar[sg] = st["nbar"]; pend_free.remove(sg)
            emit("s_barrier"); st["nbar"] += 1; self.bar_k.append(st["k"])
            if cfg["diag"] and not cfg["kst"]:
                for i, sg in enumerate((0, 1, 8, 15, 30, 45, 59)):
                    if bar_of[sg] == st["nbar"]-1: out.append(f"    s_memtime s[{76+2*i}:{77+2*i}]")
        def lds_read(text): emit(text); lds.append(st["k"]-1); return len(lds)-1
        def do_read(key, hf):
            if hf == 0:
                if own_free and inst[key][-1] < self.p3: reg[key] = own_free.pop(0)
                else: reg[key] = take()
            r = reg[key]
            if key[0] == "x":
                _, ds, u, _ = key
                while st["nbar"] <= (x4b if u >= 8 else 0): barrier()
                if ds >= 2 and self.x1_bar is None: self.x1_bar = st["nbar"] - 1
                if u >= 8 and self.x4_bar is None: self.x4_bar = st["nbar"] - 1
                off = (ds >> 1)*XL + (u >> 3)*2*XCH + (u & 7)*128 + (ds & 1)*64
                lastidx[key] = lds_read(f"ds_read_b128 v[{r}:{r+3}], v{self.vXA} offset:{off}")
            else:
                sg = key[1]
                if key[2] == 1:
                    while st["nbar"] <= bar_of[sg]: barrier()
                    if hf: pend_free.append(sg)
                off = (sg % RING)*4096 + 512*hf; va = self.vWA0
                if off >= 65536: off -= 65536; va = self.vWA1
                i = lds_read(f"ds_read_b64_tr_b16 v[{r+2*hf}:{r+2*hf+1}], v{va} offset:{off}")
                if hf: lastidx[key] = i
        def wait_for(idx):
            if idx < st["covered"]: return False
            j = idx
            while j+1 < len(lds) and lds[j+1] <= st["k"] - 1 - (safe if st["k"] < self.p2 else cfg["safe2"]): j += 1
            n = len(lds) - 1 - j
            assert n <= 15, n
            emit(f"s_waitcnt lgkmcnt({n})"); st["covered"] = j+1
            return True
        def kind(t):
            if t.startswith("buffer_store"): return "S"
            if t.startswith(("v_exp", "v_rcp", "v_permlane")): return "t"
            if t.startswith("v_"): return "v"
            return "s"
        def ready():
            if not Q: return False
            t, after = Q[0]
            if after is None: return True
            if after[0] == "k": return st["k"] >= after[1]
            if after[0] == "m": return after[1] in mf_inst and self.ninst - mf_inst[after[1]] >= 8
            return after[1] < st["covered"]
        def missing():
            if Q and Q[0][1] and Q[0][1][0] == "m" and Q[0][1][1] in mf_inst: return 8 - (self.ninst - mf_inst[Q[0][1][1]])
            return 0
        def nop(n): emit(f"s_nop {n-1}"); self.ninst += n-1
        def fill(slots):
            n = min(missing(), slots)
            if n > 0: nop(n); slots -= n
            while ready():
                kd = kind(Q[0][0]); c = 2 if kd == "t" else 1
                if kd == "S" or c > slots: break
                emit(Q.pop(0)[0]); slots -= c
                if Q and Q[0][0] == "|": Q.pop(0); break
        def enq(items, after=None):
            for i, t in enumerate(items): Q.append((t, after if i == 0 else None))
        def act(cc, pk):
            t = T[cc]; a = self.acc(2*q+cc)
            if pk:
                o = [f"v_pk_fma_f32 v[{t+j}:{t+j+1}], v[{a+j}:{a+j+1}], s[36:37], v[{t+j}:{t+j+1}]" for j in (0, 2)]
                one = [f"v_pk_add_f32 v[{t+j}:{t+j+1}], v[{t+j}:{t+j+1}], 1.0 op_sel_hi:[1,0]" for j in (0, 2)]
            else:
                o = [f"v_fmac_f32 v{t+j}, s36, v{a+j}" for j in range(4)]
                one = [f"v_add_f32 v{t+j}, 1.0, v{t+j}" for j in range(4)]
            return o, [f"v_exp_f32 v{t+j}, v{t+j}" for j in range(4)], one, [f"v_rcp_f32 v{t+j}, v{t+j}" for j in range(4)]
        XB = xbase(cfg); L, TM = self.vLANE, self.vTMP
        enq([f"s_lshl_b32 s12, s10, 10", f"v_lshl_add_u32 v{self.vSEND}, v{L}, 4, s12",
             "s_lshl_b32 s58, s9, 2", f"v_and_b32 v{self.vSENDB}, 31, v{L}", f"v_mul_u32_u24 v{self.vTAG}, {TAGK:#x}, v{self.vSENDB}", f"v_lshrrev_b32 v{TM}, 5, v{L}",
             "s_lshl_b32 s12, s10, 9", f"s_add_u32 s12, s12, {cfg['BO']}", f"v_lshl_add_u32 v{self.vSENDB}, v{self.vSENDB}, 4, s12",
             f"v_lshl_or_b32 v{self.vSENDB}, v{TM}, 31, v{self.vSENDB}",
             f"s_mul_i32 s12, s9, {cfg['GS']}"] +
            [f"s_add_u32 s{40+d}, s12, {cfg['wsoff'] + (3*d + (d ^ q) - 1)*cfg['SS']}" for d in range(4) if d != q] +
            [f"s_add_u32 s44, s12, {cfg['wsoff'] + (3*q + 1)*cfg['SS']}", "s_mov_b32 s13, 0", "s_mov_b32 s14, 0",
             f"s_mov_b32 s36, {f2u(-LOG2E if h else 2*LOG2E):#x}", "s_mov_b32 s37, s36",
             "s_add_u32 s24, s24, s8", "s_addc_u32 s25, s25, 0"], ("k", 14))
        ldT = f"buffer_load_dword v{TM}, off, s[32:35], s58 sc1"
        chkT = ["s_waitcnt vmcnt(0)", f"v_cmp_eq_u32 vcc, 0, v{TM}"]
        started = set(); early0 = cfg["chainl"] >= 4
        for k in range(480):
            g = k-1; st["k"] = k
            c, sg, ph = seq[k]
            while sends and sends[0][0] < k:
                e, d = sends.pop(0); a0 = self.acc(2*d); a1 = a0 + 4
                enq([f"v_cvt_pk_bf16_f32 v{a0}, v{a0}, v{a0+1}", f"v_cvt_pk_bf16_f32 v{a0+1}, v{a0+2}, v{a0+3}",
                     f"v_cvt_pk_bf16_f32 v{a0+2}, v{a1}, v{a1+1}", f"v_mov_b32 v{a0+3}, v{self.vTAG}",
                     f"buffer_store_dwordx4 v[{a0}:{a0+3}], v{self.vSEND}, s[28:31], s{40+d} offen sc1",
                     f"v_cvt_pk_bf16_f32 v{a1}, v{a1+2}, v{a1+3}", f"v_cvt_pk_bf16_f32 v{a1+1}, v{a1+2}, v{a1+3}",
                     f"v_mov_b32 v{a1+2}, v{self.vTAG}", "s_nop 0",
                     f"v_permlane32_swap_b32 v{a1}, v{a1+1}",
                     f"buffer_store_dwordx4 v[{a1}:{a1+3}], v{self.vSENDB}, s[28:31], s{40+d} offen sc1"], ("m", e))
                if not sends:
                    HW, HR, OUT = a0+1, a0+2, a0+3
                    enq([x.strip() for x in final_addr(cfg, L, TM, a0, HW, HR, OUT, "s10", 1, h, q).strip().split("\n")])
            if k == chk:
                T = [take(), take()]
                chkP = ["s_waitcnt vmcnt(0)", f"v_cmp_ne_u32 vcc, v{P+3}, v{self.vTAG}", f"v_cmp_ne_u32 s[56:57], v{PB2+2}, v{self.vTAG}",
                        "s_or_b32 s56, s56, vcc_lo", "s_or_b32 s56, s56, vcc_hi"]
                enq(chkP[:3] + ["|", chkP[3], chkP[4], f"s_cbranch_scc1 L_again{q}\nL_fin{q}:", f"v_permlane32_swap_b32 v{PB2}, v{PB2+1}"])
                for cc in (0, 1):
                    for j in (0, 1):
                        t = T[cc] + 2*j; src = P + 2*cc + j if 2*cc + j < 3 else PB2
                        enq([f"v_lshlrev_b32 v{t}, 16, v{src}", f"v_and_b32 v{t+1}, 0xffff0000, v{src}"])
                    enq([f"v_mul_f32 v{T[cc]+j}, s36, v{T[cc]+j}" for j in range(4)])
                if early0: enq(sum(act(0, False), []), ("m", lastuse[2*q]))
            item = occ.get(g)
            if item and item[0][0] in "xw": backlog.append(item); item = None
            if k == 0:
                for _ in range(cfg["burst0"]):
                    cand = [e for e in backlog if not (e[0][0] == "x" and e[0][2] >= 8) and not (e[0][0] == "w" and e[0][1] > 0)]
                    if cand: backlog.remove(cand[0]); do_read(*cand[0])
            late = xi[k] not in lastidx or wi[k] not in lastidx
            waited = False
            if not late: waited = wait_for(max(lastidx[xi[k]], lastidx[wi[k]]))
            if not waited and Q and Q[0][1] and Q[0][1][0] == "l" and lds[Q[0][1][1]] <= g - safe: waited = wait_for(Q[0][1][1])
            if not waited and ready() and kind(Q[0][0]) == "s" and not item:
                emit(Q.pop(0)[0]); waited = True
            if not waited and missing() > 0 and not item: nop(1); waited = True
            cand = [e for e in backlog if not (e[0][0] == "x" and e[0][2] >= 8 and st["nbar"] <= x4b)
                    and not (k < cfg["w1at"] and e[0][0] == "w" and e[0][1] > 0)] if k else []
            if k == tb or (item and item[0][0] == "b" and item[0][1] == st["nbar"]):
                if k == tb: assert st["nbar"] == NB
                barrier()
                if not waited: fill(1)
            elif k == self.tk:
                assert not Q
                emit(ldT)
                enq(chkT[:2] + ["|", f"s_cbranch_vccnz L_tagw{q}\nL_tagok{q}:", f"v_add_u32 v{self.vTAG}, v{TM}, v{self.vTAG}"], ("k", self.p2 - cfg["tagc"]))
            elif k in (t3, t3+1):
                if k == t3:
                    assert not sends and not Q
                    P = take(); PB2 = take()
                    ldP = [f"buffer_load_dwordx4 v[{P}:{P+3}], v{self.vSEND}, s[28:31], s44 offen sc1",
                           f"buffer_load_dwordx4 v[{PB2}:{PB2+3}], v{self.vSENDB}, s[28:31], s44 offen sc1"]
                emit(ldP[k-t3])
            else:
                slots = 2
                if ready() and kind(Q[0][0]) == "S" and k - st.get("lastS", -99) >= (cfg["sgap"] if st.get("nS", 0) & 1 else cfg["sgapb"]):
                    t = Q.pop(0)[0]; emit(t); slots = 4; st["lastS"] = k; st["nS"] = st.get("nS", 0) + 1
                    if cfg["borrow"] and st["nS"] <= 4: release.setdefault(k, []).append(("s", st["nS"])); reg[("s", st["nS"])] = int(re.match(r"\S+ v\[(\d+)", t).group(1))
                if cand:
                    backlog.remove(cand[0]); do_read(*cand[0]); slots -= 1
                    if len(cand) > 2: backlog.remove(cand[1]); do_read(*cand[1]); slots -= 1
                fill(slots)
            if late:
                while xi[k] not in lastidx or wi[k] not in lastidx: do_read(*backlog.pop(0))
                wait_for(max(lastidx[xi[k]], lastidx[wi[k]]))
            a = self.acc(c); wr = reg[wi[k]]; xr = reg[xi[k]]
            cs = f"v[{a}:{a+3}]" if c in started else "0"
            started.add(c)
            emit(f"v_mfma_f32_16x16x32_bf16 v[{a}:{a+3}], v[{wr}:{wr+3}], v[{xr}:{xr+3}], {cs}")
            mf_inst[k] = self.ninst
            if cfg["diag"] and cfg["kst"] and k in cfg["kst"]: out.append(f"    s_memtime s[{76+2*cfg['kst'].index(k)}:{77+2*cfg['kst'].index(k)}]")
            for key in release.get(k, []):
                if reg[key] in own_regs: own_free.append(reg[key])
                else: pool.append((reg[key] - self.PB)//4)
        assert st["nbar"] == NB + 1 and not backlog
        self.nlds = len(lds); self.left = len(Q)
        st["k"] = 490
        def drain():
            while Q:
                if missing() > 0: nop(missing())
                t, after = Q.pop(0)
                if t != "|": emit(t)
        if cfg["diag"]: emit("s_memtime s[70:71]")
        wr = lambda cc: f"ds_write_b128 v{HW}, v[{T[cc]}:{T[cc]+3}] offset:{cc*HCS}"
        A1 = act(1, True)
        if early0:
            drain(); enq(A1[0], ("m", lastuse[2*q+1])); enq([wr(0)] + A1[1] + A1[2] + A1[3])
        else:
            A0 = act(0, True)
            enq(A0[0], ("m", lastuse[2*q])); enq(A0[1]); enq(A1[0], ("m", lastuse[2*q+1]))
            enq(A0[2] + A0[3] + A1[1] + [wr(0)] + A1[2] + A1[3])
        enq(["s_nop 0", wr(1)]); drain()
        for x in final_stage(cfg, HR, OUT, take(), take()).strip().split("\n"): emit(x.strip())
        self.again = f"""L_again{q}:
    s_add_u32 s13, s13, 1
    s_cmp_ge_u32 s13, {cfg["spin"]}
    s_cbranch_scc1 L_fin{q}
""" + "".join(f"    {x}\n" for x in ldP + chkP) + f"""    s_cbranch_scc1 L_again{q}
    s_branch L_fin{q}
L_tagw{q}:
    s_add_u32 s14, s14, 1
    s_cmp_ge_u32 s14, {cfg["spin"]}
    s_cbranch_scc1 L_tagok{q}
""" + "".join(f"    {x}\n" for x in [ldT] + chkT) + f"""    s_cbranch_vccnz L_tagw{q}
    s_branch L_tagok{q}
"""
        return "\n".join(out) + "\n"

DIAG_ST = """    s_lshl_b32 s12, s2, 3
    s_add_u32 s12, s12, s3
    s_lshl_b32 s12, s12, 8
    s_add_u32 s12, s12, 0x800000
    v_mbcnt_lo_u32_b32 v25, -1, 0
    v_mbcnt_hi_u32_b32 v25, -1, v25
    v_lshlrev_b32 v25, 2, v25
    buffer_store_dword v24, v25, s[28:31], s12 offen
"""

def gen(**kw):
    cfg = dict(DEF); cfg.update(kw)
    RING = cfg["RING"]; diag = cfg["diag"]
    comps = [Compute(q, cfg) for q in range(4)]
    bodies = [c.build() for c in comps]
    free_bar = {sg: max(c.free_bar[sg] for c in comps) for sg in range(60 - RING)}
    x1_bar = min(c.x1_bar for c in comps); x4_bar = min(c.x4_bar for c in comps)
    XBASE = xbase(cfg); lds = XBASE + 2*XL
    info = [f"generated by gen11.py  cfg={cfg}",
            f"re-reads {[len(c.splits) for c in comps]} lds reads {[c.nlds for c in comps]} left {[c.left for c in comps]} x1_bar={x1_bar} x4_bar={x4_bar}"]
    s = """    s_cmp_ge_u32 s2, 256
    s_cbranch_scc1 L_end
"""
    if diag: s += "    s_memrealtime s[94:95]\n    s_memtime s[96:97]\n"
    s += f"""    s_load_dwordx2 s[16:17], s[0:1], 0      ; x
    s_load_dwordx2 s[20:21], s[0:1], 8      ; w
    s_load_dwordx2 s[28:29], s[0:1], 32     ; ws
    s_load_dwordx2 s[24:25], s[0:1], 16     ; out
    s_load_dwordx2 s[32:33], s[0:1], 24     ; debug
    v_lshrrev_b32 v1, 6, v0
    v_and_b32 v0, 63, v0                    ; lane
    v_readfirstlane_b32 s3, v1              ; wave
    s_and_b32 s4, s2, 3
    s_lshr_b32 s9, s2, 2                    ; group
"""
    if cfg["mapping"] == "a":
        s += "    s_and_b32 s5, s9, 1                     ; batch\n    s_bfe_u32 s6, s2, 0x20003\n"
    else:
        s += "    s_and_b32 s6, s9, 3\n    s_bfe_u32 s5, s2, 0x10004               ; batch\n"
    s += f"""    s_lshr_b32 s7, s2, 5
    s_mov_b32 s18, 512000
    s_mov_b32 s19, 0x20000
    s_mul_i32 s8, s5, s18
    s_mov_b32 s22, 3932160
    s_mov_b32 s23, s19
    s_mov_b32 s26, s18
    s_mov_b32 s27, s19
    s_mov_b32 s30, {(64<<20) if diag else cfg['wsoff'] + 64*cfg['GS']}
    s_mov_b32 s31, s19
    s_movk_i32 s34, 256
    s_mov_b32 s35, s19
    s_movk_i32 s39, 0x4000
    s_cmp_lt_u32 s3, 4
    s_cbranch_scc1 L_loader
    s_getpc_b64 s[46:47]
L_pc:
    s_and_b32 s10, s3, 3                    ; wave & 3
    s_lshr_b32 s12, s2, 3
    s_lshl2_add_u32 s12, s12, s10
    s_lshl_b32 s12, s12, 6
    s_and_b32 s13, s12, 0xfc0
    s_load_dword s54, s[46:47], s13
    s_lshl_b32 s13, s4, 13
    s_add_u32 s12, s12, s13
    s_add_u32 s12, s12, L_role0-L_pc
    s_load_dword s55, s[46:47], s12
    v_and_b32 v8, 15, v0
    v_lshrrev_b32 v9, 4, v0                 ; k chunk
    v_mul_u32_u24 v3, {XCH}, v8
    v_lshl_add_u32 v3, v9, 4, v3
    v_add_u32 v3, {XBASE}, v3
    v_lshrrev_b32 v10, 2, v8
    v_lshl_add_u32 v10, v9, 3, v10          ; k row
    v_lshrrev_b32 v11, 3, v8
    v_and_b32 v12, 1, v9
    v_lshl_or_b32 v11, v12, 1, v11          ; swizzle
    v_xor_b32 v11, s10, v11
    v_lshl_add_u32 v10, v10, 2, v11
    v_and_b32 v12, 3, v8
    v_lshl_add_u32 v1, v10, 2, v12
    v_lshlrev_b32 v1, 3, v1
    v_add_u32 v2, 0x10000, v1
    v_mov_b32 v5, v0
    s_mov_b64 exec, 0
    s_cmp_eq_u32 s10, 0
    s_cbranch_scc1 L_padL0
L_disp:
    s_cmp_eq_u32 s4, 1
    s_cbranch_scc1 L_role1
    s_cmp_eq_u32 s4, 2
    s_cbranch_scc1 L_role2
    s_cmp_eq_u32 s4, 3
    s_cbranch_scc1 L_role3
    s_branch L_role0
L_loader:
    s_lshr_b32 s11, s4, 1                   ; d half
    s_lshr_b32 s13, s3, 1
    s_lshl3_add_u32 s12, s7, s13
    s_and_b32 s13, s3, 1
    s_lshl4_add_u32 s12, s12, s13
    s_sub_u32 s12, s12, 28
    s_lshl1_add_u32 s12, s12, s11
    s_lshl_b32 s12, s12, 8
    v_lshrrev_b32 v2, 3, v0
    v_lshlrev_b32 v2, 10, v2
    v_and_b32 v3, 7, v0
    v_lshlrev_b32 v3, 4, v3
    v_add3_u32 v8, v2, v3, s12
    v_add_u32 v9, s39, v8
    v_add_u32 v10, s39, v9
    v_add_u32 v11, s39, v10
    v_add_u32 v12, s39, v11
    s_lshl_b32 s13, s13, 6
    v_and_b32 v4, 16, v0
    v_lshlrev_b32 v4, 1, v4
    v_or_b32 v4, s13, v4
    v_xor_b32 v3, v3, v4
    s_and_b32 s14, s4, 1
    s_lshl2_add_u32 s14, s14, s6            ; h*4 + ct
    s_lshl_b32 s15, s11, 10
    s_add_u32 s15, s15, s14
    s_lshl_b32 s15, s15, 7
    s_lshl_b32 s37, s3, 10
    s_lshl3_add_u32 s12, s37, s15
    v_add3_u32 v7, v2, v3, s12              ; w offset
    s_mul_i32 s36, s3, {XCH}
    s_add_u32 s36, s36, {XBASE}
    s_movk_i32 s51, 0x1000
    s_mov_b32 s52, 0x40000
    s_mov_b32 m0, s36
"""
    order = []; nw = [0]
    def add(tok):
        if tok == "w":
            order.append(("w", nw[0])); nw[0] += 1
            for t in cfg["ins"].get(nw[0]-1, []): add(t)
        elif tok[0] == "x": order.append(("x", 0, int(tok[1])))
        elif tok[0] == "y": order.append(("x", 1, int(tok[1])))
        elif tok == "PX": order.append(("px",))
        elif tok == "T": order.extend([("t", 0), ("t", 1), ("t", 2)] + [("t", 3)]*cfg["tb64"])
        elif tok[0] == "P": order.append(("p",) + tuple(int(v) for v in tok.split(":")[1:]))
        else: raise ValueError(tok)
    for t in cfg["pre"]: add(t)
    K0 = len(order)
    while nw[0] < 60: add("w")
    areg = {op: 56 + i for i, op in enumerate(o for o in order if o[0] in ("p", "px"))}
    pst = dict(done=False)
    def addr_asm(op):
        r = areg[op]
        if op[0] == "p":
            _, a, b = op
            t = ""
            if not pst["done"]:
                pst["done"] = True
                if cfg["mapping"] == "a":
                    t = """    s_lshl3_add_u32 s60, s5, s7
    s_and_b32 s13, s3, 1
    s_lshl1_add_u32 s60, s60, s13
    s_lshl_b32 s60, s60, 10
    s_add_u32 s60, s60, s15
"""
                else:
                    t = """    s_lshr_b32 s60, s2, 3
    s_lshl_b32 s60, s60, 10
    s_add_u32 s60, s60, s15
    s_lshl_b32 s13, s13, 2
    s_xor_b32 s60, s60, s13
"""
                t += "    s_lshr_b32 s61, s3, 1\n    v_bfrev_b32 v19, 1\n"
            return t + f"""    s_add_u32 s12, s61, {a}
    v_lshl_add_u32 v20, v0, 1, s12          ; stage
    v_mul_u32_u24 v21, 4370, v20
    v_lshrrev_b32 v21, 16, v21              ; d step
    v_mul_u32_u24 v21, {15*262144-32768}, v21
    v_cmp_gt_u32 vcc, {b}, v20
    v_lshl_add_u32 v20, v20, 18, s60
    v_sub_u32 v21, v20, v21
    v_cndmask_b32 v{r}, v19, v21, vcc
"""
        return f"""    s_lshl2_add_u32 s12, s14, s3
    s_lshl_b32 s12, s12, 11
    s_lshl_b32 s13, s7, 8
    s_add_u32 s13, s13, s11
    s_lshl_b32 s13, s13, 8
    s_add_u32 s12, s12, s13
    s_addk_i32 s12, 128
    v_cmp_gt_u32 vcc, 4, v0
    v_lshl_add_u32 v21, v0, 9, s12
    v_bfrev_b32 v20, 1
    v_cndmask_b32 v{r}, v20, v21, vcc
"""
    for op in order[:K0]:
        if op in areg: s += addr_asm(op)
    s += """    s_waitcnt lgkmcnt(0)
    s_add_u32 s16, s16, s8
    s_addc_u32 s17, s17, 0
"""
    if diag: s += "    s_memtime s[98:99]\n"
    ms = dict(m0=("x", 0))
    def setm0(kind, off):
        prev = ms["m0"]; ms["m0"] = (kind, off)
        if prev == (kind, off): return ""
        if prev[0] == kind and off - prev[1] == 4096: return "    s_add_u32 m0, m0, s51\n"
        if prev[0] == kind and abs(off - prev[1]) < 32768: return f"    s_addk_i32 m0, {off - prev[1]}\n"
        return f"    s_add_u32 m0, {'s36' if kind == 'x' else 's37'}, {off}\n"
    def op_asm(op):
        if op[0] == "x":
            _, L, m = op
            t = setm0("x", L*(XL-128) + 4*m*XCH)
            return t + ("    s_nop 0\n" if t else "") + f"    buffer_load_dwordx4 v{8+m}, s[16:19], 0 offen offset:{128*L} lds\n"
        if op[0] == "w":
            sg = op[1]; ds, i = divmod(sg, 15)
            so = "    s_add_u32 s38, s38, s52\n" if i else f"    s_mov_b32 s38, {ds*32768}\n"
            return setm0("w", (sg % RING)*4096) + so + "    buffer_load_dwordx4 v7, s[20:23], s38 offen lds\n"
        if op[0] == "p": return f"    buffer_load_dword v23, v{areg[op]}, s[20:23], 0 offen\n"
        if op[0] == "px": return f"    buffer_load_dword v23, v{areg[op]}, s[16:19], 0 offen\n"
        return ["    buffer_load_dword v23, off, s[28:31], s62\n", "    buffer_load_dword v23, off, s[24:27], 0\n",
                "    buffer_load_dword v16, off, s[32:35], s58 sc1\n",
                "    s_add_u32 s12, s62, 0x10000\n    buffer_load_dword v23, off, s[28:31], s12\n"][op[1]]
    woff = lambda sg: (sg % 15)*262144 + (sg//15)*32768
    SL = []
    if cfg["sx"]:
        SL += [f"    s_buffer_load_dwordx2 s[54:55], s[16:19], s53 offset:{512*i + 188}\n" for i in range(4)]
    prev = (0, 0)
    for sg in range(cfg["sfrom"], 60, 2):
        cur = (woff(sg), woff(min(sg+1, 59))); dA, dB = cur[0]-prev[0], cur[1]-prev[1]; prev = cur
        t = f"    s_add_u32 s60, s60, {'s63' if dA == 524288 else hex(dA & 0xffffffff)}\n"
        if dA != dB: t += f"    s_mul_i32 s12, s61, {hex((dB-dA) & 0xffffffff)}\n    s_add_u32 s60, s60, s12\n"
        t += f"    s_xor_b32 s12, s60, {((len(SL)*cfg['srow']) & 31) << 10}\n"
        SL.append(t + "    s_buffer_load_dwordx2 s[54:55], s[20:23], s12 offset:60\n")
    if cfg["sx"] and cfg["sxpos"]: SL = SL[4:4+cfg["sxpos"]] + SL[:4] + SL[4+cfg["sxpos"]:]
    later = f"""; while the first loads are under way: the group's first wave reads the tag an earlier launch may have left;
; everybody touches the hand-off and output pages once (address translation)
    s_mul_i32 s48, s9, {cfg["GS"]}
{f"    s_add_u32 s48, s48, {cfg['wsoff']}" if cfg["wsoff"] else ""}
    s_add_u32 s62, s48, {12*cfg["SS"]}         ; a line of the group's area that is never written
    s_load_dwordx2 s[54:55], s[28:29], s62 offset:60
    s_load_dwordx2 s[54:55], s[24:25], 60
{"    s_load_dwordx2 s[54:55], s[28:29], s62 offset:0x1003c" if cfg["tb64"] else ""}
    s_lshl_b32 s58, s9, 2
    s_or_b32 s59, s3, s4
    s_cbranch_scc1 L_np0
    s_load_dword s56, s[28:29], s48 offset:{3*cfg['SS'] + 12} glc
    s_memrealtime s[44:45]
L_np0:
    s_lshl3_add_u32 s53, s7, s14
    s_lshl2_add_u32 s53, s53, s3
    s_lshl3_add_u32 s53, s53, s11
    s_lshl_b32 s53, s53, 8
    s_lshl_b32 s63, s52, 1
""" + "".join(addr_asm(op) for op in order[K0:] if op in areg) + """    s_lshl_b32 s12, s61, 14
    s_xor_b32 s60, s60, s12
"""
    pollprep = f"""    v_and_b32 v18, 31, v0
    v_mul_u32_u24 v15, {TAGK:#x}, v18
    v_lshl_add_u32 v13, v0, 4, s37          ; lane*16 + wave*1024
    s_lshr_b32 s12, s37, 1
    s_add_u32 s12, s12, {cfg["BO"]}
    v_lshl_add_u32 v17, v18, 4, s12
    v_lshrrev_b32 v18, 5, v0
    v_lshl_or_b32 v17, v18, 31, v17         ; 64K + lane*16 + wave*512, out of range for the upper half
    s_mul_i32 s12, s4, {3*cfg["SS"]}
    s_add_u32 s48, s48, s12                 ; slots (dst=me, src=partner of the other half)
    s_add_u32 s50, s48, {2*cfg["SS"]}
    s_bitcmp1_b32 s4, 0                     ; own half is g -> other is f
    s_mov_b32 s40, {f2u(-LOG2E):#x}
    s_cselect_b32 s40, {f2u(2*LOG2E):#x}, s40
    s_mov_b32 s41, 0xffff0000
    s_add_u32 s24, s24, s8
    s_addc_u32 s25, s25, 0
""" + final_addr(cfg, 0, 20, 21, 14, 19, 22, "s3", 0, None, None) + """    s_mov_b32 s13, 0
    s_waitcnt vmcnt(0)
    v_cmp_eq_u32 vcc, 0, v16
    s_cbranch_vccnz L_tag
L_tagok:
    v_add_u32 v15, v16, v15                 ; tag of this lane
""" + ("    s_mov_b32 s92, s13\n" if diag else "")
    issued = []; oi = 0
    grp = groups(cfg); NB = len(grp); bar_of = comps[0].bar_of
    stamps = {}
    tbar = [16*min(c.bar_k[n] for c in comps) for n in range(NB)]
    can = lambda op, nb: not (op[0] == "w" and op[1] >= RING and nb <= free_bar[op[1]-RING])
    cost = lambda op: cfg["opc"] if op[0] in ("w", "x") else (3*(op[2]-op[1]) if op[0] == "p" else 30)
    tpipe = 0; tta = 0; shift = 0; done_t = {}; sched = []
    for n in range(NB):
        needs = [("w", grp[n][-1])] + [("x", 0, m) for m in range(4)]
        if n >= x4_bar: needs.append(("x", 0, 4))
        if n >= x1_bar: needs += [("x", 1, m) for m in range(5)]
        cnt = 0; now = tbar[n-1] + shift if n else 0
        while oi < len(order) and can(order[oi], n):
            op = order[oi]
            forced = any(x not in issued for x in needs)
            ta = max(tta, now + 20) + cost(op)
            if n in cfg["quota"] and not forced:
                if cnt >= cfg["quota"][n]: break
            elif n > 0 and not forced:
                wait = max(done_t[x] for x in needs)
                nxt = max(tbar[n] + shift, wait)
                if ta > nxt + cfg["slack"] or sum(d > ta for d in done_t.values()) >= (cfg["cap2"] if wait - now > 400 else cfg["cap"]): break
            if n == 0 and not forced and cnt >= K0: break
            s += op_asm(op); issued.append(op); oi += 1; cnt += 1
            if n == 0:
                if not forced: tpipe += cost(op) + (cfg["ev0"] if op[0] == "p" else 0)
            else:
                tta = ta
                tpipe = max(tpipe + cost(op), ta + (cfg["ev"] if op[0] == "p" else cfg["lat"]))
            done_t[op] = tpipe
        if n == 0:
            sz0 = tsize(s)
            if diag: s += "    s_memtime s[88:89]\n"
            s += later
        if n == 1:
            s += f"""    s_cmp_lg_u32 s59, 0
    s_cbranch_scc1 L_np1
    s_waitcnt lgkmcnt(0)
    s_bfe_u32 s44, s44, 0x1c0000
    s_lshl1_add_u32 s56, s44, s56
    s_add_u32 s56, s56, 2.0
    s_bitset1_b32 s56, 0
    s_atomic_swap s56, s[32:33], s58
L_np1:
"""
        for _ in range(cfg["ssch"].get(n, 0) if cfg["ssch"] else cfg["s0"] if n == 0 else cfg["s1"] if n == 1 else int(n >= cfg["s2"])):
            if SL: s += SL.pop(0)
        need = max(issued.index(x) for x in needs)
        shift = max(shift, done_t[issued[need]] - tbar[n])
        vm = len(issued) - 1 - need
        sched.append((cnt, vm, shift))
        assert vm <= 63
        s += f"    s_waitcnt vmcnt({vm})\n"
        s += "    s_barrier\n"
        if n == 0: sz0 = tsize(s)
        if diag:
            for i in stamps.get(n, []): s += f"    s_memtime s[{64+2*i}:{65+2*i}]\n"
    assert oi == len(order) and not SL
    info.append(f"loader (issued, vmcnt, modelled stall) per barrier: {sched}")
    polls = """    buffer_load_dwordx4 v[24:27], v13, s[28:31], s48 offen sc1
    buffer_load_dwordx4 v[32:35], v17, s[28:31], s48 offen sc1
    buffer_load_dwordx4 v[28:31], v13, s[28:31], s50 offen sc1
    buffer_load_dwordx4 v[36:39], v17, s[28:31], s50 offen sc1
"""
    s += pollprep + "    s_mov_b32 s13, 0\n    s_barrier\n"
    if diag: s += "    s_memtime s[80:81]\n"
    s += polls + f"""    s_setprio {cfg["lprio"]}
L_poll:
    s_waitcnt vmcnt(0)
    v_cmp_ne_u32 vcc, v27, v15
    v_cmp_ne_u32 s[44:45], v34, v15
    v_cmp_ne_u32 s[46:47], v31, v15
    v_cmp_ne_u32 s[54:55], v38, v15
    s_or_b32 s46, s46, s44
    s_or_b32 s46, s46, s54
    s_or_b64 vcc, vcc, s[46:47]
    s_cbranch_scc1 L_repoll
L_got:
"""
    if diag: s += "    s_memtime s[82:83]\n    s_add_u32 s93, s13, 1\n"
    s += "    v_permlane32_swap_b32 v32, v33\n    v_permlane32_swap_b32 v36, v37\n"
    for cc in (0, 1):
        R = range(4*cc, 4*cc+4)
        for j in (2*cc, 2*cc+1):
            ra, rb = (24+j, 28+j) if j < 3 else (32, 36)
            s += f"    v_lshlrev_b32 v{40+2*j}, 16, v{ra}\n    v_and_b32 v{41+2*j}, s41, v{ra}\n"
            s += f"    v_lshlrev_b32 v{48+2*j}, 16, v{rb}\n    v_and_b32 v{49+2*j}, s41, v{rb}\n"
        for j in R: s += f"    v_add_f32 v{40+j}, v{40+j}, v{48+j}\n"
        for j in R: s += f"    v_mul_f32 v{40+j}, s40, v{40+j}\n"
        for j in R: s += f"    v_exp_f32 v{40+j}, v{40+j}\n"
        for j in R: s += f"    v_add_f32 v{40+j}, 1.0, v{40+j}\n"
        for j in R: s += f"    v_rcp_f32 v{40+j}, v{40+j}\n"
        s += f"    s_nop 0\n    ds_write_b128 v14, v[{40+4*cc}:{43+4*cc}] offset:{HCS*cc}\n"
    fs = final_stage(cfg, 19, 22, 24, 28)
    if diag:
        fs = fs.replace("    s_barrier\n", "    s_memtime s[86:87]\n    s_barrier\n    s_memtime s[84:85]\n")
        fs += "    s_waitcnt vmcnt(0)\n    s_memrealtime s[90:91]\n    s_branch L_diagL\n"
        diagL = "L_diagL:\n    s_waitcnt lgkmcnt(0)\n    v_mov_b32 v24, 0\n"
        vals = ["s94", "s98"] + [f"s{64+2*i}" for i in range(11)] + ["s92", "s93", "s86", "s88", "s88", "s90"]
        for i, r in enumerate(vals):
            if 1 <= i <= 12 or i in (15, 16): diagL += f"    s_sub_u32 {r}, {r}, s96\n"
            diagL += f"    v_writelane_b32 v24, {r}, {i}\n"
        diagL += DIAG_ST + "    s_endpgm\n"
    s += fs
    s += "L_end:\n    s_endpgm\n"
    slow = f"""L_repoll:
    s_add_u32 s13, s13, 1
    s_cmp_ge_u32 s13, {cfg["spin"]}
    s_cbranch_scc1 L_got
""" + polls + "    s_branch L_poll\n"
    slow2 = f"""L_tag:
    s_add_u32 s13, s13, 1
    s_cmp_ge_u32 s13, {cfg["spin"]}
    s_cbranch_scc1 L_tagok
    buffer_load_dword v16, off, s[32:35], s58 sc1
    s_waitcnt vmcnt(0)
    v_cmp_eq_u32 vcc, 0, v16
    s_cbranch_vccnz L_tag
    s_branch L_tagok
"""
    s += slow
    npl = (tsize(s) - 64)//1024
    page0, end0 = add_pads(s, [f"L_padL{k}" for k in range(npl)], [f"L_padL{k+1}" for k in range(npl-1)] + ["L_disp"], lambda L, i: True)
    assert end0 <= 4096, end0
    sizes = [sz0, end0]; roles = ""
    for q in range(4):
        s = f"""    s_cmp_eq_u32 s10, 1
    s_cbranch_scc1 L_pad{q}_0
    s_cmp_eq_u32 s10, 2
    s_cbranch_scc1 L_pad{q}_1
    s_cmp_eq_u32 s10, 3
    s_cbranch_scc1 L_pad{q}_2
    s_branch NPD0
L_main{q}:
    s_mov_b64 exec, -1
    s_setprio {cfg["prio"]}
""" + ("    s_memtime s[72:73]\n    s_waitcnt lgkmcnt(0)\n    s_memtime s[74:75]\n" if diag else "") + "    s_waitcnt lgkmcnt(0)\n" + bodies[q]
        if diag: s += "    s_memtime s[64:65]\n    s_waitcnt vmcnt(0)\n    s_memtime s[66:67]\n    s_memrealtime s[68:69]\n    s_branch L_diagC\n"
        s += "    s_endpgm\n" + comps[q].again + (slow2 if q == 3 else "")
        npd = 7 if tsize(s) + 24 >= 7168 + 64 else 6
        if cfg["touch"] < 3: npd = 3*(cfg["touch"] - 1)
        if npd == 0: s = s[s.index("    s_branch NPD0"):]
        s = s.replace("NPD0", f"L_pad{q}_6" if npd == 7 else f"L_main{q}")
        s, end = add_pads(s, [f"L_pad{q}_{k}" for k in range(npd)], [f"L_pad{q}_{k+3}" if k < 3 and k+3 < npd else f"L_main{q}" for k in range(npd)],
                          lambda L, i: L[i].strip().startswith("v_mfma") and L[i-1].strip().startswith("v_mfma"))
        assert end <= 8192, end
        sizes.append(end)
        roles += f".p2align 12\nL_role{q}:\n" + s
    if diag:
        roles += ".p2align 12\nL_diagC:\n    s_waitcnt lgkmcnt(0)\n    v_mov_b32 v24, 0\n"
        for i, r in enumerate(["s94", "s64", "s66", "s68", "s70", "s13", "s72", "s74"] + [f"s{76+2*j}" for j in range(7)]):
            if i in (1, 2, 4) or i > 5: roles += f"    s_sub_u32 {r}, {r}, s96\n"
            roles += f"    v_writelane_b32 v24, {r}, {i}\n"
        roles += DIAG_ST + "    s_endpgm\n" + diagL
    info.append(f"code bytes: {sizes}")
    s = "".join(f"; {l}\n" for l in info) + f"""; @launch grid=(256,1,1) block=(512,1,1) lds={lds}
.amdgcn_target "amdgcn-amd-amdhsa--gfx950"
.text
.p2align 12
{".fill 832, 4, 0xbf800000" if end0 > 3328 else ""}
.globl {NAME}
.p2align 8
.type {NAME},@function
{NAME}:
""" + page0 + roles + f""".p2align 12
.section .rodata,"a"
.p2align 6
.amdhsa_kernel {NAME}
  .amdhsa_next_free_vgpr 256
  .amdhsa_next_free_sgpr 102
  .amdhsa_accum_offset 256
  .amdhsa_group_segment_fixed_size 0
  .amdhsa_kernarg_size 40
  .amdhsa_user_sgpr_count 2
  .amdhsa_user_sgpr_kernarg_segment_ptr 1
  .amdhsa_system_sgpr_workgroup_id_x 1
.end_amdhsa_kernel
"""
    for x in cfg.get("exp", ()):
        if x == "nosend": s = re.sub(r"    buffer_store_dwordx4 .* sc1\n", "    s_nop 0\n    s_nop 0\n", s)
        if x == "plainsend": s = re.sub(r"(    buffer_store_dwordx4 .*) sc1\n", r"\1\n", s)
        if x == "nopoll": s = re.sub(r"    buffer_load_dwordx[24] .* sc1\n", "    s_nop 0\n    s_nop 0\n", s)
        if x == "nob": s = re.sub(r"    buffer_(store_dwordx4 .* v6,|load_dwordx2) .* sc1\n", "    s_nop 0\n    s_nop 0\n", s)
        if x == "noy":
            a = s.index("L_got:"); b = s.index("    s_barrier", a)
            s = s[:a] + re.sub(r"    v_.*\n", "", s[a:b]) + s[b:]
    if diag == 2: s = s.replace('s_memtime', 's_memrealtime')
    return s, lds

if __name__ == "__main__":
    kw = {}
    for a in sys.argv[2:]:
        k, v = a.split("=", 1)
        kw[k] = eval(v)
    s, lds = gen(**kw)
    open(sys.argv[1], "w").write(s)
    print("\n".join(s.split("\n")[1:4]))
```

```python
import sys, re, struct

NAME = "standalone__autoregressive_conv_wavernn__speech_kernel"
LOG2E = 1.4426950408889634
def f2u(x): return struct.unpack("<I", struct.pack("<f", x))[0]

DEF = dict(RING=29, n_early=10, n_late=10, lead=8, lead2=8, safe2=5, lead0=5, nlead0=0, safe=5, wcap=7, x4b=1, w1at=2, burst0=8,
           mapping="b", diag=0, single=4, grp=2, snake=1, chain2=2, chainl=1,
           pre=["x0", "x1", "x2", "x3", "w", "P:1:29", "x4", "w", "w", "w", "w"],
           ins={18: ["C"], 24: ["y0"], 25: ["y1"], 26: ["y2"], 27: ["y3"], 28: ["y4"], 59: ["T"]},
           sfrom=29, sx=1, s0=0, s1=4, s2=5, srow=1, kst=None, ssch=None, stamps=0, touch=3, sgap=0, sgapb=0, sxpos=0, borrow=1,
           opc=70, cap=9, cap2=11, lat=300, ev=900, ev0=200, slack=80, quota={1: 3, 2: 1, 3: 2, 4: 2}, wsoff=0, clr=1, evc=1300, cc=170, maxn=4, bub={}, duty=None, ramp=0, lramp=0, opc0=None, GS=73856, SS=6144, BO=4096, tb64=0,
           t12=54, t3=46, chk_back=6, prio=1, lprio=0,
           tagk=62, tagc=10, spin=200000, outflags="")
TAGK = 0x9e3779
XCH = 1056
XL = 20*XCH
BIG = 10**9
HRS = 272
HCS = 16*HRS
HREG = 2*HCS

def xbase(cfg): return cfg['RING']*4096 + 1024
def hbase(cfg): return (cfg['RING'] - 4)*4096
def groups(cfg):
    g = [[sg] for sg in range(cfg["single"])]
    sg = cfg["single"]
    while sg < 60:
        g.append(list(range(sg, min(60, sg + cfg["grp"])))); sg += cfg["grp"]
    return g

_INL = {"0.5","-0.5","1.0","-1.0","2.0","-2.0","4.0","-4.0"}
_V8 = ("v_mfma","v_add3","v_lshl_add","v_lshl_or","v_max3","v_fma_","v_cvt_pk","v_writelane","v_readlane","v_mul_lo",
       "v_and_or","v_bfe","v_perm_","v_mad","v_add_lshl","v_xad","v_mbcnt","v_or3","v_pk_")
def isize(line):
    t = line.split(";")[0].strip()
    if not t or t.endswith(":") or t.startswith("."): return 0
    mn = t.split()[0]
    if mn.startswith("v_cmp") and not t.split()[1].startswith("vcc"): return 8
    if mn.startswith(("ds_","buffer_","global_","s_load","s_buffer_load","s_memtime","s_memrealtime","s_atomic")) or mn.startswith(_V8): return 8
    if mn.startswith(("s_waitcnt","s_barrier","s_nop","s_branch","s_cbranch","s_setprio","s_endpgm","s_movk","s_addk","s_sleep")): return 4
    for o in t[len(mn):].split(","):
        o = o.strip()
        if o in _INL or re.match(r"^(s|v)(\d|\[)|^(vcc|exec|m0|scc)", o): continue
        try:
            if -16 <= int(o, 0) <= 64: continue
        except ValueError: pass
        return 8
    return 4
def tsize(text): return sum(isize(l) for l in text.split("\n"))
def add_pads(text, names, targets, prefer):
    lines = text.split("\n"); out = []; off = 0; k = 0
    for i, l in enumerate(lines):
        if k < len(names) and off >= 1024*(k+1) and isize(l):
            if prefer(lines, i) or off + isize(l) >= 1024*(k+1) + 60:
                out.append(f"{names[k]}:\n    s_cbranch_execz {targets[k]}"); off += 4; k += 1
        out.append(l); off += isize(l)
    assert k == len(names)
    return "\n".join(out), off

def mfma_seq(q, cfg):
    ne, nl = cfg["n_early"], cfg["n_late"]
    own = (2*q, 2*q+1); t = q ^ 2; third = (2*t, 2*t+1)
    act = lambda sg: [c for c in range(8) if not (c in own and sg >= ne) and not (c in third and sg >= 60-nl)]
    seq = []
    for g in groups(cfg):
        if cfg["snake"]:
            for c in range(8):
                seq += [(c, sg, 1) for sg in g if c in act(sg)]
        else:
            for sg in g: seq += [(c, sg, 1) for c in act(sg)]
    def pair(cs, lo, ph):
        sg = lo
        while sg < 60:
            L = cfg["chainl"] if (ph == 3 and 60 - sg <= cfg["chainl"]) else cfg["chain2"]
            hi = min(sg + L, (sg//15 + 1)*15)
            if ph == 3 and sg < 60 - cfg["chainl"]: hi = min(hi, 60 - cfg["chainl"])
            for c in cs: seq.extend((c, s, ph) for s in range(sg, hi))
            sg = hi
    pair(third, 60-nl, 2); pair(own, ne, 3)
    assert len(seq) == 480 and len(set((c, s) for c, s, _ in seq)) == 480
    return seq

def final_addr(cfg, L, t0, t1, HW, HR, OUT, sw, cset, h, q):
    XB = hbase(cfg)
    o = f"""    v_and_b32 v{t0}, 15, v{L}
    v_lshrrev_b32 v{t1}, 4, v{L}
    v_mul_u32_u24 v{HW}, {HRS}, v{t0}
    v_lshl_add_u32 v{HW}, v{t1}, 4, v{HW}
    s_lshl_b32 s12, {sw}, 6
"""
    if h is None: o += f"    s_bitcmp0_b32 s4, 0\n    s_cselect_b32 s42, {HREG}, 0\n    s_add_u32 s12, s12, s42\n"
    o += f"""    s_add_u32 s12, s12, {XB + (h or 0)*HREG}
    v_add_u32 v{HW}, s12, v{HW}
    v_mul_u32_u24 v{HR}, {HRS}, v{t1}
    v_lshl_add_u32 v{HR}, v{t0}, 4, v{HR}
    s_mul_i32 s12, {sw}, {4*HRS}
    s_add_u32 s12, s12, {XB + cset*HCS}
    v_add_u32 v{HR}, s12, v{HR}
    v_lshrrev_b32 v{OUT}, 1, v{t1}
    v_and_b32 v{t1}, 1, v{t1}
    v_lshl_add_u32 v{OUT}, v{OUT}, 4, v{t1}
    v_lshlrev_b32 v{t0}, 3, v{t0}
    v_lshl_add_u32 v{OUT}, v{OUT}, 9, v{t0}
    s_lshl2_add_u32 s12, s7, {sw}
    s_lshl3_add_u32 s12, s12, s4
    s_lshl4_add_u32 s12, s12, s6
    s_lshl_b32 s12, s12, 7
"""
    if cset: o += "    s_addk_i32 s12, 1024\n"
    return o + f"    v_add_u32 v{OUT}, s12, v{OUT}\n"
def final_stage(cfg, HR, OUT, F, G):
    return f"""    s_waitcnt lgkmcnt(0)
    s_barrier
    ds_read_b128 v[{F}:{F+3}], v{HR}
    ds_read_b128 v[{G}:{G+3}], v{HR} offset:{HREG}
    s_waitcnt lgkmcnt(0)
    v_pk_mul_f32 v[{F}:{F+1}], v[{F}:{F+1}], v[{G}:{G+1}]
    v_pk_mul_f32 v[{F+2}:{F+3}], v[{F+2}:{F+3}], v[{G+2}:{G+3}]
    v_pk_fma_f32 v[{F}:{F+1}], v[{F}:{F+1}], -2.0, v[{G}:{G+1}] op_sel_hi:[1,0,1]
    v_pk_fma_f32 v[{F+2}:{F+3}], v[{F+2}:{F+3}], -2.0, v[{G+2}:{G+3}] op_sel_hi:[1,0,1]
    v_cvt_pk_bf16_f32 v{F}, v{F}, v{F+1}
    v_cvt_pk_bf16_f32 v{F+1}, v{F+2}, v{F+3}
    buffer_store_dwordx2 v[{F}:{F+1}], v{OUT}, s[24:27], 0 offen {cfg['outflags']}
"""

class Compute:
    vTAG, vWA0, vWA1, vXA, vSEND, vLANE, vSENDB, vTMP = range(8)
    ACC = 8; PB = 40; NP = (256 - 40)//4
    def __init__(self, q, cfg):
        self.q, self.cfg = q, cfg
        self.seq = seq = mfma_seq(q, cfg)
        self.grp = groups(cfg)
        self.bar_of = {sg: n for n, g in enumerate(self.grp) for sg in g}
        self.p2 = min(k for k in range(480) if seq[k][2] >= 2); self.p3 = min(k for k in range(480) if seq[k][2] == 3)
        self.tb = self.p2 + cfg["t12"]; self.t3 = self.p3 + cfg["t3"]
        assert self.tb not in (self.t3, self.t3 + 1)
        self.tk = self.p2 - cfg["tagk"]
        self.chk = 480 - cfg["chk_back"]
    def acc(self, c): return self.ACC + 4*c
    def extra(self, g):
        if not self.cfg["borrow"]: return 0
        return (2 if self.cfg["n_early"] == 0 and g < self.p3 - 16 else 0) + (4 if g >= self.p2 + 14 + 2*self.cfg["sgap"] + self.cfg["sgapb"] else 0)

    def plan(self, splits):
        cfg, seq, lead = self.cfg, self.seq, self.cfg["lead"]
        inst = {}; xi = []; wi = []; cur = {}
        for k, (c, sg, ph) in enumerate(seq):
            ds, i = divmod(sg, 15)
            xk = ("x", ds, c+i, ph)
            inst.setdefault(xk, []).append(k); xi.append(xk)
            if (sg, ph) in splits: cur[sg] = ph
            wk = ("w", sg, cur.get(sg, 1))
            inst.setdefault(wk, []).append(k); wi.append(wk)
        occ = {}; head = []
        for k in ((self.tb, self.t3) if cfg['clr'] else (self.tb, self.t3, self.t3 + 1, self.tk)): occ[k-1] = (("rsv",), 0)
        un = lambda g: {"x": 2, "w": 1}.get(occ[g][0][0], 0) if g in occ else 0
        def place(key, hf, latest):
            cost = {"x": 2, "w": 1}.get(key[0], 0); g = latest
            while g >= 0 and (g in occ or any(sum(un(j) for j in range(a, a+4)) + cost > cfg["wcap"] for a in range(g-3, g+1))): g -= 1
            if g < 0:
                if key[0] != "b": head.append((key, hf))
                return -1
            occ[g] = (key, hf); return g
        issue = {}; lim = BIG
        for sg in range(59, -1, -1):
            key = ("w", sg, 1)
            g1 = place(key, 1, min(inst[key][0] - (cfg["lead0"] if sg < cfg["nlead0"] else lead), lim)); g0 = place(key, 0, g1 - 1)
            issue[key] = g0; lim = g0 - 1
            if self.grp[self.bar_of[sg]][0] == sg: lim = place(("b", self.bar_of[sg]), 0, g0 - 1) - 1
        for key in sorted([k for k in inst if k not in issue], key=lambda k: -inst[k][0]):
            ld = lead if key[-1] == 1 else cfg["lead2"]
            if key[0] == "x": issue[key] = place(key, 0, inst[key][0] - ld)
            else: issue[key] = place(key, 0, place(key, 1, inst[key][0] - ld) - 1)
        head.sort(key=lambda e: (inst[e[0]][0], e[0][0] == "x", e[1]))
        return inst, xi, wi, occ, head, issue

    def choose_splits(self):
        RING = self.cfg["RING"]; splits = set(); phase_of = [s[2] for s in self.seq]
        while True:
            inst, xi, wi, occ, head, issue = self.plan(splits)
            ev = [0]*482
            for key, uses in inst.items():
                ev[issue[key]+1] += 1; ev[uses[-1]+1] -= 1
            live = 0; bad = None
            for g in range(-1, 480):
                live += ev[g+1]
                if live > self.NP + self.extra(g): bad = g; break
            if bad is None: return splits
            best = None
            for key, uses in inst.items():
                if key[0] != "w" or key[1] < 60-RING or key[1] % RING >= RING-4: continue
                prev = [u for u in uses if u <= bad]; nxt = [u for u in uses if u > bad]
                if prev and nxt and phase_of[nxt[0]] != phase_of[prev[-1]] and nxt[0] - bad > self.cfg["lead"] + 6:
                    if best is None or nxt[0] > best[0]: best = (nxt[0], (key[1], phase_of[nxt[0]]))
            assert best, ("register pressure", self.q, bad)
            splits.add(best[1])

    def build(self):
        cfg, q, seq = self.cfg, self.q, self.seq
        RING, safe, h = cfg["RING"], cfg["safe"], q & 1
        grp, bar_of = self.grp, self.bar_of; NB = len(grp)
        self.splits = self.choose_splits()
        inst, xi, wi, occ, backlog, issue = self.plan(self.splits)
        out = []; self.ninst = 0; self.nlds = 0
        def emit(s): out.append("    " + s); self.ninst += 1
        pool = list(range(self.NP)); reg = {}
        take = lambda: self.PB + 4*pool.pop(0)
        lds = []; lastidx = {}
        own_regs = [self.acc(2*q), self.acc(2*q+1)]
        own_free = list(own_regs) if cfg["borrow"] and cfg["n_early"] == 0 else []
        st = dict(covered=0, nbar=0, k=0)
        self.free_bar = {}; self.x1_bar = None; self.x4_bar = None; self.bar_k = []
        pend_free = []; release = {}; lastuse = {}
        for key, uses in inst.items(): release.setdefault(uses[-1], []).append(key)
        for k, (c, sg, ph) in enumerate(seq): lastuse[c] = k
        sends = sorted([max(lastuse[2*d], lastuse[2*d+1]), d] for d in range(4) if d != q)
        tb, t3, chk = self.tb, self.t3, self.chk
        clr = cfg["clr"]
        assert t3 + 1 < chk and (t3 > tb or not clr)
        Q = []; mf_inst = {}; tagidx = None; x4b = cfg["x4b"]
        def barrier():
            for sg in list(pend_free):
                if lastidx[("w", sg, 1)] < st["covered"]:
                    self.free_bar[sg] = st["nbar"]; pend_free.remove(sg)
            emit("s_barrier"); st["nbar"] += 1; self.bar_k.append(st["k"])
            if cfg["diag"] and not cfg["kst"]:
                for i, sg in enumerate((0, 1, 8, 15, 30, 45, 59)):
                    if bar_of[sg] == st["nbar"]-1: out.append(f"    s_memtime s[{76+2*i}:{77+2*i}]")
        def lds_read(text): emit(text); lds.append(st["k"]-1); return len(lds)-1
        def do_read(key, hf):
            if hf == 0:
                if own_free and inst[key][-1] < self.p3: reg[key] = own_free.pop(0)
                else: reg[key] = take()
            r = reg[key]
            if key[0] == "x":
                _, ds, u, _ = key
                while st["nbar"] <= (x4b if u >= 8 else 0): barrier()
                if ds >= 2 and self.x1_bar is None: self.x1_bar = st["nbar"] - 1
                if u >= 8 and self.x4_bar is None: self.x4_bar = st["nbar"] - 1
                off = (ds >> 1)*XL + (u >> 3)*2*XCH + (u & 7)*128 + (ds & 1)*64
                lastidx[key] = lds_read(f"ds_read_b128 v[{r}:{r+3}], v{self.vXA} offset:{off}")
            else:
                sg = key[1]
                if key[2] == 1:
                    while st["nbar"] <= bar_of[sg]: barrier()
                    if hf: pend_free.append(sg)
                off = (sg % RING)*4096 + 512*hf; va = self.vWA0
                if off >= 65536: off -= 65536; va = self.vWA1
                i = lds_read(f"ds_read_b64_tr_b16 v[{r+2*hf}:{r+2*hf+1}], v{va} offset:{off}")
                if hf: lastidx[key] = i
        def wait_for(idx):
            if idx < st["covered"]: return False
            j = idx
            while j+1 < len(lds) and lds[j+1] <= st["k"] - 1 - (safe if st["k"] < self.p2 else cfg["safe2"]): j += 1
            n = len(lds) - 1 - j
            assert n <= 15, n
            emit(f"s_waitcnt lgkmcnt({n})"); st["covered"] = j+1
            return True
        def kind(t):
            if t.startswith("buffer_store"): return "S"
            if t.startswith(("v_exp", "v_rcp", "v_permlane")): return "t"
            if t.startswith("v_"): return "v"
            return "s"
        def ready():
            if not Q: return False
            t, after = Q[0]
            if after is None: return True
            if after[0] == "k": return st["k"] >= after[1]
            if after[0] == "m": return after[1] in mf_inst and self.ninst - mf_inst[after[1]] >= 8
            return after[1] < st["covered"]
        def missing():
            if Q and Q[0][1] and Q[0][1][0] == "m" and Q[0][1][1] in mf_inst: return 8 - (self.ninst - mf_inst[Q[0][1][1]])
            return 0
        def nop(n): emit(f"s_nop {n-1}"); self.ninst += n-1
        def fill(slots):
            n = min(missing(), slots)
            if n > 0: nop(n); slots -= n
            while ready():
                kd = kind(Q[0][0]); c = 2 if kd == "t" else 1
                if kd == "S" or c > slots: break
                emit(Q.pop(0)[0]); slots -= c
                if Q and Q[0][0] == "|": Q.pop(0); break
        def enq(items, after=None):
            for i, t in enumerate(items): Q.append((t, after if i == 0 else None))
        def act(cc, pk):
            t = T[cc]; a = self.acc(2*q+cc)
            if pk:
                o = [f"v_pk_fma_f32 v[{t+j}:{t+j+1}], v[{a+j}:{a+j+1}], s[36:37], v[{t+j}:{t+j+1}]" for j in (0, 2)]
                one = [f"v_pk_add_f32 v[{t+j}:{t+j+1}], v[{t+j}:{t+j+1}], 1.0 op_sel_hi:[1,0]" for j in (0, 2)]
            else:
                o = [f"v_fmac_f32 v{t+j}, s36, v{a+j}" for j in range(4)]
                one = [f"v_add_f32 v{t+j}, 1.0, v{t+j}" for j in range(4)]
            return o, [f"v_exp_f32 v{t+j}, v{t+j}" for j in range(4)], one, [f"v_rcp_f32 v{t+j}, v{t+j}" for j in range(4)]
        XB = xbase(cfg); L, TM = self.vLANE, self.vTMP
        enq([f"s_lshl_b32 s12, s10, 10", f"v_lshl_add_u32 v{self.vSEND}, v{L}, 4, s12",
             ] + ([] if clr else ["s_lshl_b32 s58, s9, 2", f"v_and_b32 v{self.vSENDB}, 31, v{L}", f"v_mul_u32_u24 v{self.vTAG}, {TAGK:#x}, v{self.vSENDB}", f"v_lshrrev_b32 v{TM}, 5, v{L}",
             "s_lshl_b32 s12, s10, 9", f"s_add_u32 s12, s12, {cfg['BO']}", f"v_lshl_add_u32 v{self.vSENDB}, v{self.vSENDB}, 4, s12",
             f"v_lshl_or_b32 v{self.vSENDB}, v{TM}, 31, v{self.vSENDB}"]) + [
             f"s_mul_i32 s12, s9, {cfg['GS']}"] +
            [f"s_add_u32 s{40+d}, s12, {cfg['wsoff'] + (3*d + (d ^ q) - 1)*cfg['SS']}" for d in range(4) if d != q] +
            [f"s_add_u32 s44, s12, {cfg['wsoff'] + (3*q + 1)*cfg['SS']}", "s_mov_b32 s13, 0", "s_mov_b32 s14, 0",
             f"s_mov_b32 s36, {f2u(-LOG2E if h else 2*LOG2E):#x}", "s_mov_b32 s37, s36",
             "s_add_u32 s24, s24, s8", "s_addc_u32 s25, s25, 0"], ("k", 14))
        ldT = f"buffer_load_dword v{TM}, off, s[32:35], s58 sc1"
        chkT = ["s_waitcnt vmcnt(0)", f"v_cmp_eq_u32 vcc, 0, v{TM}"]
        started = set(); early0 = cfg["chainl"] >= 4
        for k in range(480):
            g = k-1; st["k"] = k
            c, sg, ph = seq[k]
            while sends and sends[0][0] < k:
                e, d = sends.pop(0); a0 = self.acc(2*d); a1 = a0 + 4
                if clr:
                    enq([f"v_cvt_pk_bf16_f32 v{a0}, v{a0}, v{a0+1}", f"v_cvt_pk_bf16_f32 v{a0+1}, v{a0+2}, v{a0+3}",
                         f"v_cvt_pk_bf16_f32 v{a0+2}, v{a1}, v{a1+1}", f"v_cvt_pk_bf16_f32 v{a0+3}, v{a1+2}, v{a1+3}"] +
                        [f"v_min_u32 v{a0+j}, -2, v{a0+j}" for j in range(4)] +
                        [f"buffer_store_dwordx4 v[{a0}:{a0+3}], v{self.vSEND}, s[28:31], s{40+d} offen sc1"], ("m", e))
                else:
                    enq([f"v_cvt_pk_bf16_f32 v{a0}, v{a0}, v{a0+1}", f"v_cvt_pk_bf16_f32 v{a0+1}, v{a0+2}, v{a0+3}",
                         f"v_cvt_pk_bf16_f32 v{a0+2}, v{a1}, v{a1+1}", f"v_mov_b32 v{a0+3}, v{self.vTAG}",
                         f"buffer_store_dwordx4 v[{a0}:{a0+3}], v{self.vSEND}, s[28:31], s{40+d} offen sc1",
                         f"v_cvt_pk_bf16_f32 v{a1}, v{a1+2}, v{a1+3}", f"v_cvt_pk_bf16_f32 v{a1+1}, v{a1+2}, v{a1+3}",
                         f"v_mov_b32 v{a1+2}, v{self.vTAG}", "s_nop 0",
                         f"v_permlane32_swap_b32 v{a1}, v{a1+1}",
                         f"buffer_store_dwordx4 v[{a1}:{a1+3}], v{self.vSENDB}, s[28:31], s{40+d} offen sc1"], ("m", e))
                if not sends:
                    if clr: a0 = a1
                    HW, HR, OUT = a0+1, a0+2, a0+3
                    enq([x.strip() for x in final_addr(cfg, L, TM, a0, HW, HR, OUT, "s10", 1, h, q).strip().split("\n")])
            if k == chk:
                T = [take(), take()]
                if clr:
                    chkP = ["s_waitcnt vmcnt(0)", f"v_max3_u32 v{T[0]}, v{P}, v{P+1}, v{P+2}", f"v_max_u32 v{T[0]}, v{T[0]}, v{P+3}",
                            f"v_cmp_eq_u32 vcc, -1, v{T[0]}"]
                    enq(chkP + ["|", f"s_cbranch_vccnz L_again{q}\nL_fin{q}:"])
                else:
                    chkP = ["s_waitcnt vmcnt(0)", f"v_cmp_ne_u32 vcc, v{P+3}, v{self.vTAG}", f"v_cmp_ne_u32 s[56:57], v{PB2+2}, v{self.vTAG}",
                            "s_or_b32 s56, s56, vcc_lo", "s_or_b32 s56, s56, vcc_hi"]
                    enq(chkP[:3] + ["|", chkP[3], chkP[4], f"s_cbranch_scc1 L_again{q}\nL_fin{q}:", f"v_permlane32_swap_b32 v{PB2}, v{PB2+1}"])
                for cc in (0, 1):
                    for j in (0, 1):
                        t = T[cc] + 2*j; src = P + 2*cc + j if (clr or 2*cc + j < 3) else PB2
                        enq([f"v_lshlrev_b32 v{t}, 16, v{src}", f"v_and_b32 v{t+1}, 0xffff0000, v{src}"])
                    enq([f"v_mul_f32 v{T[cc]+j}, s36, v{T[cc]+j}" for j in range(4)])
                if early0: enq(sum(act(0, False), []), ("m", lastuse[2*q]))
            item = occ.get(g)
            if item and item[0][0] in "xw": backlog.append(item); item = None
            if k == 0:
                for _ in range(cfg["burst0"]):
                    cand = [e for e in backlog if not (e[0][0] == "x" and e[0][2] >= 8) and not (e[0][0] == "w" and e[0][1] > 0)]
                    if cand: backlog.remove(cand[0]); do_read(*cand[0])
            late = xi[k] not in lastidx or wi[k] not in lastidx
            waited = False
            if not late: waited = wait_for(max(lastidx[xi[k]], lastidx[wi[k]]))
            if not waited and Q and Q[0][1] and Q[0][1][0] == "l" and lds[Q[0][1][1]] <= g - safe: waited = wait_for(Q[0][1][1])
            if not waited and ready() and kind(Q[0][0]) == "s" and not item:
                emit(Q.pop(0)[0]); waited = True
            if not waited and missing() > 0 and not item: nop(1); waited = True
            cand = [e for e in backlog if not (e[0][0] == "x" and e[0][2] >= 8 and st["nbar"] <= x4b)
                    and not (k < cfg["w1at"] and e[0][0] == "w" and e[0][1] > 0)] if k else []
            if k == tb or (item and item[0][0] == "b" and item[0][1] == st["nbar"]):
                if k == tb: assert st["nbar"] == NB
                barrier()
                if not waited: fill(1)
            elif k == self.tk and not clr:
                assert not Q
                emit(ldT)
                enq(chkT[:2] + ["|", f"s_cbranch_vccnz L_tagw{q}\nL_tagok{q}:", f"v_add_u32 v{self.vTAG}, v{TM}, v{self.vTAG}"], ("k", self.p2 - cfg["tagc"]))
            elif k == t3 or (k == t3+1 and not clr):
                if k == t3:
                    assert not sends and not Q
                    P = take(); PB2 = take()
                    ldP = [f"buffer_load_dwordx4 v[{P}:{P+3}], v{self.vSEND}, s[28:31], s44 offen sc1",
                           f"buffer_load_dwordx4 v[{PB2}:{PB2+3}], v{self.vSENDB}, s[28:31], s44 offen sc1"]
                    if clr: ldP = ldP[:1]
                emit(ldP[k-t3])
            else:
                slots = 2
                if ready() and kind(Q[0][0]) == "S" and k - st.get("lastS", -99) >= (cfg["sgap"] if st.get("nS", 0) & 1 else cfg["sgapb"]):
                    t = Q.pop(0)[0]; emit(t); slots = 4; st["lastS"] = k; st["nS"] = st.get("nS", 0) + 1
                    if cfg["borrow"] and st["nS"] <= (2 if clr else 4):
                        r0 = int(re.match(r"\S+ v\[(\d+)", t).group(1))
                        for j in range(2 if clr else 1): release.setdefault(k, []).append(("s", st["nS"], j)); reg[("s", st["nS"], j)] = r0 + 4*j
                if cand:
                    backlog.remove(cand[0]); do_read(*cand[0]); slots -= 1
                    if len(cand) > 2: backlog.remove(cand[1]); do_read(*cand[1]); slots -= 1
                fill(slots)
            if late:
                while xi[k] not in lastidx or wi[k] not in lastidx: do_read(*backlog.pop(0))
                wait_for(max(lastidx[xi[k]], lastidx[wi[k]]))
            a = self.acc(c); wr = reg[wi[k]]; xr = reg[xi[k]]
            cs = f"v[{a}:{a+3}]" if c in started else "0"
            started.add(c)
            emit(f"v_mfma_f32_16x16x32_bf16 v[{a}:{a+3}], v[{wr}:{wr+3}], v[{xr}:{xr+3}], {cs}")
            mf_inst[k] = self.ninst
            if k in cfg["bub"]: out.append(f"    s_sleep {cfg['bub'][k]}")
            if cfg["duty"] and cfg["duty"][0] <= k < cfg["duty"][1] and k % cfg["duty"][2] == 0: out.append("    s_nop 7")
            if cfg["diag"] and cfg["kst"] and k in cfg["kst"]: out.append(f"    s_memtime s[{76+2*cfg['kst'].index(k)}:{77+2*cfg['kst'].index(k)}]")
            for key in release.get(k, []):
                if reg[key] in own_regs: own_free.append(reg[key])
                else: pool.append((reg[key] - self.PB)//4)
        assert st["nbar"] == NB + 1 and not backlog
        self.nlds = len(lds); self.left = len(Q)
        st["k"] = 490
        def drain():
            while Q:
                if missing() > 0: nop(missing())
                t, after = Q.pop(0)
                if t != "|": emit(t)
        if cfg["diag"]: emit("s_memtime s[70:71]")
        wr = lambda cc: f"ds_write_b128 v{HW}, v[{T[cc]}:{T[cc]+3}] offset:{cc*HCS}"
        A1 = act(1, True)
        if early0:
            drain(); enq(A1[0], ("m", lastuse[2*q+1])); enq([wr(0)] + A1[1] + A1[2] + A1[3])
        else:
            A0 = act(0, True)
            enq(A0[0], ("m", lastuse[2*q])); enq(A0[1]); enq(A1[0], ("m", lastuse[2*q+1]))
            enq(A0[2] + A0[3] + A1[1] + [wr(0)] + A1[2] + A1[3])
        enq(["s_nop 0", wr(1)]); drain()
        for x in final_stage(cfg, HR, OUT, take(), take()).strip().split("\n"): emit(x.strip())
        self.again = f"""L_again{q}:
    s_add_u32 s13, s13, 1
    s_cmp_ge_u32 s13, {cfg["spin"]}
    s_cbranch_scc1 L_fin{q}
""" + "".join(f"    {x}\n" for x in ldP + chkP) + f"""    s_cbranch_{"vccnz" if clr else "scc1"} L_again{q}
    s_branch L_fin{q}
"""
        if not clr: self.again += f"""L_tagw{q}:
    s_add_u32 s14, s14, 1
    s_cmp_ge_u32 s14, {cfg["spin"]}
    s_cbranch_scc1 L_tagok{q}
""" + "".join(f"    {x}\n" for x in [ldT] + chkT) + f"""    s_cbranch_vccnz L_tagw{q}
    s_branch L_tagok{q}
"""
        return "\n".join(out) + "\n"

DIAG_ST = """    s_lshl_b32 s12, s2, 3
    s_add_u32 s12, s12, s3
    s_lshl_b32 s12, s12, 8
    s_add_u32 s12, s12, 0x800000
    v_mbcnt_lo_u32_b32 v25, -1, 0
    v_mbcnt_hi_u32_b32 v25, -1, v25
    v_lshlrev_b32 v25, 2, v25
    buffer_store_dword v24, v25, s[28:31], s12 offen
"""

def gen(**kw):
    cfg = dict(DEF); cfg.update(kw)
    if cfg["clr"]: cfg.update(SS=4096, GS=12*4096 + 128)
    clr = cfg["clr"]
    RING = cfg["RING"]; diag = cfg["diag"]
    comps = [Compute(q, cfg) for q in range(4)]
    bodies = [c.build() for c in comps]
    free_bar = {sg: max(c.free_bar[sg] for c in comps) for sg in range(60 - RING)}
    x1_bar = min(c.x1_bar for c in comps); x4_bar = min(c.x4_bar for c in comps)
    XBASE = xbase(cfg); lds = XBASE + 2*XL
    info = [f"generated by gen12.py  cfg={cfg}",
            f"re-reads {[len(c.splits) for c in comps]} lds reads {[c.nlds for c in comps]} left {[c.left for c in comps]} x1_bar={x1_bar} x4_bar={x4_bar}"]
    RAMP = "    s_mov_b32 s12, 0x9e3779b1\n    v_add_u32 v40, 77, v0\n" + "".join(f"    v_mul_lo_u32 v{41+i}, v{40+i}, s12\n" for i in range(8)) + "".join(f"    v_and_b32 v{41+i}, 0xbfffbfff, v{41+i}\n" for i in range(0)) + f"""    s_mov_b32 s12, 0
L_ramp:
    v_mfma_f32_16x16x32_bf16 v[8:11], v[42:45], v[44:47], 0
    v_mfma_f32_16x16x32_bf16 v[12:15], v[44:47], v[42:45], 0
    s_add_u32 s12, s12, 1
    s_cmp_lt_u32 s12, {cfg["ramp"]}
    s_cbranch_scc1 L_ramp
"""
    s = """    s_cmp_ge_u32 s2, 256
    s_cbranch_scc1 L_end
"""
    if diag: s += "    s_memrealtime s[94:95]\n    s_memtime s[96:97]\n"
    s += f"""    s_load_dwordx2 s[16:17], s[0:1], 0      ; x
    s_load_dwordx2 s[20:21], s[0:1], 8      ; w
    s_load_dwordx2 s[28:29], s[0:1], 32     ; ws
    s_load_dwordx2 s[24:25], s[0:1], 16     ; out
    s_load_dwordx2 s[32:33], s[0:1], 24     ; debug
    v_lshrrev_b32 v1, 6, v0
    v_and_b32 v0, 63, v0                    ; lane
    v_readfirstlane_b32 s3, v1              ; wave
    s_and_b32 s4, s2, 3
    s_lshr_b32 s9, s2, 2                    ; group
"""
    if cfg["mapping"] == "a":
        s += "    s_and_b32 s5, s9, 1                     ; batch\n    s_bfe_u32 s6, s2, 0x20003\n"
    else:
        s += "    s_and_b32 s6, s9, 3\n    s_bfe_u32 s5, s2, 0x10004               ; batch\n"
    s += f"""    s_lshr_b32 s7, s2, 5
    s_mov_b32 s18, 512000
    s_mov_b32 s19, 0x20000
    s_mul_i32 s8, s5, s18
    s_mov_b32 s22, 3932160
    s_mov_b32 s23, s19
    s_mov_b32 s26, s18
    s_mov_b32 s27, s19
    s_mov_b32 s30, {(64<<20) if diag else cfg['wsoff'] + 64*cfg['GS']}
    s_mov_b32 s31, s19
    s_movk_i32 s34, 256
    s_mov_b32 s35, s19
    s_movk_i32 s39, 0x4000
    s_cmp_lt_u32 s3, 4
    s_cbranch_scc1 L_loader
    s_getpc_b64 s[46:47]
L_pc:
    s_and_b32 s10, s3, 3                    ; wave & 3
    s_lshr_b32 s12, s2, 3
    s_lshl2_add_u32 s12, s12, s10
    s_lshl_b32 s12, s12, 6
    s_and_b32 s13, s12, 0xfc0
    s_load_dword s54, s[46:47], s13
    s_lshl_b32 s13, s4, 13
    s_add_u32 s12, s12, s13
    s_add_u32 s12, s12, L_role0-L_pc
    s_load_dword s55, s[46:47], s12
    v_and_b32 v8, 15, v0
    v_lshrrev_b32 v9, 4, v0                 ; k chunk
    v_mul_u32_u24 v3, {XCH}, v8
    v_lshl_add_u32 v3, v9, 4, v3
    v_add_u32 v3, {XBASE}, v3
    v_lshrrev_b32 v10, 2, v8
    v_lshl_add_u32 v10, v9, 3, v10          ; k row
    v_lshrrev_b32 v11, 3, v8
    v_and_b32 v12, 1, v9
    v_lshl_or_b32 v11, v12, 1, v11          ; swizzle
    v_xor_b32 v11, s10, v11
    v_lshl_add_u32 v10, v10, 2, v11
    v_and_b32 v12, 3, v8
    v_lshl_add_u32 v1, v10, 2, v12
    v_lshlrev_b32 v1, 3, v1
    v_add_u32 v2, 0x10000, v1
    v_mov_b32 v5, v0
{RAMP if cfg["ramp"] else ""}
    s_mov_b64 exec, 0
    s_cmp_eq_u32 s10, 0
    s_cbranch_scc1 L_padL0
L_disp:
    s_cmp_eq_u32 s4, 1
    s_cbranch_scc1 L_role1
    s_cmp_eq_u32 s4, 2
    s_cbranch_scc1 L_role2
    s_cmp_eq_u32 s4, 3
    s_cbranch_scc1 L_role3
    s_branch L_role0
L_loader:
    s_lshr_b32 s11, s4, 1                   ; d half
    s_lshr_b32 s13, s3, 1
    s_lshl3_add_u32 s12, s7, s13
    s_and_b32 s13, s3, 1
    s_lshl4_add_u32 s12, s12, s13
    s_sub_u32 s12, s12, 28
    s_lshl1_add_u32 s12, s12, s11
    s_lshl_b32 s12, s12, 8
    v_lshrrev_b32 v2, 3, v0
    v_lshlrev_b32 v2, 10, v2
    v_and_b32 v3, 7, v0
    v_lshlrev_b32 v3, 4, v3
    v_add3_u32 v8, v2, v3, s12
    v_add_u32 v9, s39, v8
    v_add_u32 v10, s39, v9
    v_add_u32 v11, s39, v10
    v_add_u32 v12, s39, v11
    s_lshl_b32 s13, s13, 6
    v_and_b32 v4, 16, v0
    v_lshlrev_b32 v4, 1, v4
    v_or_b32 v4, s13, v4
    v_xor_b32 v3, v3, v4
    s_and_b32 s14, s4, 1
    s_lshl2_add_u32 s14, s14, s6            ; h*4 + ct
    s_lshl_b32 s15, s11, 10
    s_add_u32 s15, s15, s14
    s_lshl_b32 s15, s15, 7
    s_lshl_b32 s37, s3, 10
    s_lshl3_add_u32 s12, s37, s15
    v_add3_u32 v7, v2, v3, s12              ; w offset
    s_mul_i32 s36, s3, {XCH}
    s_add_u32 s36, s36, {XBASE}
    s_movk_i32 s51, 0x1000
    s_mov_b32 s52, 0x40000
    s_mov_b32 m0, s36
"""
    order = []; nw = [0]
    def add(tok):
        if tok == "w":
            order.append(("w", nw[0])); nw[0] += 1
            for t in cfg["ins"].get(nw[0]-1, []): add(t)
        elif tok[0] == "x": order.append(("x", 0, int(tok[1])))
        elif tok[0] == "y": order.append(("x", 1, int(tok[1])))
        elif tok == "PX": order.append(("px",))
        elif tok == "C": order.extend([("c", 0), ("c", 1), ("c", 2)])
        elif tok == "T": order.extend([("t", 0), ("t", 1), ("t", 2)] + [("t", 3)]*cfg["tb64"])
        elif tok[0] == "P": order.append(("p",) + tuple(int(v) for v in tok.split(":")[1:]))
        else: raise ValueError(tok)
    for t in cfg["pre"]: add(t)
    K0 = len(order)
    while nw[0] < 60: add("w")
    areg = {op: 56 + i for i, op in enumerate(o for o in order if o[0] in ("p", "px"))}
    pst = dict(done=False)
    def addr_asm(op):
        r = areg[op]
        if op[0] == "p":
            _, a, b = op
            t = ""
            if not pst["done"]:
                pst["done"] = True
                if cfg["mapping"] == "a":
                    t = """    s_lshl3_add_u32 s60, s5, s7
    s_and_b32 s13, s3, 1
    s_lshl1_add_u32 s60, s60, s13
    s_lshl_b32 s60, s60, 10
    s_add_u32 s60, s60, s15
"""
                else:
                    t = """    s_lshr_b32 s60, s2, 3
    s_lshl_b32 s60, s60, 10
    s_add_u32 s60, s60, s15
    s_lshl_b32 s13, s13, 2
    s_xor_b32 s60, s60, s13
"""
                t += "    s_lshr_b32 s61, s3, 1\n    v_bfrev_b32 v19, 1\n"
            return t + f"""    s_add_u32 s12, s61, {a}
    v_lshl_add_u32 v20, v0, 1, s12          ; stage
    v_mul_u32_u24 v21, 4370, v20
    v_lshrrev_b32 v21, 16, v21              ; d step
    v_mul_u32_u24 v21, {15*262144-32768}, v21
    v_cmp_gt_u32 vcc, {b}, v20
    v_lshl_add_u32 v20, v20, 18, s60
    v_sub_u32 v21, v20, v21
    v_cndmask_b32 v{r}, v19, v21, vcc
"""
        return f"""    s_lshl2_add_u32 s12, s14, s3
    s_lshl_b32 s12, s12, 11
    s_lshl_b32 s13, s7, 8
    s_add_u32 s13, s13, s11
    s_lshl_b32 s13, s13, 8
    s_add_u32 s12, s12, s13
    s_addk_i32 s12, 128
    v_cmp_gt_u32 vcc, 4, v0
    v_lshl_add_u32 v21, v0, 9, s12
    v_bfrev_b32 v20, 1
    v_cndmask_b32 v{r}, v20, v21, vcc
"""
    for op in order[:K0]:
        if op in areg: s += addr_asm(op)
    s += """    s_waitcnt lgkmcnt(0)
    s_add_u32 s16, s16, s8
    s_addc_u32 s17, s17, 0
"""
    if diag: s += "    s_memtime s[98:99]\n"
    ms = dict(m0=("x", 0))
    def setm0(kind, off):
        prev = ms["m0"]; ms["m0"] = (kind, off)
        if prev == (kind, off): return ""
        if prev[0] == kind and off - prev[1] == 4096: return "    s_add_u32 m0, m0, s51\n"
        if prev[0] == kind and abs(off - prev[1]) < 32768: return f"    s_addk_i32 m0, {off - prev[1]}\n"
        return f"    s_add_u32 m0, {'s36' if kind == 'x' else 's37'}, {off}\n"
    def op_asm(op):
        if op[0] == "x":
            _, L, m = op
            t = setm0("x", L*(XL-128) + 4*m*XCH)
            return t + ("    s_nop 0\n" if t else "") + f"    buffer_load_dwordx4 v{8+m}, s[16:19], 0 offen offset:{128*L} lds\n"
        if op[0] == "w":
            sg = op[1]; ds, i = divmod(sg, 15)
            so = "    s_add_u32 s38, s38, s52\n" if i else f"    s_mov_b32 s38, {ds*32768}\n"
            return setm0("w", (sg % RING)*4096) + so + "    buffer_load_dwordx4 v7, s[20:23], s38 offen lds\n"
        if op[0] == "p": return f"    buffer_load_dword v23, v{areg[op]}, s[20:23], 0 offen\n"
        if op[0] == "c": return f"    buffer_store_dwordx4 v[24:27], v13, s[28:31], s{44+op[1]} offen sc1\n"
        if op[0] == "px": return f"    buffer_load_dword v23, v{areg[op]}, s[16:19], 0 offen\n"
        return ["    buffer_load_dword v23, off, s[28:31], s62\n", "    buffer_load_dword v23, off, s[24:27], 0\n",
                "    buffer_load_dword v16, off, s[32:35], s58 sc1\n",
                "    s_add_u32 s12, s62, 0x10000\n    buffer_load_dword v23, off, s[28:31], s12\n"][op[1]]
    woff = lambda sg: (sg % 15)*262144 + (sg//15)*32768
    SL = []
    if cfg["sx"]:
        SL += [f"    s_buffer_load_dwordx2 s[54:55], s[16:19], s53 offset:{512*i + 188}\n" for i in range(4)]
    prev = (0, 0)
    for sg in range(cfg["sfrom"], 60, 2):
        cur = (woff(sg), woff(min(sg+1, 59))); dA, dB = cur[0]-prev[0], cur[1]-prev[1]; prev = cur
        t = f"    s_add_u32 s60, s60, {'s63' if dA == 524288 else hex(dA & 0xffffffff)}\n"
        if dA != dB: t += f"    s_mul_i32 s12, s61, {hex((dB-dA) & 0xffffffff)}\n    s_add_u32 s60, s60, s12\n"
        t += f"    s_xor_b32 s12, s60, {((len(SL)*cfg['srow']) & 31) << 10}\n"
        SL.append(t + "    s_buffer_load_dwordx2 s[54:55], s[20:23], s12 offset:60\n")
    if cfg["sx"] and cfg["sxpos"]: SL = SL[4:4+cfg["sxpos"]] + SL[:4] + SL[4+cfg["sxpos"]:]
    later = f"""; while the first loads are under way: the group's first wave reads the tag an earlier launch may have left;
; everybody touches the hand-off and output pages once (address translation)
    s_mul_i32 s48, s9, {cfg["GS"]}
{f"    s_add_u32 s48, s48, {cfg['wsoff']}" if cfg["wsoff"] else ""}
    s_add_u32 s62, s48, {12*cfg["SS"]}         ; a line of the group's area that is never written
    s_load_dwordx2 s[54:55], s[28:29], s62 offset:60
    s_load_dwordx2 s[54:55], s[24:25], 60
{"    s_load_dwordx2 s[54:55], s[28:29], s62 offset:0x1003c" if cfg["tb64"] else ""}
    s_lshl_b32 s58, s9, 2
""" + ("".join(f"""    s_xor_b32 s12, s4, {p}
    s_mul_i32 s12, s12, {3*cfg["SS"]}
    s_add_u32 s{43+p}, s12, s48
""" + (f"    s_addk_i32 s{43+p}, {(p-1)*cfg['SS']}\n" if p > 1 else "") for p in (1, 2, 3)) + """    v_lshl_add_u32 v13, v0, 4, s37          ; lane*16 + wave*1024
    v_mov_b32 v24, -1
    v_mov_b32 v25, -1
    v_mov_b32 v26, -1
    v_mov_b32 v27, -1
""" if clr else f"""    s_or_b32 s59, s3, s4
    s_cbranch_scc1 L_np0
    s_load_dword s56, s[28:29], s48 offset:{3*cfg['SS'] + 12} glc
    s_memrealtime s[44:45]
L_np0:
""") + f"""    s_lshl3_add_u32 s53, s7, s14
    s_lshl2_add_u32 s53, s53, s3
    s_lshl3_add_u32 s53, s53, s11
    s_lshl_b32 s53, s53, 8
    s_lshl_b32 s63, s52, 1
""" + "".join(addr_asm(op) for op in order[K0:] if op in areg) + """    s_lshl_b32 s12, s61, 14
    s_xor_b32 s60, s60, s12
"""
    pollprep = ("" if clr else f"""    v_and_b32 v18, 31, v0
    v_mul_u32_u24 v15, {TAGK:#x}, v18
    v_lshl_add_u32 v13, v0, 4, s37          ; lane*16 + wave*1024
    s_lshr_b32 s12, s37, 1
    s_add_u32 s12, s12, {cfg["BO"]}
    v_lshl_add_u32 v17, v18, 4, s12
    v_lshrrev_b32 v18, 5, v0
    v_lshl_or_b32 v17, v18, 31, v17         ; 64K + lane*16 + wave*512, out of range for the upper half
""") + f"""    s_mul_i32 s12, s4, {3*cfg["SS"]}
    s_add_u32 s48, s48, s12                 ; slots (dst=me, src=partner of the other half)
    s_add_u32 s50, s48, {2*cfg["SS"]}
    s_bitcmp1_b32 s4, 0                     ; own half is g -> other is f
    s_mov_b32 s40, {f2u(-LOG2E):#x}
    s_cselect_b32 s40, {f2u(2*LOG2E):#x}, s40
    s_mov_b32 s41, 0xffff0000
    s_add_u32 s24, s24, s8
    s_addc_u32 s25, s25, 0
""" + final_addr(cfg, 0, 20, 21, 14, 19, 22, "s3", 0, None, None) + f"""    s_mov_b32 s13, 0
    s_waitcnt vmcnt(0)
    {"v_cmp_gt_u32 vcc, 4, v16" if clr else "v_cmp_eq_u32 vcc, 0, v16"}
    s_cbranch_vccnz L_tag
L_tagok:
""" + ("" if clr else "    v_add_u32 v15, v16, v15                 ; tag of this lane\n") + ("    s_mov_b32 s92, s13\n" if diag else "")
    issued = []; oi = 0
    grp = groups(cfg); NB = len(grp); bar_of = comps[0].bar_of
    stamps = {}
    tbar = [16*min(c.bar_k[n] for c in comps) for n in range(NB)]
    can = lambda op, nb: not (op[0] == "w" and op[1] >= RING and nb <= free_bar[op[1]-RING])
    cost = lambda op: (cfg["opc0"][1] if cfg["opc0"] and op[0] == "w" and op[1] < cfg["opc0"][0] else cfg["opc"]) if op[0] in ("w", "x") else (3*(op[2]-op[1]) if op[0] == "p" else cfg["cc"] if op[0] == "c" else 30)
    cov = None; tpipe = 0; tta = 0; shift = 0; done_t = {}; sched = []
    for n in range(NB):
        needs = [("w", grp[n][-1])] + [("x", 0, m) for m in range(4)]
        if n >= x4_bar: needs.append(("x", 0, 4))
        if n >= x1_bar: needs += [("x", 1, m) for m in range(5)]
        cnt = 0; now = tbar[n-1] + shift if n else 0
        while oi < len(order) and can(order[oi], n):
            op = order[oi]
            forced = any(x not in issued for x in needs)
            ta = max(tta, now + 20) + cost(op)
            if n in cfg["quota"] and not forced:
                if cnt >= cfg["quota"][n]: break
            elif n > 0 and not forced:
                wait = max(done_t[x] for x in needs)
                nxt = max(tbar[n] + shift, wait)
                inev = any(o[0] in "pc" and d > now for o, d in done_t.items())
                if (ta > nxt + cfg["slack"] and cnt) or cnt >= cfg["maxn"] or sum(d > ta for d in done_t.values()) >= (cfg["cap2"] if inev else cfg["cap"]): break
            if n == 0 and not forced and cnt >= K0: break
            s += op_asm(op); issued.append(op); oi += 1; cnt += 1
            if n == 0:
                if not forced: tpipe += cost(op) + (cfg["ev0"] if op[0] == "p" else 0)
            else:
                tta = ta
                tpipe = max(tpipe + cost(op), ta + (cfg["ev"] if op[0] == "p" else cfg["evc"] - 600 if op[0] == "c" else cfg["lat"]))
            done_t[op] = tpipe
        if n == 0:
            sz0 = tsize(s)
            if diag: s += "    s_memtime s[88:89]\n"
            s += later
            if cfg['lramp']: s += RAMP.replace('L_ramp', 'L_ramp2').replace(f"s12, {cfg['ramp']}\n    s_cbranch", f"s12, {cfg['lramp']}\n    s_cbranch").replace('v[8:11]', 'v[60:63]').replace('v[12:15]', 'v[64:67]')
        if clr and cov is not None and n == cov + 1:
            s += """    s_cmp_lg_u32 s3, 0
    s_cbranch_scc1 L_np1
    s_mov_b32 s56, 1
    s_atomic_add s56, s[32:33], s58
L_np1:
"""
        if n == 1 and not clr:
            s += f"""    s_cmp_lg_u32 s59, 0
    s_cbranch_scc1 L_np1
    s_waitcnt lgkmcnt(0)
    s_bfe_u32 s44, s44, 0x1c0000
    s_lshl1_add_u32 s56, s44, s56
    s_add_u32 s56, s56, 2.0
    s_bitset1_b32 s56, 0
    s_atomic_swap s56, s[32:33], s58
L_np1:
"""
        for _ in range(cfg["ssch"].get(n, 0) if cfg["ssch"] else cfg["s0"] if n == 0 else cfg["s1"] if n == 1 else int(n >= cfg["s2"])):
            if SL: s += SL.pop(0)
        need = max(issued.index(x) for x in needs)
        if cov is None and ("c", 2) in issued and need > issued.index(("c", 2)): cov = n
        shift = max(shift, done_t[issued[need]] - tbar[n])
        vm = len(issued) - 1 - need
        sched.append((cnt, vm, shift))
        assert vm <= 63
        s += f"    s_waitcnt vmcnt({vm})\n"
        s += "    s_barrier\n"
        if n == 0: sz0 = tsize(s)
        if diag:
            for i in stamps.get(n, []): s += f"    s_memtime s[{64+2*i}:{65+2*i}]\n"
    assert oi == len(order) and not SL and (not clr or cov < NB - 1)
    info.append(f"loader (issued, vmcnt, modelled stall) per barrier: {sched}")
    polls = """    buffer_load_dwordx4 v[24:27], v13, s[28:31], s48 offen sc1
    buffer_load_dwordx4 v[32:35], v17, s[28:31], s48 offen sc1
    buffer_load_dwordx4 v[28:31], v13, s[28:31], s50 offen sc1
    buffer_load_dwordx4 v[36:39], v17, s[28:31], s50 offen sc1
"""
    if clr: polls = "".join(l + "\n" for l in polls.split("\n") if " v13," in l)
    s += pollprep + "    s_mov_b32 s13, 0\n    s_barrier\n"
    if diag: s += "    s_memtime s[80:81]\n"
    s += polls + f"""    s_setprio {cfg["lprio"]}
L_poll:
    s_waitcnt vmcnt(0)
""" + ("""    v_max3_u32 v36, v24, v25, v26
    v_max3_u32 v37, v27, v28, v29
    v_max3_u32 v36, v36, v30, v31
    v_max_u32 v36, v36, v37
    v_cmp_eq_u32 vcc, -1, v36
    s_cbranch_vccnz L_repoll
""" if clr else """    v_cmp_ne_u32 vcc, v27, v15
    v_cmp_ne_u32 s[44:45], v34, v15
    v_cmp_ne_u32 s[46:47], v31, v15
    v_cmp_ne_u32 s[54:55], v38, v15
    s_or_b32 s46, s46, s44
    s_or_b32 s46, s46, s54
    s_or_b64 vcc, vcc, s[46:47]
    s_cbranch_scc1 L_repoll
""") + """L_got:
"""
    if diag: s += "    s_memtime s[82:83]\n    s_add_u32 s93, s13, 1\n"
    if not clr: s += "    v_permlane32_swap_b32 v32, v33\n    v_permlane32_swap_b32 v36, v37\n"
    for cc in (0, 1):
        R = range(4*cc, 4*cc+4)
        for j in (2*cc, 2*cc+1):
            ra, rb = (24+j, 28+j) if (clr or j < 3) else (32, 36)
            s += f"    v_lshlrev_b32 v{40+2*j}, 16, v{ra}\n    v_and_b32 v{41+2*j}, s41, v{ra}\n"
            s += f"    v_lshlrev_b32 v{48+2*j}, 16, v{rb}\n    v_and_b32 v{49+2*j}, s41, v{rb}\n"
        for j in R: s += f"    v_add_f32 v{40+j}, v{40+j}, v{48+j}\n"
        for j in R: s += f"    v_mul_f32 v{40+j}, s40, v{40+j}\n"
        for j in R: s += f"    v_exp_f32 v{40+j}, v{40+j}\n"
        for j in R: s += f"    v_add_f32 v{40+j}, 1.0, v{40+j}\n"
        for j in R: s += f"    v_rcp_f32 v{40+j}, v{40+j}\n"
        s += f"    s_nop 0\n    ds_write_b128 v14, v[{40+4*cc}:{43+4*cc}] offset:{HCS*cc}\n"
    fs = final_stage(cfg, 19, 22, 24, 28)
    if diag:
        fs = fs.replace("    s_barrier\n", "    s_memtime s[86:87]\n    s_barrier\n    s_memtime s[84:85]\n")
        fs += "    s_waitcnt vmcnt(0)\n    s_memrealtime s[90:91]\n    s_branch L_diagL\n"
        diagL = "L_diagL:\n    s_waitcnt lgkmcnt(0)\n    v_mov_b32 v24, 0\n"
        vals = ["s94", "s98"] + [f"s{64+2*i}" for i in range(11)] + ["s92", "s93", "s86", "s88", "s88", "s90"]
        for i, r in enumerate(vals):
            if 1 <= i <= 12 or i in (15, 16): diagL += f"    s_sub_u32 {r}, {r}, s96\n"
            diagL += f"    v_writelane_b32 v24, {r}, {i}\n"
        diagL += DIAG_ST + "    s_endpgm\n"
    s += fs
    s += "L_end:\n    s_endpgm\n"
    slow = f"""L_repoll:
    s_add_u32 s13, s13, 1
    s_cmp_ge_u32 s13, {cfg["spin"]}
    s_cbranch_scc1 L_got
""" + polls + "    s_branch L_poll\n"
    slow2 = f"""L_tag:
    s_add_u32 s13, s13, 1
    s_cmp_ge_u32 s13, {cfg["spin"]}
    s_cbranch_scc1 L_tagok
    buffer_load_dword v16, off, s[32:35], s58 sc1
    s_waitcnt vmcnt(0)
    {"v_cmp_gt_u32 vcc, 4, v16" if clr else "v_cmp_eq_u32 vcc, 0, v16"}
    s_cbranch_vccnz L_tag
    s_branch L_tagok
"""
    s += slow
    npl = (tsize(s) - 64)//1024
    page0, end0 = add_pads(s, [f"L_padL{k}" for k in range(npl)], [f"L_padL{k+1}" for k in range(npl-1)] + ["L_disp"], lambda L, i: True)
    assert end0 <= 4096, end0
    sizes = [sz0, end0]; roles = ""
    for q in range(4):
        s = f"""    s_cmp_eq_u32 s10, 1
    s_cbranch_scc1 L_pad{q}_0
    s_cmp_eq_u32 s10, 2
    s_cbranch_scc1 L_pad{q}_1
    s_cmp_eq_u32 s10, 3
    s_cbranch_scc1 L_pad{q}_2
    s_branch NPD0
L_main{q}:
    s_mov_b64 exec, -1
    s_setprio {cfg["prio"]}
""" + ("    s_memtime s[72:73]\n    s_waitcnt lgkmcnt(0)\n    s_memtime s[74:75]\n" if diag else "") + "    s_waitcnt lgkmcnt(0)\n" + bodies[q]
        if diag: s += "    s_memtime s[64:65]\n    s_waitcnt vmcnt(0)\n    s_memtime s[66:67]\n    s_memrealtime s[68:69]\n    s_branch L_diagC\n"
        s += "    s_endpgm\n" + comps[q].again + (slow2 if q == 3 else "")
        npd = 7 if tsize(s) + 24 >= 7168 + 64 else 6
        if cfg["touch"] < 3: npd = 3*(cfg["touch"] - 1)
        if npd == 0: s = s[s.index("    s_branch NPD0"):]
        s = s.replace("NPD0", f"L_pad{q}_6" if npd == 7 else f"L_main{q}")
        s, end = add_pads(s, [f"L_pad{q}_{k}" for k in range(npd)], [f"L_pad{q}_{k+3}" if k < 3 and k+3 < npd else f"L_main{q}" for k in range(npd)],
                          lambda L, i: L[i].strip().startswith("v_mfma") and L[i-1].strip().startswith("v_mfma"))
        assert end <= 8192, end
        sizes.append(end)
        roles += f".p2align 12\nL_role{q}:\n" + s
    if diag:
        roles += ".p2align 12\nL_diagC:\n    s_waitcnt lgkmcnt(0)\n    v_mov_b32 v24, 0\n"
        for i, r in enumerate(["s94", "s64", "s66", "s68", "s70", "s13", "s72", "s74"] + [f"s{76+2*j}" for j in range(7)]):
            if i in (1, 2, 4) or i > 5: roles += f"    s_sub_u32 {r}, {r}, s96\n"
            roles += f"    v_writelane_b32 v24, {r}, {i}\n"
        roles += DIAG_ST + "    s_endpgm\n" + diagL
    info.append(f"code bytes: {sizes}")
    s = "".join(f"; {l}\n" for l in info) + f"""; @launch grid=(256,1,1) block=(512,1,1) lds={lds}
.amdgcn_target "amdgcn-amd-amdhsa--gfx950"
.text
.p2align 12
{".fill 832, 4, 0xbf800000" if end0 > 3328 else ""}
.globl {NAME}
.p2align 8
.type {NAME},@function
{NAME}:
""" + page0 + roles + f""".p2align 12
.section .rodata,"a"
.p2align 6
.amdhsa_kernel {NAME}
  .amdhsa_next_free_vgpr 256
  .amdhsa_next_free_sgpr 102
  .amdhsa_accum_offset 256
  .amdhsa_group_segment_fixed_size 0
  .amdhsa_kernarg_size 40
  .amdhsa_user_sgpr_count 2
  .amdhsa_user_sgpr_kernarg_segment_ptr 1
  .amdhsa_system_sgpr_workgroup_id_x 1
.end_amdhsa_kernel
"""
    for x in cfg.get("exp", ()):
        if x == "nosend": s = re.sub(r"    buffer_store_dwordx4 .* sc1\n", "    s_nop 0\n    s_nop 0\n", s)
        if x == "plainsend": s = re.sub(r"(    buffer_store_dwordx4 .*) sc1\n", r"\1\n", s)
        if x == "nopoll": s = re.sub(r"    buffer_load_dwordx[24] .* sc1\n", "    s_nop 0\n    s_nop 0\n", s)
        if x == "nob": s = re.sub(r"    buffer_(store_dwordx4 .* v6,|load_dwordx2) .* sc1\n", "    s_nop 0\n    s_nop 0\n", s)
        if x == "noy":
            a = s.index("L_got:"); b = s.index("    s_barrier", a)
            s = s[:a] + re.sub(r"    v_.*\n", "", s[a:b]) + s[b:]
    if diag == 2: s = s.replace('s_memtime', 's_memrealtime')
    return s, lds

if __name__ == "__main__":
    kw = {}
    for a in sys.argv[2:]:
        k, v = a.split("=", 1)
        kw[k] = eval(v)
    s, lds = gen(**kw)
    open(sys.argv[1], "w").write(s)
    print("\n".join(s.split("\n")[1:4]))
```

```python
import sys, re, struct

NAME = "standalone__autoregressive_conv_wavernn__speech_kernel"
LOG2E = 1.4426950408889634
def f2u(x): return struct.unpack("<I", struct.pack("<f", x))[0]

DEF = dict(RING=29, n_early=0, n_late=16, lead=8, lead2=8, safe2=5, lead0=5, nlead0=0, safe=5, wcap=7, x4b=1, w1at=2, burst0=8,
           mapping="b", diag=0, single=4, grp=2, snake=1, chain2=2, chainl=1,
           pre=["x0", "x1", "x2", "x3", "w", "P:1:29", "x4", "w", "w", "w", "w"],
           ins={22: ["y0"], 23: ["y1"], 24: ["y2"], 25: ["y3"], 26: ["y4"], 59: ["T"]},
           sfrom=29, sx=1, s0=0, s1=4, s2=5, srow=1, kst=None, ssch=None, stamps=0, touch=3, sgap=0, sgapb=0, sxpos=0, borrow=1,
           opc=70, cap=9, cap2=12, lat=300, ev=900, ev0=200, slack=80, quota={1: 3, 2: 1, 3: 2, 4: 2}, wsoff=0, bub={}, duty=None, ramp=0, lramp=0, opc0=None, GS=73856, SS=6144, BO=4096, tb64=0,
           t12=68, t3=60, chk_back=6, prio=1, lprio=0,
           tagk=62, tagc=10, spin=200000, outflags="")
TAGK = 0x9e3779
XCH = 1056
XL = 20*XCH
BIG = 10**9
HRS = 272
HCS = 16*HRS
HREG = 2*HCS

def xbase(cfg): return cfg['RING']*4096 + 1024
def hbase(cfg): return (cfg['RING'] - 4)*4096
def groups(cfg):
    g = [[sg] for sg in range(cfg["single"])]
    sg = cfg["single"]
    while sg < 60:
        g.append(list(range(sg, min(60, sg + cfg["grp"])))); sg += cfg["grp"]
    return g

_INL = {"0.5","-0.5","1.0","-1.0","2.0","-2.0","4.0","-4.0"}
_V8 = ("v_mfma","v_add3","v_lshl_add","v_lshl_or","v_max3","v_fma_","v_cvt_pk","v_writelane","v_readlane","v_mul_lo",
       "v_and_or","v_bfe","v_perm_","v_mad","v_add_lshl","v_xad","v_mbcnt","v_or3","v_pk_")
def isize(line):
    t = line.split(";")[0].strip()
    if not t or t.endswith(":") or t.startswith("."): return 0
    mn = t.split()[0]
    if mn.startswith("v_cmp") and not t.split()[1].startswith("vcc"): return 8
    if mn.startswith(("ds_","buffer_","global_","s_load","s_buffer_load","s_memtime","s_memrealtime","s_atomic")) or mn.startswith(_V8): return 8
    if mn.startswith(("s_waitcnt","s_barrier","s_nop","s_branch","s_cbranch","s_setprio","s_endpgm","s_movk","s_addk","s_sleep")): return 4
    for o in t[len(mn):].split(","):
        o = o.strip()
        if o in _INL or re.match(r"^(s|v)(\d|\[)|^(vcc|exec|m0|scc)", o): continue
        try:
            if -16 <= int(o, 0) <= 64: continue
        except ValueError: pass
        return 8
    return 4
def tsize(text): return sum(isize(l) for l in text.split("\n"))
def add_pads(text, names, targets, prefer):
    lines = text.split("\n"); out = []; off = 0; k = 0
    for i, l in enumerate(lines):
        if k < len(names) and off >= 1024*(k+1) and isize(l):
            if prefer(lines, i) or off + isize(l) >= 1024*(k+1) + 60:
                out.append(f"{names[k]}:\n    s_cbranch_execz {targets[k]}"); off += 4; k += 1
        out.append(l); off += isize(l)
    assert k == len(names)
    return "\n".join(out), off

def mfma_seq(q, cfg):
    ne, nl = cfg["n_early"], cfg["n_late"]
    own = (2*q, 2*q+1); t = q ^ 2; third = (2*t, 2*t+1)
    act = lambda sg: [c for c in range(8) if not (c in own and sg >= ne) and not (c in third and sg >= 60-nl)]
    seq = []
    for g in groups(cfg):
        if cfg["snake"]:
            for c in range(8):
                seq += [(c, sg, 1) for sg in g if c in act(sg)]
        else:
            for sg in g: seq += [(c, sg, 1) for c in act(sg)]
    def pair(cs, lo, ph):
        sg = lo
        while sg < 60:
            L = cfg["chainl"] if (ph == 3 and 60 - sg <= cfg["chainl"]) else cfg["chain2"]
            hi = min(sg + L, (sg//15 + 1)*15)
            if ph == 3 and sg < 60 - cfg["chainl"]: hi = min(hi, 60 - cfg["chainl"])
            for c in cs: seq.extend((c, s, ph) for s in range(sg, hi))
            sg = hi
    pair(third, 60-nl, 2); pair(own, ne, 3)
    assert len(seq) == 480 and len(set((c, s) for c, s, _ in seq)) == 480
    return seq

def final_addr(cfg, L, t0, t1, HW, HR, OUT, sw, cset, h, q):
    XB = hbase(cfg)
    o = f"""    v_and_b32 v{t0}, 15, v{L}
    v_lshrrev_b32 v{t1}, 4, v{L}
    v_mul_u32_u24 v{HW}, {HRS}, v{t0}
    v_lshl_add_u32 v{HW}, v{t1}, 4, v{HW}
    s_lshl_b32 s12, {sw}, 6
"""
    if h is None: o += f"    s_bitcmp0_b32 s4, 0\n    s_cselect_b32 s42, {HREG}, 0\n    s_add_u32 s12, s12, s42\n"
    o += f"""    s_add_u32 s12, s12, {XB + (h or 0)*HREG}
    v_add_u32 v{HW}, s12, v{HW}
    v_mul_u32_u24 v{HR}, {HRS}, v{t1}
    v_lshl_add_u32 v{HR}, v{t0}, 4, v{HR}
    s_mul_i32 s12, {sw}, {4*HRS}
    s_add_u32 s12, s12, {XB + cset*HCS}
    v_add_u32 v{HR}, s12, v{HR}
    v_lshrrev_b32 v{OUT}, 1, v{t1}
    v_and_b32 v{t1}, 1, v{t1}
    v_lshl_add_u32 v{OUT}, v{OUT}, 4, v{t1}
    v_lshlrev_b32 v{t0}, 3, v{t0}
    v_lshl_add_u32 v{OUT}, v{OUT}, 9, v{t0}
    s_lshl2_add_u32 s12, s7, {sw}
    s_lshl3_add_u32 s12, s12, s4
    s_lshl4_add_u32 s12, s12, s6
    s_lshl_b32 s12, s12, 7
"""
    if cset: o += "    s_addk_i32 s12, 1024\n"
    return o + f"    v_add_u32 v{OUT}, s12, v{OUT}\n"
def final_stage(cfg, HR, OUT, F, G):
    return f"""    s_waitcnt lgkmcnt(0)
    s_barrier
    ds_read_b128 v[{F}:{F+3}], v{HR}
    ds_read_b128 v[{G}:{G+3}], v{HR} offset:{HREG}
    s_waitcnt lgkmcnt(0)
    v_pk_mul_f32 v[{F}:{F+1}], v[{F}:{F+1}], v[{G}:{G+1}]
    v_pk_mul_f32 v[{F+2}:{F+3}], v[{F+2}:{F+3}], v[{G+2}:{G+3}]
    v_pk_fma_f32 v[{F}:{F+1}], v[{F}:{F+1}], -2.0, v[{G}:{G+1}] op_sel_hi:[1,0,1]
    v_pk_fma_f32 v[{F+2}:{F+3}], v[{F+2}:{F+3}], -2.0, v[{G+2}:{G+3}] op_sel_hi:[1,0,1]
    v_cvt_pk_bf16_f32 v{F}, v{F}, v{F+1}
    v_cvt_pk_bf16_f32 v{F+1}, v{F+2}, v{F+3}
    buffer_store_dwordx2 v[{F}:{F+1}], v{OUT}, s[24:27], 0 offen {cfg['outflags']}
"""

class Compute:
    vTAG, vWA0, vWA1, vXA, vSEND, vLANE, vSENDB, vTMP = range(8)
    ACC = 8; PB = 40; NP = (256 - 40)//4
    def __init__(self, q, cfg):
        self.q, self.cfg = q, cfg
        self.seq = seq = mfma_seq(q, cfg)
        self.grp = groups(cfg)
        self.bar_of = {sg: n for n, g in enumerate(self.grp) for sg in g}
        self.p2 = min(k for k in range(480) if seq[k][2] >= 2); self.p3 = min(k for k in range(480) if seq[k][2] == 3)
        self.tb = self.p2 + cfg["t12"]; self.t3 = self.p3 + cfg["t3"]
        assert self.tb not in (self.t3, self.t3 + 1)
        self.tk = self.p2 - cfg["tagk"]
        self.chk = 480 - cfg["chk_back"]
    def acc(self, c): return self.ACC + 4*c
    def extra(self, g):
        if not self.cfg["borrow"]: return 0
        return (2 if self.cfg["n_early"] == 0 and g < self.p3 - 16 else 0) + (4 if g >= self.p2 + 14 + 2*self.cfg["sgap"] + self.cfg["sgapb"] else 0)

    def plan(self, splits):
        cfg, seq, lead = self.cfg, self.seq, self.cfg["lead"]
        inst = {}; xi = []; wi = []; cur = {}
        for k, (c, sg, ph) in enumerate(seq):
            ds, i = divmod(sg, 15)
            xk = ("x", ds, c+i, ph)
            inst.setdefault(xk, []).append(k); xi.append(xk)
            if (sg, ph) in splits: cur[sg] = ph
            wk = ("w", sg, cur.get(sg, 1))
            inst.setdefault(wk, []).append(k); wi.append(wk)
        occ = {}; head = []
        for k in (self.tb, self.t3, self.t3 + 1, self.tk): occ[k-1] = (("rsv",), 0)
        un = lambda g: {"x": 2, "w": 1}.get(occ[g][0][0], 0) if g in occ else 0
        def place(key, hf, latest):
            cost = {"x": 2, "w": 1}.get(key[0], 0); g = latest
            while g >= 0 and (g in occ or any(sum(un(j) for j in range(a, a+4)) + cost > cfg["wcap"] for a in range(g-3, g+1))): g -= 1
            if g < 0:
                if key[0] != "b": head.append((key, hf))
                return -1
            occ[g] = (key, hf); return g
        issue = {}; lim = BIG
        for sg in range(59, -1, -1):
            key = ("w", sg, 1)
            g1 = place(key, 1, min(inst[key][0] - (cfg["lead0"] if sg < cfg["nlead0"] else lead), lim)); g0 = place(key, 0, g1 - 1)
            issue[key] = g0; lim = g0 - 1
            if self.grp[self.bar_of[sg]][0] == sg: lim = place(("b", self.bar_of[sg]), 0, g0 - 1) - 1
        for key in sorted([k for k in inst if k not in issue], key=lambda k: -inst[k][0]):
            ld = lead if key[-1] == 1 else cfg["lead2"]
            if key[0] == "x": issue[key] = place(key, 0, inst[key][0] - ld)
            else: issue[key] = place(key, 0, place(key, 1, inst[key][0] - ld) - 1)
        head.sort(key=lambda e: (inst[e[0]][0], e[0][0] == "x", e[1]))
        return inst, xi, wi, occ, head, issue

    def choose_splits(self):
        RING = self.cfg["RING"]; splits = set(); phase_of = [s[2] for s in self.seq]
        while True:
            inst, xi, wi, occ, head, issue = self.plan(splits)
            ev = [0]*482
            for key, uses in inst.items():
                ev[issue[key]+1] += 1; ev[uses[-1]+1] -= 1
            live = 0; bad = None
            for g in range(-1, 480):
                live += ev[g+1]
                if live > self.NP + self.extra(g): bad = g; break
            if bad is None: return splits
            best = None
            for key, uses in inst.items():
                if key[0] != "w" or key[1] < 60-RING or key[1] % RING >= RING-4: continue
                prev = [u for u in uses if u <= bad]; nxt = [u for u in uses if u > bad]
                if prev and nxt and phase_of[nxt[0]] != phase_of[prev[-1]] and nxt[0] - bad > self.cfg["lead"] + 6:
                    if best is None or nxt[0] > best[0]: best = (nxt[0], (key[1], phase_of[nxt[0]]))
            assert best, ("register pressure", self.q, bad)
            splits.add(best[1])

    def build(self):
        cfg, q, seq = self.cfg, self.q, self.seq
        RING, safe, h = cfg["RING"], cfg["safe"], q & 1
        grp, bar_of = self.grp, self.bar_of; NB = len(grp)
        self.splits = self.choose_splits()
        inst, xi, wi, occ, backlog, issue = self.plan(self.splits)
        out = []; self.ninst = 0; self.nlds = 0
        def emit(s): out.append("    " + s); self.ninst += 1
        pool = list(range(self.NP)); reg = {}
        take = lambda: self.PB + 4*pool.pop(0)
        lds = []; lastidx = {}
        own_regs = [self.acc(2*q), self.acc(2*q+1)]
        own_free = list(own_regs) if cfg["borrow"] and cfg["n_early"] == 0 else []
        st = dict(covered=0, nbar=0, k=0)
        self.free_bar = {}; self.x1_bar = None; self.x4_bar = None; self.bar_k = []
        pend_free = []; release = {}; lastuse = {}
        for key, uses in inst.items(): release.setdefault(uses[-1], []).append(key)
        for k, (c, sg, ph) in enumerate(seq): lastuse[c] = k
        sends = sorted([max(lastuse[2*d], lastuse[2*d+1]), d] for d in range(4) if d != q)
        tb, t3, chk = self.tb, self.t3, self.chk
        assert t3 + 1 < chk
        Q = []; mf_inst = {}; tagidx = None; x4b = cfg["x4b"]
        def barrier():
            for sg in list(pend_free):
                if lastidx[("w", sg, 1)] < st["covered"]:
                    self.free_bar[sg] = st["nbar"]; pend_free.remove(sg)
            emit("s_barrier"); st["nbar"] += 1; self.bar_k.append(st["k"])
            if cfg["diag"] and not cfg["kst"]:
                for i, sg in enumerate((0, 1, 8, 15, 30, 45, 59)):
                    if bar_of[sg] == st["nbar"]-1: out.append(f"    s_memtime s[{76+2*i}:{77+2*i}]")
        def lds_read(text): emit(text); lds.append(st["k"]-1); return len(lds)-1
        def do_read(key, hf):
            if hf == 0:
                if own_free and inst[key][-1] < self.p3: reg[key] = own_free.pop(0)
                else: reg[key] = take()
            r = reg[key]
            if key[0] == "x":
                _, ds, u, _ = key
                while st["nbar"] <= (x4b if u >= 8 else 0): barrier()
                if ds >= 2 and self.x1_bar is None: self.x1_bar = st["nbar"] - 1
                if u >= 8 and self.x4_bar is None: self.x4_bar = st["nbar"] - 1
                off = (ds >> 1)*XL + (u >> 3)*2*XCH + (u & 7)*128 + (ds & 1)*64
                lastidx[key] = lds_read(f"ds_read_b128 v[{r}:{r+3}], v{self.vXA} offset:{off}")
            else:
                sg = key[1]
                if key[2] == 1:
                    while st["nbar"] <= bar_of[sg]: barrier()
                    if hf: pend_free.append(sg)
                off = (sg % RING)*4096 + 512*hf; va = self.vWA0
                if off >= 65536: off -= 65536; va = self.vWA1
                i = lds_read(f"ds_read_b64_tr_b16 v[{r+2*hf}:{r+2*hf+1}], v{va} offset:{off}")
                if hf: lastidx[key] = i
        def wait_for(idx):
            if idx < st["covered"]: return False
            j = idx
            while j+1 < len(lds) and lds[j+1] <= st["k"] - 1 - (safe if st["k"] < self.p2 else cfg["safe2"]): j += 1
            n = len(lds) - 1 - j
            assert n <= 15, n
            emit(f"s_waitcnt lgkmcnt({n})"); st["covered"] = j+1
            return True
        def kind(t):
            if t.startswith("buffer_store"): return "S"
            if t.startswith(("v_exp", "v_rcp", "v_permlane")): return "t"
            if t.startswith("v_"): return "v"
            return "s"
        def ready():
            if not Q: return False
            t, after = Q[0]
            if after is None: return True
            if after[0] == "k": return st["k"] >= after[1]
            if after[0] == "m": return after[1] in mf_inst and self.ninst - mf_inst[after[1]] >= 8
            return after[1] < st["covered"]
        def missing():
            if Q and Q[0][1] and Q[0][1][0] == "m" and Q[0][1][1] in mf_inst: return 8 - (self.ninst - mf_inst[Q[0][1][1]])
            return 0
        def nop(n): emit(f"s_nop {n-1}"); self.ninst += n-1
        def fill(slots):
            n = min(missing(), slots)
            if n > 0: nop(n); slots -= n
            while ready():
                kd = kind(Q[0][0]); c = 2 if kd == "t" else 1
                if kd == "S" or c > slots: break
                emit(Q.pop(0)[0]); slots -= c
                if Q and Q[0][0] == "|": Q.pop(0); break
        def enq(items, after=None):
            for i, t in enumerate(items): Q.append((t, after if i == 0 else None))
        def act(cc, pk):
            t = T[cc]; a = self.acc(2*q+cc)
            if pk:
                o = [f"v_pk_fma_f32 v[{t+j}:{t+j+1}], v[{a+j}:{a+j+1}], s[36:37], v[{t+j}:{t+j+1}]" for j in (0, 2)]
                one = [f"v_pk_add_f32 v[{t+j}:{t+j+1}], v[{t+j}:{t+j+1}], 1.0 op_sel_hi:[1,0]" for j in (0, 2)]
            else:
                o = [f"v_fmac_f32 v{t+j}, s36, v{a+j}" for j in range(4)]
                one = [f"v_add_f32 v{t+j}, 1.0, v{t+j}" for j in range(4)]
            return o, [f"v_exp_f32 v{t+j}, v{t+j}" for j in range(4)], one, [f"v_rcp_f32 v{t+j}, v{t+j}" for j in range(4)]
        XB = xbase(cfg); L, TM = self.vLANE, self.vTMP
        enq([f"s_lshl_b32 s12, s10, 10", f"v_lshl_add_u32 v{self.vSEND}, v{L}, 4, s12",
             "s_lshl_b32 s58, s9, 2", f"v_and_b32 v{self.vSENDB}, 31, v{L}", f"v_mul_u32_u24 v{self.vTAG}, {TAGK:#x}, v{self.vSENDB}", f"v_lshrrev_b32 v{TM}, 5, v{L}",
             "s_lshl_b32 s12, s10, 9", f"s_add_u32 s12, s12, {cfg['BO']}", f"v_lshl_add_u32 v{self.vSENDB}, v{self.vSENDB}, 4, s12",
             f"v_lshl_or_b32 v{self.vSENDB}, v{TM}, 31, v{self.vSENDB}",
             f"s_mul_i32 s12, s9, {cfg['GS']}"] +
            [f"s_add_u32 s{40+d}, s12, {cfg['wsoff'] + (3*d + (d ^ q) - 1)*cfg['SS']}" for d in range(4) if d != q] +
            [f"s_add_u32 s44, s12, {cfg['wsoff'] + (3*q + 1)*cfg['SS']}", "s_mov_b32 s13, 0", "s_mov_b32 s14, 0",
             f"s_mov_b32 s36, {f2u(-LOG2E if h else 2*LOG2E):#x}", "s_mov_b32 s37, s36",
             "s_add_u32 s24, s24, s8", "s_addc_u32 s25, s25, 0"], ("k", 14))
        ldT = f"buffer_load_dword v{TM}, off, s[32:35], s58 sc1"
        chkT = ["s_waitcnt vmcnt(0)", f"v_cmp_eq_u32 vcc, 0, v{TM}"]
        started = set(); early0 = cfg["chainl"] >= 4
        for k in range(480):
            g = k-1; st["k"] = k
            c, sg, ph = seq[k]
            while sends and sends[0][0] < k:
                e, d = sends.pop(0); a0 = self.acc(2*d); a1 = a0 + 4
                enq([f"v_cvt_pk_bf16_f32 v{a0}, v{a0}, v{a0+1}", f"v_cvt_pk_bf16_f32 v{a0+1}, v{a0+2}, v{a0+3}",
                     f"v_cvt_pk_bf16_f32 v{a0+2}, v{a1}, v{a1+1}", f"v_mov_b32 v{a0+3}, v{self.vTAG}",
                     f"buffer_store_dwordx4 v[{a0}:{a0+3}], v{self.vSEND}, s[28:31], s{40+d} offen sc1",
                     f"v_cvt_pk_bf16_f32 v{a1}, v{a1+2}, v{a1+3}", f"v_cvt_pk_bf16_f32 v{a1+1}, v{a1+2}, v{a1+3}",
                     f"v_mov_b32 v{a1+2}, v{self.vTAG}", "s_nop 0",
                     f"v_permlane32_swap_b32 v{a1}, v{a1+1}",
                     f"buffer_store_dwordx4 v[{a1}:{a1+3}], v{self.vSENDB}, s[28:31], s{40+d} offen sc1"], ("m", e))
                if not sends:
                    HW, HR, OUT = a0+1, a0+2, a0+3
                    enq([x.strip() for x in final_addr(cfg, L, TM, a0, HW, HR, OUT, "s10", 1, h, q).strip().split("\n")])
            if k == chk:
                T = [take(), take()]
                chkP = ["s_waitcnt vmcnt(0)", f"v_cmp_ne_u32 vcc, v{P+3}, v{self.vTAG}", f"v_cmp_ne_u32 s[56:57], v{PB2+2}, v{self.vTAG}",
                        "s_or_b32 s56, s56, vcc_lo", "s_or_b32 s56, s56, vcc_hi"]
                enq(chkP[:3] + ["|", chkP[3], chkP[4], f"s_cbranch_scc1 L_again{q}\nL_fin{q}:", f"v_permlane32_swap_b32 v{PB2}, v{PB2+1}"])
                for cc in (0, 1):
                    for j in (0, 1):
                        t = T[cc] + 2*j; src = P + 2*cc + j if 2*cc + j < 3 else PB2
                        enq([f"v_lshlrev_b32 v{t}, 16, v{src}", f"v_and_b32 v{t+1}, 0xffff0000, v{src}"])
                    enq([f"v_mul_f32 v{T[cc]+j}, s36, v{T[cc]+j}" for j in range(4)])
                if early0: enq(sum(act(0, False), []), ("m", lastuse[2*q]))
            item = occ.get(g)
            if item and item[0][0] in "xw": backlog.append(item); item = None
            if k == 0:
                for _ in range(cfg["burst0"]):
                    cand = [e for e in backlog if not (e[0][0] == "x" and e[0][2] >= 8) and not (e[0][0] == "w" and e[0][1] > 0)]
                    if cand: backlog.remove(cand[0]); do_read(*cand[0])
            late = xi[k] not in lastidx or wi[k] not in lastidx
            waited = False
            if not late: waited = wait_for(max(lastidx[xi[k]], lastidx[wi[k]]))
            if not waited and Q and Q[0][1] and Q[0][1][0] == "l" and lds[Q[0][1][1]] <= g - safe: waited = wait_for(Q[0][1][1])
            if not waited and ready() and kind(Q[0][0]) == "s" and not item:
                emit(Q.pop(0)[0]); waited = True
            if not waited and missing() > 0 and not item: nop(1); waited = True
            cand = [e for e in backlog if not (e[0][0] == "x" and e[0][2] >= 8 and st["nbar"] <= x4b)
                    and not (k < cfg["w1at"] and e[0][0] == "w" and e[0][1] > 0)] if k else []
            if k == tb or (item and item[0][0] == "b" and item[0][1] == st["nbar"]):
                if k == tb: assert st["nbar"] == NB
                barrier()
                if not waited: fill(1)
            elif k == self.tk:
                assert not Q
                emit(ldT)
                enq(chkT[:2] + ["|", f"s_cbranch_vccnz L_tagw{q}\nL_tagok{q}:", f"v_add_u32 v{self.vTAG}, v{TM}, v{self.vTAG}"], ("k", self.p2 - cfg["tagc"]))
            elif k in (t3, t3+1):
                if k == t3:
                    assert not sends and not Q
                    P = take(); PB2 = take()
                    ldP = [f"buffer_load_dwordx4 v[{P}:{P+3}], v{self.vSEND}, s[28:31], s44 offen sc1",
                           f"buffer_load_dwordx4 v[{PB2}:{PB2+3}], v{self.vSENDB}, s[28:31], s44 offen sc1"]
                emit(ldP[k-t3])
            else:
                slots = 2
                if ready() and kind(Q[0][0]) == "S" and k - st.get("lastS", -99) >= (cfg["sgap"] if st.get("nS", 0) & 1 else cfg["sgapb"]):
                    t = Q.pop(0)[0]; emit(t); slots = 4; st["lastS"] = k; st["nS"] = st.get("nS", 0) + 1
                    if cfg["borrow"] and st["nS"] <= 4: release.setdefault(k, []).append(("s", st["nS"])); reg[("s", st["nS"])] = int(re.match(r"\S+ v\[(\d+)", t).group(1))
                if cand:
                    backlog.remove(cand[0]); do_read(*cand[0]); slots -= 1
                    if len(cand) > 2: backlog.remove(cand[1]); do_read(*cand[1]); slots -= 1
                fill(slots)
            if late:
                while xi[k] not in lastidx or wi[k] not in lastidx: do_read(*backlog.pop(0))
                wait_for(max(lastidx[xi[k]], lastidx[wi[k]]))
            a = self.acc(c); wr = reg[wi[k]]; xr = reg[xi[k]]
            cs = f"v[{a}:{a+3}]" if c in started else "0"
            started.add(c)
            emit(f"v_mfma_f32_16x16x32_bf16 v[{a}:{a+3}], v[{wr}:{wr+3}], v[{xr}:{xr+3}], {cs}")
            mf_inst[k] = self.ninst
            if k in cfg["bub"]: out.append(f"    s_sleep {cfg['bub'][k]}")
            if cfg["duty"] and cfg["duty"][0] <= k < cfg["duty"][1] and k % cfg["duty"][2] == 0: out.append("    s_nop 7")
            if cfg["diag"] and cfg["kst"] and k in cfg["kst"]: out.append(f"    s_memtime s[{76+2*cfg['kst'].index(k)}:{77+2*cfg['kst'].index(k)}]")
            for key in release.get(k, []):
                if reg[key] in own_regs: own_free.append(reg[key])
                else: pool.append((reg[key] - self.PB)//4)
        assert st["nbar"] == NB + 1 and not backlog
        self.nlds = len(lds); self.left = len(Q)
        st["k"] = 490
        def drain():
            while Q:
                if missing() > 0: nop(missing())
                t, after = Q.pop(0)
                if t != "|": emit(t)
        if cfg["diag"]: emit("s_memtime s[70:71]")
        wr = lambda cc: f"ds_write_b128 v{HW}, v[{T[cc]}:{T[cc]+3}] offset:{cc*HCS}"
        A1 = act(1, True)
        if early0:
            drain(); enq(A1[0], ("m", lastuse[2*q+1])); enq([wr(0)] + A1[1] + A1[2] + A1[3])
        else:
            A0 = act(0, True)
            enq(A0[0], ("m", lastuse[2*q])); enq(A0[1]); enq(A1[0], ("m", lastuse[2*q+1]))
            enq(A0[2] + A0[3] + A1[1] + [wr(0)] + A1[2] + A1[3])
        enq(["s_nop 0", wr(1)]); drain()
        for x in final_stage(cfg, HR, OUT, take(), take()).strip().split("\n"): emit(x.strip())
        self.again = f"""L_again{q}:
    s_add_u32 s13, s13, 1
    s_cmp_ge_u32 s13, {cfg["spin"]}
    s_cbranch_scc1 L_fin{q}
""" + "".join(f"    {x}\n" for x in ldP + chkP) + f"""    s_cbranch_scc1 L_again{q}
    s_branch L_fin{q}
L_tagw{q}:
    s_add_u32 s14, s14, 1
    s_cmp_ge_u32 s14, {cfg["spin"]}
    s_cbranch_scc1 L_tagok{q}
""" + "".join(f"    {x}\n" for x in [ldT] + chkT) + f"""    s_cbranch_vccnz L_tagw{q}
    s_branch L_tagok{q}
"""
        return "\n".join(out) + "\n"

DIAG_ST = """    s_lshl_b32 s12, s2, 3
    s_add_u32 s12, s12, s3
    s_lshl_b32 s12, s12, 8
    s_add_u32 s12, s12, 0x800000
    v_mbcnt_lo_u32_b32 v25, -1, 0
    v_mbcnt_hi_u32_b32 v25, -1, v25
    v_lshlrev_b32 v25, 2, v25
    buffer_store_dword v24, v25, s[28:31], s12 offen
"""

def gen(**kw):
    cfg = dict(DEF); cfg.update(kw)
    RING = cfg["RING"]; diag = cfg["diag"]
    comps = [Compute(q, cfg) for q in range(4)]
    bodies = [c.build() for c in comps]
    free_bar = {sg: max(c.free_bar[sg] for c in comps) for sg in range(60 - RING)}
    x1_bar = min(c.x1_bar for c in comps); x4_bar = min(c.x4_bar for c in comps)
    XBASE = xbase(cfg); lds = XBASE + 2*XL
    info = [f"generated by gen11.py  cfg={cfg}",
            f"re-reads {[len(c.splits) for c in comps]} lds reads {[c.nlds for c in comps]} left {[c.left for c in comps]} x1_bar={x1_bar} x4_bar={x4_bar}"]
    RAMP = "    s_mov_b32 s12, 0x9e3779b1\n    v_add_u32 v40, 77, v0\n" + "".join(f"    v_mul_lo_u32 v{41+i}, v{40+i}, s12\n" for i in range(8)) + "".join(f"    v_and_b32 v{41+i}, 0xbfffbfff, v{41+i}\n" for i in range(0)) + f"""    s_mov_b32 s12, 0
L_ramp:
    v_mfma_f32_16x16x32_bf16 v[8:11], v[42:45], v[44:47], 0
    v_mfma_f32_16x16x32_bf16 v[12:15], v[44:47], v[42:45], 0
    s_add_u32 s12, s12, 1
    s_cmp_lt_u32 s12, {cfg["ramp"]}
    s_cbranch_scc1 L_ramp
"""
    s = """    s_cmp_ge_u32 s2, 256
    s_cbranch_scc1 L_end
"""
    if diag: s += "    s_memrealtime s[94:95]\n    s_memtime s[96:97]\n"
    s += f"""    s_load_dwordx2 s[16:17], s[0:1], 0      ; x
    s_load_dwordx2 s[20:21], s[0:1], 8      ; w
    s_load_dwordx2 s[28:29], s[0:1], 32     ; ws
    s_load_dwordx2 s[24:25], s[0:1], 16     ; out
    s_load_dwordx2 s[32:33], s[0:1], 24     ; debug
    v_lshrrev_b32 v1, 6, v0
    v_and_b32 v0, 63, v0                    ; lane
    v_readfirstlane_b32 s3, v1              ; wave
    s_and_b32 s4, s2, 3
    s_lshr_b32 s9, s2, 2                    ; group
"""
    if cfg["mapping"] == "a":
        s += "    s_and_b32 s5, s9, 1                     ; batch\n    s_bfe_u32 s6, s2, 0x20003\n"
    else:
        s += "    s_and_b32 s6, s9, 3\n    s_bfe_u32 s5, s2, 0x10004               ; batch\n"
    s += f"""    s_lshr_b32 s7, s2, 5
    s_mov_b32 s18, 512000
    s_mov_b32 s19, 0x20000
    s_mul_i32 s8, s5, s18
    s_mov_b32 s22, 3932160
    s_mov_b32 s23, s19
    s_mov_b32 s26, s18
    s_mov_b32 s27, s19
    s_mov_b32 s30, {(64<<20) if diag else cfg['wsoff'] + 64*cfg['GS']}
    s_mov_b32 s31, s19
    s_movk_i32 s34, 256
    s_mov_b32 s35, s19
    s_movk_i32 s39, 0x4000
    s_cmp_lt_u32 s3, 4
    s_cbranch_scc1 L_loader
    s_getpc_b64 s[46:47]
L_pc:
    s_and_b32 s10, s3, 3                    ; wave & 3
    s_lshr_b32 s12, s2, 3
    s_lshl2_add_u32 s12, s12, s10
    s_lshl_b32 s12, s12, 6
    s_and_b32 s13, s12, 0xfc0
    s_load_dword s54, s[46:47], s13
    s_lshl_b32 s13, s4, 13
    s_add_u32 s12, s12, s13
    s_add_u32 s12, s12, L_role0-L_pc
    s_load_dword s55, s[46:47], s12
    v_and_b32 v8, 15, v0
    v_lshrrev_b32 v9, 4, v0                 ; k chunk
    v_mul_u32_u24 v3, {XCH}, v8
    v_lshl_add_u32 v3, v9, 4, v3
    v_add_u32 v3, {XBASE}, v3
    v_lshrrev_b32 v10, 2, v8
    v_lshl_add_u32 v10, v9, 3, v10          ; k row
    v_lshrrev_b32 v11, 3, v8
    v_and_b32 v12, 1, v9
    v_lshl_or_b32 v11, v12, 1, v11          ; swizzle
    v_xor_b32 v11, s10, v11
    v_lshl_add_u32 v10, v10, 2, v11
    v_and_b32 v12, 3, v8
    v_lshl_add_u32 v1, v10, 2, v12
    v_lshlrev_b32 v1, 3, v1
    v_add_u32 v2, 0x10000, v1
    v_mov_b32 v5, v0
{RAMP if cfg["ramp"] else ""}
    s_mov_b64 exec, 0
    s_cmp_eq_u32 s10, 0
    s_cbranch_scc1 L_padL0
L_disp:
    s_cmp_eq_u32 s4, 1
    s_cbranch_scc1 L_role1
    s_cmp_eq_u32 s4, 2
    s_cbranch_scc1 L_role2
    s_cmp_eq_u32 s4, 3
    s_cbranch_scc1 L_role3
    s_branch L_role0
L_loader:
    s_lshr_b32 s11, s4, 1                   ; d half
    s_lshr_b32 s13, s3, 1
    s_lshl3_add_u32 s12, s7, s13
    s_and_b32 s13, s3, 1
    s_lshl4_add_u32 s12, s12, s13
    s_sub_u32 s12, s12, 28
    s_lshl1_add_u32 s12, s12, s11
    s_lshl_b32 s12, s12, 8
    v_lshrrev_b32 v2, 3, v0
    v_lshlrev_b32 v2, 10, v2
    v_and_b32 v3, 7, v0
    v_lshlrev_b32 v3, 4, v3
    v_add3_u32 v8, v2, v3, s12
    v_add_u32 v9, s39, v8
    v_add_u32 v10, s39, v9
    v_add_u32 v11, s39, v10
    v_add_u32 v12, s39, v11
    s_lshl_b32 s13, s13, 6
    v_and_b32 v4, 16, v0
    v_lshlrev_b32 v4, 1, v4
    v_or_b32 v4, s13, v4
    v_xor_b32 v3, v3, v4
    s_and_b32 s14, s4, 1
    s_lshl2_add_u32 s14, s14, s6            ; h*4 + ct
    s_lshl_b32 s15, s11, 10
    s_add_u32 s15, s15, s14
    s_lshl_b32 s15, s15, 7
    s_lshl_b32 s37, s3, 10
    s_lshl3_add_u32 s12, s37, s15
    v_add3_u32 v7, v2, v3, s12              ; w offset
    s_mul_i32 s36, s3, {XCH}
    s_add_u32 s36, s36, {XBASE}
    s_movk_i32 s51, 0x1000
    s_mov_b32 s52, 0x40000
    s_mov_b32 m0, s36
"""
    order = []; nw = [0]
    def add(tok):
        if tok == "w":
            order.append(("w", nw[0])); nw[0] += 1
            for t in cfg["ins"].get(nw[0]-1, []): add(t)
        elif tok[0] == "x": order.append(("x", 0, int(tok[1])))
        elif tok[0] == "y": order.append(("x", 1, int(tok[1])))
        elif tok == "PX": order.append(("px",))
        elif tok == "T": order.extend([("t", 0), ("t", 1), ("t", 2)] + [("t", 3)]*cfg["tb64"])
        elif tok[0] == "P": order.append(("p",) + tuple(int(v) for v in tok.split(":")[1:]))
        else: raise ValueError(tok)
    for t in cfg["pre"]: add(t)
    K0 = len(order)
    while nw[0] < 60: add("w")
    areg = {op: 56 + i for i, op in enumerate(o for o in order if o[0] in ("p", "px"))}
    pst = dict(done=False)
    def addr_asm(op):
        r = areg[op]
        if op[0] == "p":
            _, a, b = op
            t = ""
            if not pst["done"]:
                pst["done"] = True
                if cfg["mapping"] == "a":
                    t = """    s_lshl3_add_u32 s60, s5, s7
    s_and_b32 s13, s3, 1
    s_lshl1_add_u32 s60, s60, s13
    s_lshl_b32 s60, s60, 10
    s_add_u32 s60, s60, s15
"""
                else:
                    t = """    s_lshr_b32 s60, s2, 3
    s_lshl_b32 s60, s60, 10
    s_add_u32 s60, s60, s15
    s_lshl_b32 s13, s13, 2
    s_xor_b32 s60, s60, s13
"""
                t += "    s_lshr_b32 s61, s3, 1\n    v_bfrev_b32 v19, 1\n"
            return t + f"""    s_add_u32 s12, s61, {a}
    v_lshl_add_u32 v20, v0, 1, s12          ; stage
    v_mul_u32_u24 v21, 4370, v20
    v_lshrrev_b32 v21, 16, v21              ; d step
    v_mul_u32_u24 v21, {15*262144-32768}, v21
    v_cmp_gt_u32 vcc, {b}, v20
    v_lshl_add_u32 v20, v20, 18, s60
    v_sub_u32 v21, v20, v21
    v_cndmask_b32 v{r}, v19, v21, vcc
"""
        return f"""    s_lshl2_add_u32 s12, s14, s3
    s_lshl_b32 s12, s12, 11
    s_lshl_b32 s13, s7, 8
    s_add_u32 s13, s13, s11
    s_lshl_b32 s13, s13, 8
    s_add_u32 s12, s12, s13
    s_addk_i32 s12, 128
    v_cmp_gt_u32 vcc, 4, v0
    v_lshl_add_u32 v21, v0, 9, s12
    v_bfrev_b32 v20, 1
    v_cndmask_b32 v{r}, v20, v21, vcc
"""
    for op in order[:K0]:
        if op in areg: s += addr_asm(op)
    s += """    s_waitcnt lgkmcnt(0)
    s_add_u32 s16, s16, s8
    s_addc_u32 s17, s17, 0
"""
    if diag: s += "    s_memtime s[98:99]\n"
    ms = dict(m0=("x", 0))
    def setm0(kind, off):
        prev = ms["m0"]; ms["m0"] = (kind, off)
        if prev == (kind, off): return ""
        if prev[0] == kind and off - prev[1] == 4096: return "    s_add_u32 m0, m0, s51\n"
        if prev[0] == kind and abs(off - prev[1]) < 32768: return f"    s_addk_i32 m0, {off - prev[1]}\n"
        return f"    s_add_u32 m0, {'s36' if kind == 'x' else 's37'}, {off}\n"
    def op_asm(op):
        if op[0] == "x":
            _, L, m = op
            t = setm0("x", L*(XL-128) + 4*m*XCH)
            return t + ("    s_nop 0\n" if t else "") + f"    buffer_load_dwordx4 v{8+m}, s[16:19], 0 offen offset:{128*L} lds\n"
        if op[0] == "w":
            sg = op[1]; ds, i = divmod(sg, 15)
            so = "    s_add_u32 s38, s38, s52\n" if i else f"    s_mov_b32 s38, {ds*32768}\n"
            return setm0("w", (sg % RING)*4096) + so + "    buffer_load_dwordx4 v7, s[20:23], s38 offen lds\n"
        if op[0] == "p": return f"    buffer_load_dword v23, v{areg[op]}, s[20:23], 0 offen\n"
        if op[0] == "px": return f"    buffer_load_dword v23, v{areg[op]}, s[16:19], 0 offen\n"
        return ["    buffer_load_dword v23, off, s[28:31], s62\n", "    buffer_load_dword v23, off, s[24:27], 0\n",
                "    buffer_load_dword v16, off, s[32:35], s58 sc1\n",
                "    s_add_u32 s12, s62, 0x10000\n    buffer_load_dword v23, off, s[28:31], s12\n"][op[1]]
    woff = lambda sg: (sg % 15)*262144 + (sg//15)*32768
    SL = []
    if cfg["sx"]:
        SL += [f"    s_buffer_load_dwordx2 s[54:55], s[16:19], s53 offset:{512*i + 188}\n" for i in range(4)]
    prev = (0, 0)
    for sg in range(cfg["sfrom"], 60, 2):
        cur = (woff(sg), woff(min(sg+1, 59))); dA, dB = cur[0]-prev[0], cur[1]-prev[1]; prev = cur
        t = f"    s_add_u32 s60, s60, {'s63' if dA == 524288 else hex(dA & 0xffffffff)}\n"
        if dA != dB: t += f"    s_mul_i32 s12, s61, {hex((dB-dA) & 0xffffffff)}\n    s_add_u32 s60, s60, s12\n"
        t += f"    s_xor_b32 s12, s60, {((len(SL)*cfg['srow']) & 31) << 10}\n"
        SL.append(t + "    s_buffer_load_dwordx2 s[54:55], s[20:23], s12 offset:60\n")
    if cfg["sx"] and cfg["sxpos"]: SL = SL[4:4+cfg["sxpos"]] + SL[:4] + SL[4+cfg["sxpos"]:]
    later = f"""; while the first loads are under way: the group's first wave reads the tag an earlier launch may have left;
; everybody touches the hand-off and output pages once (address translation)
    s_mul_i32 s48, s9, {cfg["GS"]}
{f"    s_add_u32 s48, s48, {cfg['wsoff']}" if cfg["wsoff"] else ""}
    s_add_u32 s62, s48, {12*cfg["SS"]}         ; a line of the group's area that is never written
    s_load_dwordx2 s[54:55], s[28:29], s62 offset:60
    s_load_dwordx2 s[54:55], s[24:25], 60
{"    s_load_dwordx2 s[54:55], s[28:29], s62 offset:0x1003c" if cfg["tb64"] else ""}
    s_lshl_b32 s58, s9, 2
    s_or_b32 s59, s3, s4
    s_cbranch_scc1 L_np0
    s_load_dword s56, s[28:29], s48 offset:{3*cfg['SS'] + 12} glc
    s_memrealtime s[44:45]
L_np0:
    s_lshl3_add_u32 s53, s7, s14
    s_lshl2_add_u32 s53, s53, s3
    s_lshl3_add_u32 s53, s53, s11
    s_lshl_b32 s53, s53, 8
    s_lshl_b32 s63, s52, 1
""" + "".join(addr_asm(op) for op in order[K0:] if op in areg) + """    s_lshl_b32 s12, s61, 14
    s_xor_b32 s60, s60, s12
"""
    pollprep = f"""    v_and_b32 v18, 31, v0
    v_mul_u32_u24 v15, {TAGK:#x}, v18
    v_lshl_add_u32 v13, v0, 4, s37          ; lane*16 + wave*1024
    s_lshr_b32 s12, s37, 1
    s_add_u32 s12, s12, {cfg["BO"]}
    v_lshl_add_u32 v17, v18, 4, s12
    v_lshrrev_b32 v18, 5, v0
    v_lshl_or_b32 v17, v18, 31, v17         ; 64K + lane*16 + wave*512, out of range for the upper half
    s_mul_i32 s12, s4, {3*cfg["SS"]}
    s_add_u32 s48, s48, s12                 ; slots (dst=me, src=partner of the other half)
    s_add_u32 s50, s48, {2*cfg["SS"]}
    s_bitcmp1_b32 s4, 0                     ; own half is g -> other is f
    s_mov_b32 s40, {f2u(-LOG2E):#x}
    s_cselect_b32 s40, {f2u(2*LOG2E):#x}, s40
    s_mov_b32 s41, 0xffff0000
    s_add_u32 s24, s24, s8
    s_addc_u32 s25, s25, 0
""" + final_addr(cfg, 0, 20, 21, 14, 19, 22, "s3", 0, None, None) + """    s_mov_b32 s13, 0
    s_waitcnt vmcnt(0)
    v_cmp_eq_u32 vcc, 0, v16
    s_cbranch_vccnz L_tag
L_tagok:
    v_add_u32 v15, v16, v15                 ; tag of this lane
""" + ("    s_mov_b32 s92, s13\n" if diag else "")
    issued = []; oi = 0
    grp = groups(cfg); NB = len(grp); bar_of = comps[0].bar_of
    stamps = {}
    tbar = [16*min(c.bar_k[n] for c in comps) for n in range(NB)]
    can = lambda op, nb: not (op[0] == "w" and op[1] >= RING and nb <= free_bar[op[1]-RING])
    cost = lambda op: (cfg["opc0"][1] if cfg["opc0"] and op[0] == "w" and op[1] < cfg["opc0"][0] else cfg["opc"]) if op[0] in ("w", "x") else (3*(op[2]-op[1]) if op[0] == "p" else 30)
    tpipe = 0; tta = 0; shift = 0; done_t = {}; sched = []
    for n in range(NB):
        needs = [("w", grp[n][-1])] + [("x", 0, m) for m in range(4)]
        if n >= x4_bar: needs.append(("x", 0, 4))
        if n >= x1_bar: needs += [("x", 1, m) for m in range(5)]
        cnt = 0; now = tbar[n-1] + shift if n else 0
        while oi < len(order) and can(order[oi], n):
            op = order[oi]
            forced = any(x not in issued for x in needs)
            ta = max(tta, now + 20) + cost(op)
            if n in cfg["quota"] and not forced:
                if cnt >= cfg["quota"][n]: break
            elif n > 0 and not forced:
                wait = max(done_t[x] for x in needs)
                nxt = max(tbar[n] + shift, wait)
                if ta > nxt + cfg["slack"] or sum(d > ta for d in done_t.values()) >= (cfg["cap2"] if wait - now > 400 else cfg["cap"]): break
            if n == 0 and not forced and cnt >= K0: break
            s += op_asm(op); issued.append(op); oi += 1; cnt += 1
            if n == 0:
                if not forced: tpipe += cost(op) + (cfg["ev0"] if op[0] == "p" else 0)
            else:
                tta = ta
                tpipe = max(tpipe + cost(op), ta + (cfg["ev"] if op[0] == "p" else cfg["lat"]))
            done_t[op] = tpipe
        if n == 0:
            sz0 = tsize(s)
            if diag: s += "    s_memtime s[88:89]\n"
            s += later
            if cfg['lramp']: s += RAMP.replace('L_ramp', 'L_ramp2').replace(f"s12, {cfg['ramp']}\n    s_cbranch", f"s12, {cfg['lramp']}\n    s_cbranch").replace('v[8:11]', 'v[60:63]').replace('v[12:15]', 'v[64:67]')
        if n == 1:
            s += f"""    s_cmp_lg_u32 s59, 0
    s_cbranch_scc1 L_np1
    s_waitcnt lgkmcnt(0)
    s_bfe_u32 s44, s44, 0x1c0000
    s_lshl1_add_u32 s56, s44, s56
    s_add_u32 s56, s56, 2.0
    s_bitset1_b32 s56, 0
    s_atomic_swap s56, s[32:33], s58
L_np1:
"""
        for _ in range(cfg["ssch"].get(n, 0) if cfg["ssch"] else cfg["s0"] if n == 0 else cfg["s1"] if n == 1 else int(n >= cfg["s2"])):
            if SL: s += SL.pop(0)
        need = max(issued.index(x) for x in needs)
        shift = max(shift, done_t[issued[need]] - tbar[n])
        vm = len(issued) - 1 - need
        sched.append((cnt, vm, shift))
        assert vm <= 63
        s += f"    s_waitcnt vmcnt({vm})\n"
        s += "    s_barrier\n"
        if n == 0: sz0 = tsize(s)
        if diag:
            for i in stamps.get(n, []): s += f"    s_memtime s[{64+2*i}:{65+2*i}]\n"
    assert oi == len(order) and not SL
    info.append(f"loader (issued, vmcnt, modelled stall) per barrier: {sched}")
    polls = """    buffer_load_dwordx4 v[24:27], v13, s[28:31], s48 offen sc1
    buffer_load_dwordx4 v[32:35], v17, s[28:31], s48 offen sc1
    buffer_load_dwordx4 v[28:31], v13, s[28:31], s50 offen sc1
    buffer_load_dwordx4 v[36:39], v17, s[28:31], s50 offen sc1
"""
    s += pollprep + "    s_mov_b32 s13, 0\n    s_barrier\n"
    if diag: s += "    s_memtime s[80:81]\n"
    s += polls + f"""    s_setprio {cfg["lprio"]}
L_poll:
    s_waitcnt vmcnt(0)
    v_cmp_ne_u32 vcc, v27, v15
    v_cmp_ne_u32 s[44:45], v34, v15
    v_cmp_ne_u32 s[46:47], v31, v15
    v_cmp_ne_u32 s[54:55], v38, v15
    s_or_b32 s46, s46, s44
    s_or_b32 s46, s46, s54
    s_or_b64 vcc, vcc, s[46:47]
    s_cbranch_scc1 L_repoll
L_got:
"""
    if diag: s += "    s_memtime s[82:83]\n    s_add_u32 s93, s13, 1\n"
    s += "    v_permlane32_swap_b32 v32, v33\n    v_permlane32_swap_b32 v36, v37\n"
    for cc in (0, 1):
        R = range(4*cc, 4*cc+4)
        for j in (2*cc, 2*cc+1):
            ra, rb = (24+j, 28+j) if j < 3 else (32, 36)
            s += f"    v_lshlrev_b32 v{40+2*j}, 16, v{ra}\n    v_and_b32 v{41+2*j}, s41, v{ra}\n"
            s += f"    v_lshlrev_b32 v{48+2*j}, 16, v{rb}\n    v_and_b32 v{49+2*j}, s41, v{rb}\n"
        for j in R: s += f"    v_add_f32 v{40+j}, v{40+j}, v{48+j}\n"
        for j in R: s += f"    v_mul_f32 v{40+j}, s40, v{40+j}\n"
        for j in R: s += f"    v_exp_f32 v{40+j}, v{40+j}\n"
        for j in R: s += f"    v_add_f32 v{40+j}, 1.0, v{40+j}\n"
        for j in R: s += f"    v_rcp_f32 v{40+j}, v{40+j}\n"
        s += f"    s_nop 0\n    ds_write_b128 v14, v[{40+4*cc}:{43+4*cc}] offset:{HCS*cc}\n"
    fs = final_stage(cfg, 19, 22, 24, 28)
    if diag:
        fs = fs.replace("    s_barrier\n", "    s_memtime s[86:87]\n    s_barrier\n    s_memtime s[84:85]\n")
        fs += "    s_waitcnt vmcnt(0)\n    s_memrealtime s[90:91]\n    s_branch L_diagL\n"
        diagL = "L_diagL:\n    s_waitcnt lgkmcnt(0)\n    v_mov_b32 v24, 0\n"
        vals = ["s94", "s98"] + [f"s{64+2*i}" for i in range(11)] + ["s92", "s93", "s86", "s88", "s88", "s90"]
        for i, r in enumerate(vals):
            if 1 <= i <= 12 or i in (15, 16): diagL += f"    s_sub_u32 {r}, {r}, s96\n"
            diagL += f"    v_writelane_b32 v24, {r}, {i}\n"
        diagL += DIAG_ST + "    s_endpgm\n"
    s += fs
    s += "L_end:\n    s_endpgm\n"
    slow = f"""L_repoll:
    s_add_u32 s13, s13, 1
    s_cmp_ge_u32 s13, {cfg["spin"]}
    s_cbranch_scc1 L_got
""" + polls + "    s_branch L_poll\n"
    slow2 = f"""L_tag:
    s_add_u32 s13, s13, 1
    s_cmp_ge_u32 s13, {cfg["spin"]}
    s_cbranch_scc1 L_tagok
    buffer_load_dword v16, off, s[32:35], s58 sc1
    s_waitcnt vmcnt(0)
    v_cmp_eq_u32 vcc, 0, v16
    s_cbranch_vccnz L_tag
    s_branch L_tagok
"""
    s += slow
    npl = (tsize(s) - 64)//1024
    page0, end0 = add_pads(s, [f"L_padL{k}" for k in range(npl)], [f"L_padL{k+1}" for k in range(npl-1)] + ["L_disp"], lambda L, i: True)
    assert end0 <= 4096, end0
    sizes = [sz0, end0]; roles = ""
    for q in range(4):
        s = f"""    s_cmp_eq_u32 s10, 1
    s_cbranch_scc1 L_pad{q}_0
    s_cmp_eq_u32 s10, 2
    s_cbranch_scc1 L_pad{q}_1
    s_cmp_eq_u32 s10, 3
    s_cbranch_scc1 L_pad{q}_2
    s_branch NPD0
L_main{q}:
    s_mov_b64 exec, -1
    s_setprio {cfg["prio"]}
""" + ("    s_memtime s[72:73]\n    s_waitcnt lgkmcnt(0)\n    s_memtime s[74:75]\n" if diag else "") + "    s_waitcnt lgkmcnt(0)\n" + bodies[q]
        if diag: s += "    s_memtime s[64:65]\n    s_waitcnt vmcnt(0)\n    s_memtime s[66:67]\n    s_memrealtime s[68:69]\n    s_branch L_diagC\n"
        s += "    s_endpgm\n" + comps[q].again + (slow2 if q == 3 else "")
        npd = 7 if tsize(s) + 24 >= 7168 + 64 else 6
        if cfg["touch"] < 3: npd = 3*(cfg["touch"] - 1)
        if npd == 0: s = s[s.index("    s_branch NPD0"):]
        s = s.replace("NPD0", f"L_pad{q}_6" if npd == 7 else f"L_main{q}")
        s, end = add_pads(s, [f"L_pad{q}_{k}" for k in range(npd)], [f"L_pad{q}_{k+3}" if k < 3 and k+3 < npd else f"L_main{q}" for k in range(npd)],
                          lambda L, i: L[i].strip().startswith("v_mfma") and L[i-1].strip().startswith("v_mfma"))
        assert end <= 8192, end
        sizes.append(end)
        roles += f".p2align 12\nL_role{q}:\n" + s
    if diag:
        roles += ".p2align 12\nL_diagC:\n    s_waitcnt lgkmcnt(0)\n    v_mov_b32 v24, 0\n"
        for i, r in enumerate(["s94", "s64", "s66", "s68", "s70", "s13", "s72", "s74"] + [f"s{76+2*j}" for j in range(7)]):
            if i in (1, 2, 4) or i > 5: roles += f"    s_sub_u32 {r}, {r}, s96\n"
            roles += f"    v_writelane_b32 v24, {r}, {i}\n"
        roles += DIAG_ST + "    s_endpgm\n" + diagL
    info.append(f"code bytes: {sizes}")
    s = "".join(f"; {l}\n" for l in info) + f"""; @launch grid=(256,1,1) block=(512,1,1) lds={lds}
.amdgcn_target "amdgcn-amd-amdhsa--gfx950"
.text
.p2align 12
{".fill 832, 4, 0xbf800000" if end0 > 3328 else ""}
.globl {NAME}
.p2align 8
.type {NAME},@function
{NAME}:
""" + page0 + roles + f""".p2align 12
.section .rodata,"a"
.p2align 6
.amdhsa_kernel {NAME}
  .amdhsa_next_free_vgpr 256
  .amdhsa_next_free_sgpr 102
  .amdhsa_accum_offset 256
  .amdhsa_group_segment_fixed_size 0
  .amdhsa_kernarg_size 40
  .amdhsa_user_sgpr_count 2
  .amdhsa_user_sgpr_kernarg_segment_ptr 1
  .amdhsa_system_sgpr_workgroup_id_x 1
.end_amdhsa_kernel
"""
    for x in cfg.get("exp", ()):
        if x == "nosend": s = re.sub(r"    buffer_store_dwordx4 .* sc1\n", "    s_nop 0\n    s_nop 0\n", s)
        if x == "plainsend": s = re.sub(r"(    buffer_store_dwordx4 .*) sc1\n", r"\1\n", s)
        if x == "nopoll": s = re.sub(r"    buffer_load_dwordx[24] .* sc1\n", "    s_nop 0\n    s_nop 0\n", s)
        if x == "nob": s = re.sub(r"    buffer_(store_dwordx4 .* v6,|load_dwordx2) .* sc1\n", "    s_nop 0\n    s_nop 0\n", s)
        if x == "noy":
            a = s.index("L_got:"); b = s.index("    s_barrier", a)
            s = s[:a] + re.sub(r"    v_.*\n", "", s[a:b]) + s[b:]
    if diag == 2: s = s.replace('s_memtime', 's_memrealtime')
    return s, lds

if __name__ == "__main__":
    kw = {}
    for a in sys.argv[2:]:
        k, v = a.split("=", 1)
        kw[k] = eval(v)
    s, lds = gen(**kw)
    open(sys.argv[1], "w").write(s)
    print("\n".join(s.split("\n")[1:4]))
```

```python
import sys, re, struct

NAME = "standalone__autoregressive_conv_wavernn__speech_kernel"
LOG2E = 1.4426950408889634
def f2u(x): return struct.unpack("<I", struct.pack("<f", x))[0]

DEF = dict(RING=24, n_early=16, n_late=16, lead=8, safe=5, wcap=7, x4b=1, w1at=4, burst0=8,
           single=4, grp=2, chain2=2,
           pre=["x0", "x1", "x2", "x3", "w", "P:1:23", "x4", "w", "w", "w", "w"],
           ins={16: ["y0", "y1", "y2", "y3", "y4", "C"], 59: ["T"]},
           sfrom=23, s1=4, s2=4, ssch=None, fdel=4, ypk=1, touch=3,
           opc=70, cap=9, cap2=11, lat=300, ev=900, ev0=200, evc=700, cc=170, slack=80, maxn=4, quota={1: 3, 2: 1, 3: 2, 4: 2},
           t12=56, t3=52, chk_back=1, prio=1, lprio=0, spin=200000, diag=0, kst=None)
XCH = 1056
XL = 20*XCH
HRS = 272
HCS = 16*HRS
HREG = 2*HCS
SS = 4096
GS = 12*SS + 256
BIG = 10**9
def wstr(cfg): return cfg["RING"]*1024
def xbase(cfg): return 4*wstr(cfg)
def hbase(cfg): return xbase(cfg) + 2*XL
def slot(dst, src): return (3*dst + (dst ^ src) - 1)*SS
def woff(sg): return (sg % 15)*262144 + (sg//15)*32768

def groups(cfg):
    g = [[sg] for sg in range(cfg["single"])]
    sg = cfg["single"]
    while sg < 60:
        g.append(list(range(sg, min(60, sg + cfg["grp"])))); sg += cfg["grp"]
    return g

_INL = {"0.5","-0.5","1.0","-1.0","2.0","-2.0","4.0","-4.0"}
_V8 = ("v_mfma","v_add3","v_lshl_add","v_lshl_or","v_max3","v_fma_","v_cvt_pk","v_writelane","v_readlane","v_mul_lo",
       "v_and_or","v_bfe","v_perm_","v_mad","v_add_lshl","v_xad","v_mbcnt","v_or3","v_pk_")
def isize(line):
    t = line.split(";")[0].strip()
    if not t or t.endswith(":") or t.startswith("."): return 0
    mn = t.split()[0]
    if mn.startswith("v_cmp") and not t.split()[1].startswith("vcc"): return 8
    if mn.startswith(("ds_","buffer_","s_load","s_buffer_load","s_memtime","s_memrealtime","s_atomic")) or mn.startswith(_V8): return 8
    if mn.startswith(("s_waitcnt","s_barrier","s_nop","s_branch","s_cbranch","s_setprio","s_endpgm","s_movk","s_addk","s_mulk","s_cmpk")): return 4
    for o in t[len(mn):].split(","):
        o = o.strip()
        if o in _INL or re.match(r"^(s|v)(\d|\[)|^(vcc|exec|m0|scc)", o): continue
        try:
            if -16 <= int(o, 0) <= 64: continue
        except ValueError: pass
        return 8
    return 4
def tsize(text): return sum(isize(l) for l in text.split("\n"))
def add_pads(text, names, targets, prefer):
    lines = text.split("\n"); out = []; off = 0; k = 0
    for i, l in enumerate(lines):
        if k < len(names) and off >= 1024*(k+1) and isize(l):
            if prefer(lines, i) or off + isize(l) >= 1024*(k+1) + 60:
                out.append(f"{names[k]}:\n    s_cbranch_execz {targets[k]}"); off += 4; k += 1
        out.append(l); off += isize(l)
    assert k == len(names)
    return "\n".join(out), off

def mfma_seq(q, cfg):
    ne, nl = cfg["n_early"], cfg["n_late"]
    own = (2*q, 2*q+1); t = q ^ 2; third = (2*t, 2*t+1)
    act = lambda sg: [c for c in range(8) if not (c in own and sg >= ne) and not (c in third and sg >= 60-nl)]
    seq = []
    for g in groups(cfg):
        for c in range(8): seq += [(c, sg, 1) for sg in g if c in act(sg)]
    for cs, lo, ph in ((third, 60-nl, 2), (own, ne, 3)):
        sg = lo
        while sg < 60:
            hi = min(sg + cfg["chain2"], (sg//15 + 1)*15)
            for c in cs: seq.extend((c, s, ph) for s in range(sg, hi))
            sg = hi
    assert len(seq) == 480 and len(set((c, s) for c, s, _ in seq)) == 480
    return seq

def final_addr(cfg, L, t0, t1, HW, HR, OUT, sw, cset, h):
    HB = hbase(cfg)
    o = f"""    v_and_b32 v{t0}, 15, v{L}
    v_lshrrev_b32 v{t1}, 4, v{L}
    v_mul_u32_u24 v{HW}, {HRS}, v{t0}
    v_lshl_add_u32 v{HW}, v{t1}, 4, v{HW}
    s_lshl_b32 s12, {sw}, 6
"""
    if h is None: o += f"    s_bitcmp0_b32 s4, 0\n    s_cselect_b32 s42, {HREG}, 0\n    s_add_u32 s12, s12, s42\n"
    o += f"""    s_add_u32 s12, s12, {HB + (h or 0)*HREG}
    v_add_u32 v{HW}, s12, v{HW}
    v_mul_u32_u24 v{HR}, {HRS}, v{t1}
    v_lshl_add_u32 v{HR}, v{t0}, 4, v{HR}
    s_mul_i32 s12, {sw}, {4*HRS}
    s_add_u32 s12, s12, {HB + cset*HCS}
    v_add_u32 v{HR}, s12, v{HR}
    v_lshrrev_b32 v{OUT}, 1, v{t1}
    v_and_b32 v{t1}, 1, v{t1}
    v_lshl_add_u32 v{OUT}, v{OUT}, 4, v{t1}
    v_lshlrev_b32 v{t0}, 3, v{t0}
    v_lshl_add_u32 v{OUT}, v{OUT}, 9, v{t0}
    s_lshl2_add_u32 s12, s7, {sw}
    s_lshl3_add_u32 s12, s12, s4
    s_lshl4_add_u32 s12, s12, s6
    s_lshl_b32 s12, s12, 7
"""
    if cset: o += "    s_addk_i32 s12, 1024\n"
    return o + f"    v_add_u32 v{OUT}, s12, v{OUT}\n"
def final_stage(HR, OUT, F, G):
    return f"""    s_waitcnt lgkmcnt(0)
    s_barrier
    ds_read_b128 v[{F}:{F+3}], v{HR}
    ds_read_b128 v[{G}:{G+3}], v{HR} offset:{HREG}
    s_waitcnt lgkmcnt(0)
    v_pk_mul_f32 v[{F}:{F+1}], v[{F}:{F+1}], v[{G}:{G+1}]
    v_pk_mul_f32 v[{F+2}:{F+3}], v[{F+2}:{F+3}], v[{G+2}:{G+3}]
    v_pk_fma_f32 v[{F}:{F+1}], v[{F}:{F+1}], -2.0, v[{G}:{G+1}] op_sel_hi:[1,0,1]
    v_pk_fma_f32 v[{F+2}:{F+3}], v[{F+2}:{F+3}], -2.0, v[{G+2}:{G+3}] op_sel_hi:[1,0,1]
    v_cvt_pk_bf16_f32 v{F}, v{F}, v{F+1}
    v_cvt_pk_bf16_f32 v{F+1}, v{F+2}, v{F+3}
    buffer_store_dwordx2 v[{F}:{F+1}], v{OUT}, s[24:27], 0 offen
"""
def lines(t): return [x.split(";")[0].strip() for x in t.strip().split("\n")]
def common_ids(diag): return f"""    s_lshr_b32 s9, s2, 2                    ; group
    s_and_b32 s6, s9, 3
    s_bfe_u32 s5, s2, 0x10004               ; batch
    s_lshr_b32 s7, s2, 5
    s_mov_b32 s26, 512000
    s_mov_b32 s27, 0x20000
    s_mul_i32 s8, s5, s26
    s_mov_b32 s30, {(10<<20) if diag else 64*GS}
    s_mov_b32 s31, s27
"""

class Compute:
    vLANE, vWA, vXA, vSEND = range(4)
    ACC = 4; PB = 36; NP = (256 - 36)//4
    def __init__(self, q, cfg):
        self.q, self.cfg = q, cfg
        self.seq = seq = mfma_seq(q, cfg)
        self.grp = groups(cfg)
        self.bar_of = {sg: n for n, g in enumerate(self.grp) for sg in g}
        self.p2 = min(k for k in range(480) if seq[k][2] >= 2); self.p3 = min(k for k in range(480) if seq[k][2] == 3)
        self.tb = self.p2 + cfg["t12"]; self.t3 = self.p3 + cfg["t3"]; self.chk = 480 - cfg["chk_back"]
        assert self.tb < self.t3 < self.chk
    def acc(self, c): return self.ACC + 4*c

    def plan(self, splits):
        cfg, seq, lead = self.cfg, self.seq, self.cfg["lead"]
        inst = {}; xi = []; wi = []; cur = {}
        for k, (c, sg, ph) in enumerate(seq):
            ds, i = divmod(sg, 15)
            xk = ("x", ds, c+i, ph)
            inst.setdefault(xk, []).append(k); xi.append(xk)
            if (sg, ph) in splits: cur[sg] = ph
            wk = ("w", sg, cur.get(sg, 1))
            inst.setdefault(wk, []).append(k); wi.append(wk)
        occ = {}; head = []
        for k in (self.tb, self.t3): occ[k-1] = (("rsv",), 0)
        un = lambda g: {"x": 2, "w": 1}.get(occ[g][0][0], 0) if g in occ else 0
        def place(key, hf, latest):
            cost = {"x": 2, "w": 1}.get(key[0], 0); g = latest
            while g >= 0 and (g in occ or any(sum(un(j) for j in range(a, a+4)) + cost > cfg["wcap"] for a in range(g-3, g+1))): g -= 1
            if g < 0:
                if key[0] != "b": head.append((key, hf))
                return -1
            occ[g] = (key, hf); return g
        issue = {}; lim = BIG
        for sg in range(59, -1, -1):
            key = ("w", sg, 1)
            g1 = place(key, 1, min(inst[key][0] - lead, lim)); g0 = place(key, 0, g1 - 1)
            issue[key] = g0; lim = g0 - 1
            if self.grp[self.bar_of[sg]][0] == sg: lim = place(("b", self.bar_of[sg]), 0, g0 - 1) - 1
        for key in sorted([k for k in inst if k not in issue], key=lambda k: -inst[k][0]):
            if key[0] == "x": issue[key] = place(key, 0, inst[key][0] - lead)
            else: issue[key] = place(key, 0, place(key, 1, inst[key][0] - lead) - 1)
        head.sort(key=lambda e: (inst[e[0]][0], e[0][0] == "x", e[1]))
        return inst, xi, wi, occ, head, issue

    def choose_splits(self):
        RING = self.cfg["RING"]; splits = set(); phase_of = [s[2] for s in self.seq]
        while True:
            inst, xi, wi, occ, head, issue = self.plan(splits)
            ev = [0]*482
            for key, uses in inst.items():
                ev[issue[key]+1] += 1; ev[uses[-1]+1] -= 1
            live = 0; bad = None
            for g in range(-1, 480):
                live += ev[g+1]
                if live > self.NP: bad = g; break
            if bad is None: return splits
            best = None
            for key, uses in inst.items():
                if key[0] != "w" or key[1] < 60-RING: continue
                prev = [u for u in uses if u <= bad]; nxt = [u for u in uses if u > bad]
                if prev and nxt and phase_of[nxt[0]] != phase_of[prev[-1]] and nxt[0] - bad > self.cfg["lead"] + 6:
                    if best is None or nxt[0] > best[0]: best = (nxt[0], (key[1], phase_of[nxt[0]]))
            assert best, ("register pressure", self.q, bad)
            splits.add(best[1])

    def build(self):
        cfg, q, seq = self.cfg, self.q, self.seq
        RING, safe, h, x4b = cfg["RING"], cfg["safe"], q & 1, cfg["x4b"]
        grp, bar_of = self.grp, self.bar_of; NB = len(grp)
        self.splits = self.choose_splits()
        inst, xi, wi, occ, backlog, issue = self.plan(self.splits)
        out = []; self.ninst = 0
        def emit(s): out.append("    " + s); self.ninst += 1
        pool = list(range(self.NP)); reg = {}
        take = lambda: self.PB + 4*pool.pop(0)
        lds = []; lastidx = {}
        st = dict(covered=0, nbar=0, k=0)
        self.free_bar = {}; self.x1_bar = None; self.x4_bar = None; self.bar_k = []
        pend_free = []; release = {}; lastuse = {}
        for key, uses in inst.items(): release.setdefault(uses[-1], []).append(key)
        for k, (c, sg, ph) in enumerate(seq): lastuse[c] = k
        sends = sorted([max(lastuse[2*d], lastuse[2*d+1]), d] for d in range(4) if d != q)
        tb, t3, chk = self.tb, self.t3, self.chk
        Q = []; mf_inst = {}
        def barrier():
            for sg in list(pend_free):
                if lastidx[("w", sg, 1)] < st["covered"]:
                    self.free_bar[sg] = st["nbar"]; pend_free.remove(sg)
            emit("s_barrier"); st["nbar"] += 1; self.bar_k.append(st["k"])
        def lds_read(text): emit(text); lds.append(st["k"]-1); return len(lds)-1
        def do_read(key, hf):
            if hf == 0: reg[key] = take()
            r = reg[key]
            if key[0] == "x":
                _, ds, u, _ = key
                while st["nbar"] <= (x4b if u >= 8 else 0): barrier()
                if ds >= 2 and self.x1_bar is None: self.x1_bar = st["nbar"] - 1
                if u >= 8 and self.x4_bar is None: self.x4_bar = st["nbar"] - 1
                off = (ds >> 1)*XL + (u >> 3)*2*XCH + (u & 7)*128 + (ds & 1)*64
                lastidx[key] = lds_read(f"ds_read_b128 v[{r}:{r+3}], v{self.vXA} offset:{off}")
            else:
                sg = key[1]
                if key[2] == 1:
                    while st["nbar"] <= bar_of[sg]: barrier()
                    if hf: pend_free.append(sg)
                i = lds_read(f"ds_read_b64_tr_b16 v[{r+2*hf}:{r+2*hf+1}], v{self.vWA} offset:{(sg % RING)*1024 + 512*hf}")
                if hf: lastidx[key] = i
        def wait_for(idx):
            if idx < st["covered"]: return False
            j = idx
            while j+1 < len(lds) and lds[j+1] <= st["k"] - 1 - safe: j += 1
            n = len(lds) - 1 - j
            assert n <= 15, n
            emit(f"s_waitcnt lgkmcnt({n})"); st["covered"] = j+1
            return True
        kind = lambda t: "S" if t.startswith("buffer_store") else "v" if t.startswith("v_") else "s"
        def ready():
            if not Q: return False
            after = Q[0][1]
            if after is None: return True
            if after[0] == "k": return st["k"] >= after[1]
            return after[1] in mf_inst and self.ninst - mf_inst[after[1]] >= 8
        def missing():
            if Q and Q[0][1] and Q[0][1][0] == "m" and Q[0][1][1] in mf_inst: return 8 - (self.ninst - mf_inst[Q[0][1][1]])
            return 0
        def nop(n): emit(f"s_nop {n-1}"); self.ninst += n-1
        def fill(slots):
            n = min(missing(), slots)
            if n > 0: nop(n); slots -= n
            while slots and ready() and kind(Q[0][0]) != "S":
                emit(Q.pop(0)[0]); slots -= 1
                if Q and Q[0][0] == "|": Q.pop(0); break
        def enq(items, after=None):
            for i, t in enumerate(items): Q.append((t, after if i == 0 else None))
        L = self.vLANE
        enq(lines(common_ids(cfg["diag"])) + ["s_lshl_b32 s12, s10, 10", f"v_lshl_add_u32 v{self.vSEND}, v{L}, 4, s12", f"s_mul_i32 s12, s9, {GS}"] +
            [f"s_add_u32 s{40+d}, s12, {slot(d, q)}" for d in range(4) if d != q] +
            [f"s_add_u32 s44, s12, {slot(q, q ^ 2)}", "s_mov_b32 s13, 0", "s_mov_b32 s38, 0xffff0000",
             f"s_mov_b32 s36, {f2u(-LOG2E if h else 2*LOG2E):#x}", "s_mov_b32 s37, s36",
             "s_add_u32 s24, s24, s8", "s_addc_u32 s25, s25, 0"], ("k", 14))
        started = set()
        for k in range(480):
            g = k-1; st["k"] = k
            c, sg, ph = seq[k]
            while sends and sends[0][0] < k:
                e, d = sends.pop(0); a0 = self.acc(2*d); a1 = a0 + 4
                enq([f"v_cvt_pk_bf16_f32 v{a0+j}, v{a0+2*j}, v{a0+2*j+1}" for j in range(4)] +
                    [f"v_min_u32 v{a0+j}, -2, v{a0+j}" for j in range(4)] +
                    [f"buffer_store_dwordx4 v[{a0}:{a0+3}], v{self.vSEND}, s[28:31], s{40+d} offen sc1"], ("m", e))
                if len(sends) == 1: spare = a1
                if not sends:
                    HW, HR, OUT = a1+1, a1+2, a1+3
                    enq(lines(final_addr(cfg, L, spare, a1, HW, HR, OUT, "s10", 1, h)))
            if k == chk:
                T = [take(), take()]
                chkP = ["s_waitcnt vmcnt(0)", f"v_max3_u32 v{T[0]}, v{P}, v{P+1}, v{P+2}", f"v_max_u32 v{T[0]}, v{T[0]}, v{P+3}",
                        f"v_cmp_eq_u32 vcc, -1, v{T[0]}"]
                enq(chkP + ["|", f"s_cbranch_vccnz L_again{q}\nL_fin{q}:"])
                for j in range(4): enq([f"v_lshlrev_b32 v{T[j >> 1] + 2*(j & 1)}, 16, v{P+j}", f"v_and_b32 v{T[j >> 1] + 2*(j & 1) + 1}, s38, v{P+j}"])
            item = occ.get(g)
            if item and item[0][0] in "xw": backlog.append(item); item = None
            if k == 0:
                for _ in range(cfg["burst0"]):
                    cand = [e for e in backlog if not (e[0][0] == "x" and e[0][2] >= 8) and not (e[0][0] == "w" and e[0][1] > 0)]
                    if cand: backlog.remove(cand[0]); do_read(*cand[0])
            late = xi[k] not in lastidx or wi[k] not in lastidx
            waited = False
            if not late: waited = wait_for(max(lastidx[xi[k]], lastidx[wi[k]]))
            if not waited and ready() and kind(Q[0][0]) == "s" and not item:
                emit(Q.pop(0)[0]); waited = True
            if not waited and missing() > 0 and not item: nop(1); waited = True
            cand = [e for e in backlog if not (e[0][0] == "x" and e[0][2] >= 8 and st["nbar"] <= x4b)
                    and not (k < cfg["w1at"] and e[0][0] == "w" and e[0][1] > 0)] if k else []
            if k == tb or (item and item[0][0] == "b" and item[0][1] == st["nbar"]):
                if k == tb: assert st["nbar"] == NB
                barrier()
                if not waited: fill(1)
            elif k == t3:
                assert not sends and not Q
                P = take()
                ldP = f"buffer_load_dwordx4 v[{P}:{P+3}], v{self.vSEND}, s[28:31], s44 offen sc1"
                emit(ldP)
            else:
                slots = 2
                if ready() and kind(Q[0][0]) == "S": emit(Q.pop(0)[0]); slots = 4
                if cand:
                    backlog.remove(cand[0]); do_read(*cand[0]); slots -= 1
                    if len(cand) > 2: backlog.remove(cand[1]); do_read(*cand[1]); slots -= 1
                fill(slots)
            if late:
                while xi[k] not in lastidx or wi[k] not in lastidx: do_read(*backlog.pop(0))
                wait_for(max(lastidx[xi[k]], lastidx[wi[k]]))
            a = self.acc(c); wr = reg[wi[k]]; xr = reg[xi[k]]
            cs = f"v[{a}:{a+3}]" if c in started else "0"
            started.add(c)
            emit(f"v_mfma_f32_16x16x32_bf16 v[{a}:{a+3}], v[{wr}:{wr+3}], v[{xr}:{xr+3}], {cs}")
            mf_inst[k] = self.ninst
            if cfg["diag"] in (1, 2) and k in cfg["kst"]: out.append(f"    s_memtime s[{76+2*cfg['kst'].index(k)}:{77+2*cfg['kst'].index(k)}]")
            for key in release.get(k, []): pool.append((reg[key] - self.PB)//4)
        assert st["nbar"] == NB + 1 and not backlog
        self.nlds = len(lds); self.left = len(Q)
        st["k"] = 490
        if cfg["diag"]: out.append("    s_memtime s[70:71]")
        def act(cc):
            t = T[cc]; a = self.acc(2*q+cc); pr = lambda r: f"v[{r}:{r+1}]"
            return ([f"v_pk_add_f32 {pr(t+j)}, {pr(t+j)}, {pr(a+j)}" for j in (0, 2)] + [f"v_pk_mul_f32 {pr(t+j)}, {pr(t+j)}, s[36:37]" for j in (0, 2)],
                    [f"v_exp_f32 v{t+j}, v{t+j}" for j in range(4)],
                    [f"v_pk_add_f32 {pr(t+j)}, {pr(t+j)}, 1.0 op_sel_hi:[1,0]" for j in (0, 2)],
                    [f"v_rcp_f32 v{t+j}, v{t+j}" for j in range(4)])
        wr = lambda cc: f"ds_write_b128 v{HW}, v[{T[cc]}:{T[cc]+3}] offset:{cc*HCS}"
        A0, A1 = act(0), act(1)
        enq(A0[0], ("m", lastuse[2*q])); enq(A0[1]); enq(A1[0], ("m", lastuse[2*q+1]))
        enq(A0[2] + A0[3] + A1[1] + [wr(0)] + A1[2] + A1[3] + ["s_nop 0", wr(1)] + lines(final_stage(HR, OUT, take(), take())))
        while Q:
            if missing() > 0: nop(missing())
            t = Q.pop(0)[0]
            if t != "|": emit(t)
        self.again = f"""L_again{q}:
    s_add_u32 s13, s13, 1
    s_cmp_ge_u32 s13, {cfg["spin"]}
    s_cbranch_scc1 L_fin{q}
""" + "".join(f"    {x}\n" for x in [ldP] + chkP) + f"""    s_cbranch_vccnz L_again{q}
    s_branch L_fin{q}
"""
        return "\n".join(out) + "\n"

DIAG_ST = """    s_lshl_b32 s12, s2, 3
    s_add_u32 s12, s12, s3
    s_lshl_b32 s12, s12, 8
    s_add_u32 s12, s12, 0x800000
    v_lshlrev_b32 v25, 2, v0
    buffer_store_dword v24, v25, s[28:31], s12 offen
    s_endpgm
"""
HEAD = """; tanh(f)*sigmoid(g) of a 15-tap, dilation-2 causal convolution, as an implicit GEMM (M=2000, N=512, K=3840).
; 256 workgroups = 64 groups of 4. A group owns 128 rows x 64 output channels; its members split {f,g} x {half of d},
; so that every weight line a CU fetches is used whole. Waves 0-3 stream x and w into LDS (LDS-DMA), waves 4-7 run the
"""

def gen(**kw):
    cfg = dict(DEF); cfg.update(kw)
    RING = cfg["RING"]; diag = cfg["diag"]; assert RING % 4 == 0
    if diag and not cfg["kst"]: cfg["kst"] = [0, 24, 60, 100, 180, 340, 470]
    comps = [Compute(q, cfg) for q in range(4)]
    bodies = [c.build() for c in comps]
    free_bar = {sg: max(c.free_bar[sg] for c in comps) for sg in range(60 - RING)}
    x1_bar = min(c.x1_bar for c in comps); x4_bar = min(c.x4_bar for c in comps)
    XBASE = xbase(cfg); WS = wstr(cfg); lds = hbase(cfg) + 2*HREG
    info = [f"cfg={cfg}", f"re-reads {[len(c.splits) for c in comps]} lds reads {[c.nlds for c in comps]} left {[c.left for c in comps]} x1_bar={x1_bar} x4_bar={x4_bar}"]
    s = "    s_cmpk_ge_u32 s2, 256\n    s_cbranch_scc1 L_end\n" + (f"    s_xor_b32 s2, s2, {cfg['xr']}\n" if cfg.get("xr") else "")
    if diag: s += "    s_memrealtime s[94:95]\n    s_memtime s[96:97]\n"
    s += f"""    v_readfirstlane_b32 s3, v0
    s_bitcmp1_b32 s3, 8
    s_cbranch_scc1 L_compute
    s_load_dwordx4 s[16:19], s[0:1], 0      ; x, w
    s_lshr_b32 s7, s2, 5
    s_bfe_u32 s11, s2, 0x10001
    s_lshr_b32 s61, s3, 7
    s_lshl3_add_u32 s12, s7, s61
    s_lshr_b32 s3, s3, 6                    ; wave
    s_and_b32 s13, s3, 1
    s_lshl4_add_u32 s12, s12, s13
    s_sub_u32 s12, s12, 28
    s_lshl1_add_u32 s12, s12, s11
    s_lshl_b32 s12, s12, 8
    v_and_b32 v2, 56, v0
    v_lshlrev_b32 v2, 7, v2
    v_and_b32 v3, 7, v0
    v_lshlrev_b32 v3, 4, v3
    v_add3_u32 v8, v2, v3, s12
    s_mov_b32 s26, 512000
    s_mov_b32 s27, 0x20000
    s_bitcmp1_b32 s2, 4                     ; batch
    s_cselect_b32 s8, s26, 0
    s_mul_i32 s36, s3, {XCH}
    s_add_u32 s36, s36, {XBASE}
    s_mov_b32 m0, s36
    s_movk_i32 s39, 0x4000
    s_waitcnt lgkmcnt(0)
    s_mov_b64 s[20:21], s[18:19]
    s_mov_b64 s[18:19], s[26:27]
    s_add_u32 s16, s16, s8
    s_addc_u32 s17, s17, 0
"""
    if diag: s += "    s_memtime s[98:99]\n"
    COMP = f"""    s_branch L_loader
L_compute:
    s_getpc_b64 s[46:47]
L_pc:
    v_and_b32 v0, 63, v0                    ; lane
    s_and_b32 s4, s2, 3
    s_lshr_b32 s3, s3, 6                    ; wave
    s_and_b32 s10, s3, 3
    s_lshr_b32 s12, s2, 3
    s_lshl2_add_u32 s12, s12, s10
    s_lshl_b32 s12, s12, 6
    s_and_b32 s13, s12, 0xfc0
    s_load_dword s54, s[46:47], s13
    s_lshl_b32 s13, s4, 13
    s_add_u32 s12, s12, s13
    s_add_u32 s12, s12, L_role0-L_pc
    s_load_dword s55, s[46:47], s12
    v_and_b32 v8, 15, v0
    v_lshrrev_b32 v9, 4, v0                 ; k chunk
    v_mul_u32_u24 v2, {XCH}, v8
    v_lshl_add_u32 v2, v9, 4, v2
    v_add_u32 v2, {XBASE}, v2
    v_lshrrev_b32 v11, 3, v8
    v_and_b32 v12, 1, v9
    v_lshl_or_b32 v11, v12, 1, v11          ; swizzle
    v_xor_b32 v11, s10, v11
    v_and_or_b32 v11, v8, 12, v11
    v_and_b32 v12, 3, v8
    v_lshl_add_u32 v11, v11, 2, v12
    v_mul_u32_u24 v1, {WS}, v9
    v_lshl_add_u32 v1, v11, 3, v1
    s_mov_b64 exec, 0
    s_cmp_eq_u32 s10, 0
    s_cbranch_scc1 L_padL0
L_disp:
    s_cmp_eq_u32 s4, 1
    s_cbranch_scc1 L_role1
    s_cmp_eq_u32 s4, 2
    s_cbranch_scc1 L_role2
    s_cmp_eq_u32 s4, 3
    s_cbranch_scc1 L_role3
    s_branch L_role0
L_loader:
"""
    WPREP = f"""    v_and_b32 v0, 63, v0                    ; lane
    s_and_b32 s4, s2, 3
    s_bfe_u32 s6, s2, 0x20002
    s_lshl_b32 s13, s13, 6
    v_and_b32 v4, 16, v0
    v_lshlrev_b32 v4, 1, v4
    v_or_b32 v4, s13, v4
    v_xor_b32 v3, v3, v4
    s_and_b32 s14, s4, 1
    s_lshl2_add_u32 s14, s14, s6
    s_lshl_b32 s15, s11, 10
    s_add_u32 s15, s15, s14
    s_lshl_b32 s15, s15, 7
    s_lshl_b32 s12, s3, 13
    s_add_u32 s12, s12, s15
    v_add3_u32 v7, v2, v3, s12              ; w offset
    s_mul_i32 s37, s3, {WS}
    s_mov_b32 s22, 3932160
    s_mov_b32 s23, s27
"""
    PPREP = f"""    s_lshr_b32 s60, s2, 3
    s_lshl_b32 s60, s60, 10
    s_add_u32 s60, s60, s15
    s_lshl_b32 s13, s13, 2
    s_xor_b32 s60, s60, s13
    v_bfrev_b32 v19, 1
"""
    W1PREP = f"""    s_movk_i32 s51, 0x1000
    s_mov_b32 s52, {262144 - 1024}
    s_add_u32 s49, s52, s51
"""
    order = []; nw = [0]
    def add(tok):
        if tok == "w":
            order.append(("w", nw[0])); nw[0] += 1
            for t in cfg["ins"].get(nw[0]-1, []): add(t)
        elif tok[0] in "xy": order.append(("x", int(tok[0] == "y"), int(tok[1])))
        elif tok == "C": order.extend([("c", 0), ("c", 1), ("c", 2), ("r",)])
        elif tok == "T": order.append(("t",))
        elif tok[0] == "P": order.append(("p",) + tuple(int(v) for v in tok.split(":")[1:]))
        else: raise ValueError(tok)
    for t in cfg["pre"]: add(t)
    K0 = len(order)
    while nw[0] < 60: add("w")
    areg = {op: 56 + i for i, op in enumerate(o for o in order if o[0] == "p")}
    def addr_asm(op):
        _, a, b = op
        return f"""    s_add_u32 s12, s61, {a}
    v_lshl_add_u32 v20, v0, 1, s12          ; stage
    v_mul_u32_u24 v21, 4370, v20
    v_lshrrev_b32 v21, 16, v21              ; d step
    v_mul_u32_u24 v21, {15*262144-32768}, v21
    v_cmp_gt_u32 vcc, {b}, v20
    v_lshl_add_u32 v20, v20, 18, s60
    v_sub_u32 v21, v20, v21
    v_cndmask_b32 v{areg[op]}, v19, v21, vcc
"""
    assert order[:5] == [("x", 0, 0), ("x", 0, 1), ("x", 0, 2), ("x", 0, 3), ("w", 0)]
    RL = "    buffer_load_dword v16, off, s[32:35], s58 sc1\n"
    FL = "    buffer_load_dword v16, off, s[28:31], s47 sc1\n"
    ms = dict(m0=("x", 0), so=None)
    def setm0(kind, off):
        prev = ms["m0"]; ms["m0"] = (kind, off)
        if prev == (kind, off): return ""
        if prev[0] == kind and abs(off - prev[1]) < 32768: return f"    s_addk_i32 m0, {off - prev[1]}\n"
        return f"    s_add_u32 m0, {'s36' if kind == 'x' else 's37'}, {off}\n"
    def op_asm(op):
        if op[0] == "x":
            _, L, m = op
            t = setm0("x", L*(XL-128) + 4*m*XCH)
            return t + (f"    v_add_u32 v{8+m}, s39, v{7+m}\n" if m and not L else "    s_nop 0\n" if t else "") + f"    buffer_load_dwordx4 v{8+m}, s[16:19], 0 offen offset:{128*L} lds\n"
        if op[0] == "w":
            sl = op[1] % RING; io = (sl & 3)*1024; so = woff(op[1]) - io; d = None if ms["so"] is None else so - ms["so"]; ms["so"] = so
            t = {262144-1024: "s_add_u32 s38, s38, s52", 262144+3072: "s_add_u32 s38, s38, s49"}.get(d, f"s_mov_b32 s38, {so}")
            return setm0("w", (sl & ~3)*1024) + f"    {t}\n    buffer_load_dwordx4 v7, s[20:23], s38 offen offset:{io} lds\n"
        if op[0] == "p": return f"    buffer_load_dword v23, v{areg[op]}, s[20:23], 0 offen\n"
        if op[0] == "c": return f"    buffer_store_dwordx4 v[24:27], v13, s[28:31], s{44+op[1]} offen sc1\n"
        if op[0] == "r": return RL
        return "    buffer_load_dword v23, off, s[24:27], 0\n"
    SL = [f"    s_buffer_load_dwordx2 s[54:55], s[16:19], s53 offset:{512*i + 188}\n" for i in range(4)]
    prev = (0, 0); bit = {0: "s56", 1: "s57", 2: "s51", 3: "s59", 4: "s39"}
    for j, sg in enumerate(range(cfg["sfrom"], 60, 2)):
        cur = (woff(sg), woff(min(sg+1, 59))); dA, dB = cur[0]-prev[0], cur[1]-prev[1]; prev = cur
        t = f"    s_add_u32 s60, s60, {'s63' if dA == 524288 else hex(dA & 0xffffffff)}\n"
        if dA != dB: t += f"    s_mul_i32 s12, s61, {hex((dB-dA) & 0xffffffff)}\n    s_add_u32 s60, s60, s12\n"
        if j: t += f"    s_xor_b32 s60, s60, {bit[(j & -j).bit_length()-1]}\n"
        SL.append(t + "    s_buffer_load_dwordx2 s[54:55], s[20:23], s60 offset:60\n")
    KA2 = """    s_load_dwordx2 s[28:29], s[0:1], 32     ; ws
    s_load_dwordx2 s[24:25], s[0:1], 16     ; out
"""
    later = f"""; while the first loads are under way: touch the hand-off and output pages once (address translation), later addresses
    s_lshr_b32 s9, s2, 2                    ; group
    s_mov_b32 s30, {(10<<20) if diag else 64*GS}
    s_mov_b32 s31, s27
    s_mul_i32 s48, s9, {GS}
    s_waitcnt lgkmcnt(0)
    s_add_u32 s47, s48, {12*SS}              ; the group's counter
    s_or_b32 s5, s3, s4
    s_cbranch_scc1 L_np0
    s_atomic_swap s5, s[28:29], s47 glc     ; the group's first wave zeroes it ...
L_np0:
    s_load_dword s54, s[28:29], s47 offset:128
    s_load_dwordx2 s[54:55], s[24:25], 60
    s_movk_i32 s34, 256
    s_mov_b32 s35, s27
    s_lshl_b32 s58, s9, 2
""" + "".join(f"""    s_xor_b32 s{43+p}, s4, {p}
    s_mulk_i32 s{43+p}, {3*SS}
    s_add_u32 s{43+p}, s{43+p}, s48
""" + (f"    s_addk_i32 s{43+p}, {(p-1)*SS}\n" if p > 1 else "") for p in (1, 2, 3)) + f"""    s_lshl_b32 s12, s3, 10
    v_lshl_add_u32 v13, v0, 4, s12          ; lane*16 + wave*1024
    v_mov_b32 v24, -1
    v_mov_b32 v25, -1
    v_mov_b32 v26, -1
    v_mov_b32 v27, -1
    s_lshl3_add_u32 s53, s7, s14
    s_lshl2_add_u32 s53, s53, s3
    s_lshl3_add_u32 s53, s53, s11
    s_lshl_b32 s53, s53, 8
    s_mov_b32 s63, 0x80000
    s_movk_i32 s56, 0x400
    s_movk_i32 s57, 0x800
    s_movk_i32 s59, 0x2000
""" + "".join(addr_asm(op) for op in order[K0:] if op in areg) + """    s_lshl_b32 s12, s61, 14
    s_xor_b32 s60, s60, s12
    s_mov_b32 s62, 1
    s_mov_b32 s13, 0
    s_or_b32 s12, s3, s4
    s_cbranch_scc1 L_np1
    s_waitcnt lgkmcnt(0)
    s_atomic_add s62, s[32:33], s58         ; ... and says so in d_debug
L_np1:
"""
    issued = []; oi = 0
    grp = groups(cfg); NB = len(grp)
    tbar = [16*min(c.bar_k[n] for c in comps) for n in range(NB)]
    can = lambda op, nb: not (op[0] == "w" and op[1] >= RING and nb <= free_bar[op[1]-RING])
    cost = lambda op: cfg["opc"] if op[0] in "wx" else 3*(op[2]-op[1]) if op[0] == "p" else cfg["cc"] if op[0] == "c" else 30
    cov = None; flagn = None; tpipe = 0; tta = 0; shift = 0; done_t = {}; sched = []
    for n in range(NB):
        needs = [("w", grp[n][-1])] + [("x", 0, m) for m in range(4)]
        if n >= x4_bar: needs.append(("x", 0, 4))
        if n >= x1_bar: needs += [("x", 1, m) for m in range(5)]
        cnt = 0; now = tbar[n-1] + shift if n else 0
        while oi < len(order) and can(order[oi], n):
            op = order[oi]
            forced = any(x not in issued for x in needs) or op[0] == 'r'
            ta = max(tta, now + 20) + cost(op)
            if n in cfg["quota"] and not forced:
                if cnt >= cfg["quota"][n]: break
            elif n > 0 and not forced:
                nxt = max([tbar[n] + shift] + [done_t[x] for x in needs])
                inev = any(o[0] in "pc" and d > now for o, d in done_t.items())
                if (ta > nxt + cfg["slack"] and cnt) or cnt >= cfg["maxn"] or sum(d > ta for d in done_t.values()) >= (cfg["cap2"] if inev else cfg["cap"]): break
            if n == 0 and not forced and cnt >= K0: break
            if oi == 4: szA = tsize(s); s += COMP + WPREP
            if oi == 5: s += PPREP
            if op == ("w", 1): s += W1PREP
            if op in areg and oi < K0: s += addr_asm(op)
            s += op_asm(op); issued.append(op); oi += 1; cnt += op[0] != 'r'
            if oi == 6: s += KA2 + "    s_load_dwordx2 s[32:33], s[0:1], 24     ; debug\n"
            if n == 0:
                if not forced: tpipe += cost(op) + (cfg["ev0"] if op[0] == "p" else 0)
            else:
                tta = ta
                tpipe = max(tpipe + cost(op), ta + {"p": cfg["ev"], "c": cfg["evc"]}.get(op[0], cfg["lat"]))
            done_t[op] = tpipe
        if n == 0:
            if diag: s += "    s_memtime s[88:89]\n"
            s += later
        for _ in range(cfg["ssch"].get(n, 0) if cfg["ssch"] else cfg["s1"] if n == 1 else int(n >= cfg["s2"])):
            if SL: s += SL.pop(0)
        if cov is not None and flagn is None and n >= cov + cfg["fdel"]:
            flagn = n
            s += """    s_cmp_lg_u32 s3, 0
    s_cbranch_scc1 L_noflag
    v_cmp_eq_u32 vcc, 0, v16
    s_cbranch_vccnz L_rdy
L_rdyok:
    s_atomic_add s62, s[28:29], s47
L_noflag:
"""
        need = max(issued.index(x) for x in needs)
        if cov is None and ("r",) in issued and need > issued.index(("r",)): cov = n
        shift = max(shift, done_t[issued[need]] - tbar[n])
        vm = len(issued) - 1 - need
        sched.append((cnt, vm, shift))
        assert vm <= 63
        s += f"    s_waitcnt vmcnt({vm})\n    s_barrier\n"
        if n == 0: sz0 = tsize(s)
    assert oi == len(order) and not SL and flagn
    info[-1] += f" cov={cov} flag={flagn}"
    info.append(f"loader (issued, vmcnt, modelled stall) per barrier: {sched}")
    polls = """    buffer_load_dwordx4 v[24:27], v13, s[28:31], s48 offen sc1
    buffer_load_dwordx4 v[28:31], v13, s[28:31], s50 offen sc1
"""
    s += FL + f"""    s_mul_i32 s12, s4, {3*SS}
    s_add_u32 s48, s48, s12                 ; slots written by the two partners of the other half
    s_add_u32 s50, s48, s59
    s_bitcmp1_b32 s4, 0                     ; own half is g -> other is f
    s_mov_b32 s40, {f2u(-LOG2E):#x}
    s_cselect_b32 s40, {f2u(2*LOG2E):#x}, s40
    s_mov_b32 s41, s40
    s_mov_b32 s43, 0xffff0000
    s_add_u32 s24, s24, s8
    s_addc_u32 s25, s25, 0
""" + final_addr(cfg, 0, 20, 21, 14, 19, 22, "s3", 0, None) + """    s_waitcnt vmcnt(0)
    v_cmp_gt_u32 vcc, 4, v16                ; all four members have marked their slots?
    s_cbranch_vccnz L_flag
L_flagok:
""" + ("    s_mov_b32 s92, s13\n" if diag else "") + "    s_mov_b32 s13, 0\n    s_barrier\n"
    if diag: s += "    s_memtime s[80:81]\n"
    s += polls + (f"    s_setprio {cfg['lprio']}\n" if cfg["lprio"] else "") + """L_poll:
    s_waitcnt vmcnt(0)
    v_max3_u32 v36, v24, v25, v26
    v_max3_u32 v37, v27, v28, v29
    v_max3_u32 v36, v36, v30, v31
    v_max_u32 v36, v36, v37
    v_cmp_eq_u32 vcc, -1, v36
    s_cbranch_vccnz L_repoll
L_got:
"""
    if diag: s += "    s_memtime s[82:83]\n    s_add_u32 s93, s13, 1\n"
    pr = lambda r: f"v[{r}:{r+1}]"
    for cc in (0, 1):
        R = range(4*cc, 4*cc+4); pk = cc and cfg["ypk"]
        for j in (2*cc, 2*cc+1):
            s += f"    v_lshlrev_b32 v{40+2*j}, 16, v{24+j}\n    v_and_b32 v{41+2*j}, s43, v{24+j}\n"
            s += f"    v_lshlrev_b32 v{48+2*j}, 16, v{28+j}\n    v_and_b32 v{49+2*j}, s43, v{28+j}\n"
        if pk:
            for j in (4, 6): s += f"    v_pk_add_f32 {pr(40+j)}, {pr(40+j)}, {pr(48+j)}\n"
            for j in (4, 6): s += f"    v_pk_mul_f32 {pr(40+j)}, {pr(40+j)}, s[40:41]\n"
        else:
            for j in R: s += f"    v_add_f32 v{40+j}, v{40+j}, v{48+j}\n"
            for j in R: s += f"    v_mul_f32 v{40+j}, s40, v{40+j}\n"
        for j in R: s += f"    v_exp_f32 v{40+j}, v{40+j}\n"
        if pk:
            for j in (4, 6): s += f"    v_pk_add_f32 {pr(40+j)}, {pr(40+j)}, 1.0 op_sel_hi:[1,0]\n"
        else:
            for j in R: s += f"    v_add_f32 v{40+j}, 1.0, v{40+j}\n"
        for j in R: s += f"    v_rcp_f32 v{40+j}, v{40+j}\n"
        s += f"    s_nop 0\n    ds_write_b128 v14, v[{40+4*cc}:{43+4*cc}] offset:{HCS*cc}\n"
    fs = final_stage(19, 22, 24, 28)
    if diag:
        fs = fs.replace("    s_barrier\n", "    s_memtime s[86:87]\n    s_barrier\n    s_memtime s[84:85]\n")
        fs += "    s_waitcnt vmcnt(0)\n    s_memrealtime s[90:91]\n    s_branch L_diagL\n"
    s += fs + f"""L_end:
    s_endpgm
L_repoll:
    s_add_u32 s13, s13, 1
    s_cmp_ge_u32 s13, {cfg["spin"]}
    s_cbranch_scc1 L_got
""" + polls + f"""    s_branch L_poll
L_flag:
    s_add_u32 s13, s13, 1
    s_cmp_ge_u32 s13, {cfg["spin"]}
    s_cbranch_scc1 L_flagok
{FL}    s_waitcnt vmcnt(0)
    v_cmp_gt_u32 vcc, 4, v16
    s_cbranch_vccnz L_flag
    s_branch L_flagok
L_rdy:
    s_add_u32 s13, s13, 1
    s_cmp_ge_u32 s13, {cfg["spin"]}
    s_cbranch_scc1 L_rdyok
{RL}    s_waitcnt vmcnt(0)
    v_cmp_eq_u32 vcc, 0, v16
    s_cbranch_vccnz L_rdy
    s_branch L_rdyok
"""
    npl = (tsize(s[:s.index('L_flag:')]) - 64)//1024
    page0, end0 = add_pads(s, [f"L_padL{k}" for k in range(npl)], [f"L_padL{k+1}" for k in range(npl-1)] + ["L_disp"], lambda L, i: True)
    assert end0 <= 3328, end0
    sizes = [szA, sz0, end0]; roles = ""
    for q in range(4):
        s = KA2 + f"""    s_cmp_eq_u32 s10, 1
    s_cbranch_scc1 L_pad{q}_0
    s_cmp_eq_u32 s10, 2
    s_cbranch_scc1 L_pad{q}_1
    s_cmp_eq_u32 s10, 3
    s_cbranch_scc1 L_pad{q}_2
    s_branch NPD0
L_main{q}:
    s_mov_b64 exec, -1
    s_setprio {cfg["prio"]}
""" + ("    s_memtime s[72:73]\n    s_waitcnt lgkmcnt(0)\n    s_memtime s[74:75]\n" if diag else "") + "    s_waitcnt lgkmcnt(0)\n" + bodies[q]
        if diag: s += "    s_memtime s[64:65]\n    s_waitcnt vmcnt(0)\n    s_memtime s[66:67]\n    s_memrealtime s[68:69]\n    s_branch L_diagC\n"
        s += "    s_endpgm\n" + comps[q].again
        npd = (7 if tsize(s) + 24 >= 7168 + 64 else 6) if cfg["touch"] == 3 else 3
        s = s.replace("NPD0", f"L_pad{q}_6" if npd == 7 else f"L_main{q}")
        s, end = add_pads(s, [f"L_pad{q}_{k}" for k in range(npd)], [f"L_pad{q}_{k+3}" if k < 3 and k+3 < npd else f"L_main{q}" for k in range(npd)],
                          lambda L, i: L[i].strip().startswith("v_mfma") and L[i-1].strip().startswith("v_mfma"))
        assert end <= 8192, end
        sizes.append(end)
        roles += f".p2align 12\n; ---------------- compute waves, role {q} ----------------\nL_role{q}:\n" + s
    if diag:
        roles += ".p2align 12\nL_diagC:\n    s_waitcnt lgkmcnt(0)\n    v_mov_b32 v24, 0\n"
        for i, r in enumerate(["s94", "s64", "s66", "s68", "s70", "s13", "s72", "s74"] + [f"s{76+2*j}" for j in range(7)]):
            if i in (1, 2, 4) or i > 5: roles += f"    s_sub_u32 {r}, {r}, s96\n"
            roles += f"    v_writelane_b32 v24, {r}, {i}\n"
        roles += DIAG_ST + "L_diagL:\n    s_waitcnt lgkmcnt(0)\n    v_mov_b32 v24, 0\n"
        for i, r in enumerate(["s94", "s98"] + [f"s{64+2*i}" for i in range(11)] + ["s92", "s93", "s86", "s88", "s88", "s90", "s0"]):
            if 1 <= i <= 12 or i in (15, 16): roles += f"    s_sub_u32 {r}, {r}, s96\n"
            roles += f"    v_writelane_b32 v24, {r}, {i}\n"
        roles += DIAG_ST
    info.append(f"code bytes: {sizes}")
    s = HEAD + f"""; @launch grid=(256,1,1) block=(512,1,1) lds={lds}
.amdgcn_target "amdgcn-amd-amdhsa--gfx950"
.text
.p2align 12
.globl {NAME}
.p2align 8
.type {NAME},@function
{NAME}:
""" + page0 + roles + f""".p2align 12
.section .rodata,"a"
.p2align 6
.amdhsa_kernel {NAME}
  .amdhsa_next_free_vgpr 256
  .amdhsa_next_free_sgpr 102
  .amdhsa_accum_offset 256
  .amdhsa_group_segment_fixed_size 0
  .amdhsa_kernarg_size 40
  .amdhsa_user_sgpr_count 2
  .amdhsa_user_sgpr_kernarg_segment_ptr 1
  .amdhsa_system_sgpr_workgroup_id_x 1
.end_amdhsa_kernel
"""
    if diag == 3: s = re.sub(r"    s_memtime .*\n", "    s_mov_b32 s100, 0x12345\n", s)
    if diag == 2: s = s.replace("s_memtime", "s_memrealtime")
    gen.info = info
    return s, lds

if __name__ == "__main__":
    kw = {}
    for a in sys.argv[2:]:
        k, v = a.split("=", 1)
        kw[k] = eval(v)
    s, lds = gen(**kw)
    open(sys.argv[1], "w").write(s)
    print("\n".join(gen.info[1:]))
```

```python
import sys, re, struct

NAME = "standalone__autoregressive_conv_wavernn__speech_kernel"
LOG2E = 1.4426950408889634
def f2u(x): return struct.unpack("<I", struct.pack("<f", x))[0]

DEF = dict(RING=24, n_early=16, n_late=16, lead=8, safe=5, wcap=7, x4b=1, w1at=4, burst0=8,
           single=4, grp=2, chain2=2,
           pre=["x0", "x1", "x2", "x3", "w", "P:1:23", "x4", "w", "w", "w", "w"],
           ins={14: ["y0", "y1", "y2", "y3", "y4", "C"], 59: ["T"]},
           sfrom=23, s1=4, s2=4, ssch=None, fleft=5, flpos=0, touch=3,
           opc=70, cap=9, cap2=11, lat=300, ev=900, ev0=200, evc=700, cc=170, slack=80, maxn=4, quota={1: 3, 2: 1, 3: 2, 4: 2},
           t12=54, t3=44, chk_back=2, prio=1, lprio=0, spin=200000, diag=0, kst=None)
XCH = 1056
XL = 20*XCH
HRS = 272
HCS = 16*HRS
HREG = 2*HCS
SS = 4096
GS = 12*SS + 128
BIG = 10**9
def wstr(cfg): return cfg["RING"]*1024
def xbase(cfg): return 4*wstr(cfg)
def hbase(cfg): return xbase(cfg) + 2*XL
def slot(dst, src): return (3*dst + (dst ^ src) - 1)*SS
def woff(sg): return (sg % 15)*262144 + (sg//15)*32768

def groups(cfg):
    g = [[sg] for sg in range(cfg["single"])]
    sg = cfg["single"]
    while sg < 60:
        g.append(list(range(sg, min(60, sg + cfg["grp"])))); sg += cfg["grp"]
    return g

_INL = {"0.5","-0.5","1.0","-1.0","2.0","-2.0","4.0","-4.0"}
_V8 = ("v_mfma","v_add3","v_lshl_add","v_lshl_or","v_max3","v_fma_","v_cvt_pk","v_writelane","v_readlane","v_mul_lo",
       "v_and_or","v_bfe","v_perm_","v_mad","v_add_lshl","v_xad","v_mbcnt","v_or3","v_pk_")
def isize(line):
    t = line.split(";")[0].strip()
    if not t or t.endswith(":") or t.startswith("."): return 0
    mn = t.split()[0]
    if mn.startswith("v_cmp") and not t.split()[1].startswith("vcc"): return 8
    if mn.startswith(("ds_","buffer_","s_load","s_buffer_load","s_memtime","s_memrealtime","s_atomic")) or mn.startswith(_V8): return 8
    if mn.startswith(("s_waitcnt","s_barrier","s_nop","s_branch","s_cbranch","s_setprio","s_endpgm","s_movk","s_addk","s_mulk","s_cmpk")): return 4
    for o in t[len(mn):].split(","):
        o = o.strip()
        if o in _INL or re.match(r"^(s|v)(\d|\[)|^(vcc|exec|m0|scc)", o): continue
        try:
            if -16 <= int(o, 0) <= 64: continue
        except ValueError: pass
        return 8
    return 4
def tsize(text): return sum(isize(l) for l in text.split("\n"))
def add_pads(text, names, targets, prefer):
    lines = text.split("\n"); out = []; off = 0; k = 0
    for i, l in enumerate(lines):
        if k < len(names) and off >= 1024*(k+1) and isize(l):
            if prefer(lines, i) or off + isize(l) >= 1024*(k+1) + 60:
                out.append(f"{names[k]}:\n    s_cbranch_execz {targets[k]}"); off += 4; k += 1
        out.append(l); off += isize(l)
    assert k == len(names)
    return "\n".join(out), off

def mfma_seq(q, cfg):
    ne, nl = cfg["n_early"], cfg["n_late"]
    own = (2*q, 2*q+1); t = q ^ 2; third = (2*t, 2*t+1)
    act = lambda sg: [c for c in range(8) if not (c in own and sg >= ne) and not (c in third and sg >= 60-nl)]
    seq = []
    for g in groups(cfg):
        for c in range(8): seq += [(c, sg, 1) for sg in g if c in act(sg)]
    for cs, lo, ph in ((third, 60-nl, 2), (own, ne, 3)):
        sg = lo
        while sg < 60:
            hi = min(sg + cfg["chain2"], (sg//15 + 1)*15)
            for c in cs: seq.extend((c, s, ph) for s in range(sg, hi))
            sg = hi
    assert len(seq) == 480 and len(set((c, s) for c, s, _ in seq)) == 480
    return seq

def final_addr(cfg, L, t0, t1, HW, HR, OUT, sw, cset, h):
    HB = hbase(cfg)
    o = f"""    v_and_b32 v{t0}, 15, v{L}
    v_lshrrev_b32 v{t1}, 4, v{L}
    v_mul_u32_u24 v{HW}, {HRS}, v{t0}
    v_lshl_add_u32 v{HW}, v{t1}, 4, v{HW}
    s_lshl_b32 s12, {sw}, 6
"""
    if h is None: o += f"    s_bitcmp0_b32 s4, 0\n    s_cselect_b32 s42, {HREG}, 0\n    s_add_u32 s12, s12, s42\n"
    o += f"""    s_add_u32 s12, s12, {HB + (h or 0)*HREG}
    v_add_u32 v{HW}, s12, v{HW}
    v_mul_u32_u24 v{HR}, {HRS}, v{t1}
    v_lshl_add_u32 v{HR}, v{t0}, 4, v{HR}
    s_mul_i32 s12, {sw}, {4*HRS}
    s_add_u32 s12, s12, {HB + cset*HCS}
    v_add_u32 v{HR}, s12, v{HR}
    v_lshrrev_b32 v{OUT}, 1, v{t1}
    v_and_b32 v{t1}, 1, v{t1}
    v_lshl_add_u32 v{OUT}, v{OUT}, 4, v{t1}
    v_lshlrev_b32 v{t0}, 3, v{t0}
    v_lshl_add_u32 v{OUT}, v{OUT}, 9, v{t0}
    s_lshl2_add_u32 s12, s7, {sw}
    s_lshl3_add_u32 s12, s12, s4
    s_lshl4_add_u32 s12, s12, s6
    s_lshl_b32 s12, s12, 7
"""
    if cset: o += "    s_addk_i32 s12, 1024\n"
    return o + f"    v_add_u32 v{OUT}, s12, v{OUT}\n"
def final_stage(HR, OUT, F, G):
    return f"""    s_waitcnt lgkmcnt(0)
    s_barrier
    ds_read_b128 v[{F}:{F+3}], v{HR}
    ds_read_b128 v[{G}:{G+3}], v{HR} offset:{HREG}
    s_waitcnt lgkmcnt(0)
    v_pk_mul_f32 v[{F}:{F+1}], v[{F}:{F+1}], v[{G}:{G+1}]
    v_pk_mul_f32 v[{F+2}:{F+3}], v[{F+2}:{F+3}], v[{G+2}:{G+3}]
    v_pk_fma_f32 v[{F}:{F+1}], v[{F}:{F+1}], -2.0, v[{G}:{G+1}] op_sel_hi:[1,0,1]
    v_pk_fma_f32 v[{F+2}:{F+3}], v[{F+2}:{F+3}], -2.0, v[{G+2}:{G+3}] op_sel_hi:[1,0,1]
    v_cvt_pk_bf16_f32 v{F}, v{F}, v{F+1}
    v_cvt_pk_bf16_f32 v{F+1}, v{F+2}, v{F+3}
    buffer_store_dwordx2 v[{F}:{F+1}], v{OUT}, s[24:27], 0 offen
"""
def lines(t): return [x.split(";")[0].strip() for x in t.strip().split("\n")]
def common_ids(diag): return f"""    s_lshr_b32 s9, s2, 2                    ; group
    s_and_b32 s6, s9, 3
    s_bfe_u32 s5, s2, 0x10004               ; batch
    s_lshr_b32 s7, s2, 5
    s_mov_b32 s26, 512000
    s_mov_b32 s27, 0x20000
    s_mul_i32 s8, s5, s26
    s_mov_b32 s30, {(10<<20) if diag else 64*GS}
    s_mov_b32 s31, s27
"""

class Compute:
    vLANE, vWA, vXA, vSEND = range(4)
    ACC = 4; PB = 36; NP = (256 - 36)//4
    def __init__(self, q, cfg):
        self.q, self.cfg = q, cfg
        self.seq = seq = mfma_seq(q, cfg)
        self.grp = groups(cfg)
        self.bar_of = {sg: n for n, g in enumerate(self.grp) for sg in g}
        self.p2 = min(k for k in range(480) if seq[k][2] >= 2); self.p3 = min(k for k in range(480) if seq[k][2] == 3)
        self.tb = self.p2 + cfg["t12"]; self.t3 = self.p3 + cfg["t3"]; self.chk = 480 - cfg["chk_back"]
        assert self.tb < self.t3 < self.chk
    def acc(self, c): return self.ACC + 4*c

    def plan(self, splits):
        cfg, seq, lead = self.cfg, self.seq, self.cfg["lead"]
        inst = {}; xi = []; wi = []; cur = {}
        for k, (c, sg, ph) in enumerate(seq):
            ds, i = divmod(sg, 15)
            xk = ("x", ds, c+i, ph)
            inst.setdefault(xk, []).append(k); xi.append(xk)
            if (sg, ph) in splits: cur[sg] = ph
            wk = ("w", sg, cur.get(sg, 1))
            inst.setdefault(wk, []).append(k); wi.append(wk)
        occ = {}; head = []
        for k in (self.tb, self.t3): occ[k-1] = (("rsv",), 0)
        un = lambda g: {"x": 2, "w": 1}.get(occ[g][0][0], 0) if g in occ else 0
        def place(key, hf, latest):
            cost = {"x": 2, "w": 1}.get(key[0], 0); g = latest
            while g >= 0 and (g in occ or any(sum(un(j) for j in range(a, a+4)) + cost > cfg["wcap"] for a in range(g-3, g+1))): g -= 1
            if g < 0:
                if key[0] != "b": head.append((key, hf))
                return -1
            occ[g] = (key, hf); return g
        issue = {}; lim = BIG
        for sg in range(59, -1, -1):
            key = ("w", sg, 1)
            g1 = place(key, 1, min(inst[key][0] - lead, lim)); g0 = place(key, 0, g1 - 1)
            issue[key] = g0; lim = g0 - 1
            if self.grp[self.bar_of[sg]][0] == sg: lim = place(("b", self.bar_of[sg]), 0, g0 - 1) - 1
        for key in sorted([k for k in inst if k not in issue], key=lambda k: -inst[k][0]):
            if key[0] == "x": issue[key] = place(key, 0, inst[key][0] - lead)
            else: issue[key] = place(key, 0, place(key, 1, inst[key][0] - lead) - 1)
        head.sort(key=lambda e: (inst[e[0]][0], e[0][0] == "x", e[1]))
        return inst, xi, wi, occ, head, issue

    def choose_splits(self):
        RING = self.cfg["RING"]; splits = set(); phase_of = [s[2] for s in self.seq]
        while True:
            inst, xi, wi, occ, head, issue = self.plan(splits)
            ev = [0]*482
            for key, uses in inst.items():
                ev[issue[key]+1] += 1; ev[uses[-1]+1] -= 1
            live = 0; bad = None
            for g in range(-1, 480):
                live += ev[g+1]
                if live > self.NP: bad = g; break
            if bad is None: return splits
            best = None
            for key, uses in inst.items():
                if key[0] != "w" or key[1] < 60-RING: continue
                prev = [u for u in uses if u <= bad]; nxt = [u for u in uses if u > bad]
                if prev and nxt and phase_of[nxt[0]] != phase_of[prev[-1]] and nxt[0] - bad > self.cfg["lead"] + 6:
                    if best is None or nxt[0] > best[0]: best = (nxt[0], (key[1], phase_of[nxt[0]]))
            assert best, ("register pressure", self.q, bad)
            splits.add(best[1])

    def build(self):
        cfg, q, seq = self.cfg, self.q, self.seq
        RING, safe, h, x4b = cfg["RING"], cfg["safe"], q & 1, cfg["x4b"]
        grp, bar_of = self.grp, self.bar_of; NB = len(grp)
        self.splits = self.choose_splits()
        inst, xi, wi, occ, backlog, issue = self.plan(self.splits)
        out = []; self.ninst = 0
        def emit(s): out.append("    " + s); self.ninst += 1
        pool = list(range(self.NP)); reg = {}
        take = lambda: self.PB + 4*pool.pop(0)
        lds = []; lastidx = {}
        st = dict(covered=0, nbar=0, k=0)
        self.free_bar = {}; self.x1_bar = None; self.x4_bar = None; self.bar_k = []
        pend_free = []; release = {}; lastuse = {}
        for key, uses in inst.items(): release.setdefault(uses[-1], []).append(key)
        for k, (c, sg, ph) in enumerate(seq): lastuse[c] = k
        sends = sorted([max(lastuse[2*d], lastuse[2*d+1]), d] for d in range(4) if d != q)
        tb, t3, chk = self.tb, self.t3, self.chk
        Q = []; mf_inst = {}
        def barrier():
            for sg in list(pend_free):
                if lastidx[("w", sg, 1)] < st["covered"]:
                    self.free_bar[sg] = st["nbar"]; pend_free.remove(sg)
            emit("s_barrier"); st["nbar"] += 1; self.bar_k.append(st["k"])
        def lds_read(text): emit(text); lds.append(st["k"]-1); return len(lds)-1
        def do_read(key, hf):
            if hf == 0: reg[key] = take()
            r = reg[key]
            if key[0] == "x":
                _, ds, u, _ = key
                while st["nbar"] <= (x4b if u >= 8 else 0): barrier()
                if ds >= 2 and self.x1_bar is None: self.x1_bar = st["nbar"] - 1
                if u >= 8 and self.x4_bar is None: self.x4_bar = st["nbar"] - 1
                off = (ds >> 1)*XL + (u >> 3)*2*XCH + (u & 7)*128 + (ds & 1)*64
                lastidx[key] = lds_read(f"ds_read_b128 v[{r}:{r+3}], v{self.vXA} offset:{off}")
            else:
                sg = key[1]
                if key[2] == 1:
                    while st["nbar"] <= bar_of[sg]: barrier()
                    if hf: pend_free.append(sg)
                i = lds_read(f"ds_read_b64_tr_b16 v[{r+2*hf}:{r+2*hf+1}], v{self.vWA} offset:{(sg % RING)*1024 + 512*hf}")
                if hf: lastidx[key] = i
        def wait_for(idx):
            if idx < st["covered"]: return False
            j = idx
            while j+1 < len(lds) and lds[j+1] <= st["k"] - 1 - safe: j += 1
            n = len(lds) - 1 - j
            assert n <= 15, n
            emit(f"s_waitcnt lgkmcnt({n})"); st["covered"] = j+1
            return True
        kind = lambda t: "S" if t.startswith("buffer_store") else "v" if t.startswith("v_") else "s"
        def ready():
            if not Q: return False
            after = Q[0][1]
            if after is None: return True
            if after[0] == "k": return st["k"] >= after[1]
            return after[1] in mf_inst and self.ninst - mf_inst[after[1]] >= 8
        def missing():
            if Q and Q[0][1] and Q[0][1][0] == "m" and Q[0][1][1] in mf_inst: return 8 - (self.ninst - mf_inst[Q[0][1][1]])
            return 0
        def nop(n): emit(f"s_nop {n-1}"); self.ninst += n-1
        def fill(slots):
            n = min(missing(), slots)
            if n > 0: nop(n); slots -= n
            while slots and ready() and kind(Q[0][0]) != "S":
                emit(Q.pop(0)[0]); slots -= 1
                if Q and Q[0][0] == "|": Q.pop(0); break
        def enq(items, after=None):
            for i, t in enumerate(items): Q.append((t, after if i == 0 else None))
        L = self.vLANE
        enq(lines(common_ids(cfg["diag"])) + ["s_lshl_b32 s12, s10, 10", f"v_lshl_add_u32 v{self.vSEND}, v{L}, 4, s12", f"s_mul_i32 s12, s9, {GS}"] +
            [f"s_add_u32 s{40+d}, s12, {slot(d, q)}" for d in range(4) if d != q] +
            [f"s_add_u32 s44, s12, {slot(q, q ^ 2)}", "s_mov_b32 s13, 0", "s_mov_b32 s38, 0xffff0000",
             f"s_mov_b32 s36, {f2u(-LOG2E if h else 2*LOG2E):#x}", "s_mov_b32 s37, s36",
             "s_add_u32 s24, s24, s8", "s_addc_u32 s25, s25, 0"], ("k", 14))
        started = set()
        for k in range(480):
            g = k-1; st["k"] = k
            c, sg, ph = seq[k]
            while sends and sends[0][0] < k:
                e, d = sends.pop(0); a0 = self.acc(2*d); a1 = a0 + 4
                enq([f"v_cvt_pk_bf16_f32 v{a0+j}, v{a0+2*j}, v{a0+2*j+1}" for j in range(4)] +
                    [f"v_min_u32 v{a0+j}, -2, v{a0+j}" for j in range(4)] +
                    [f"buffer_store_dwordx4 v[{a0}:{a0+3}], v{self.vSEND}, s[28:31], s{40+d} offen sc1"], ("m", e))
                if len(sends) == 1: spare = a1
                if not sends:
                    HW, HR, OUT = a1+1, a1+2, a1+3
                    enq(lines(final_addr(cfg, L, spare, a1, HW, HR, OUT, "s10", 1, h)))
            if k == chk:
                T = [take(), take()]
                chkP = ["s_waitcnt vmcnt(0)", f"v_max3_u32 v{T[0]}, v{P}, v{P+1}, v{P+2}", f"v_max_u32 v{T[0]}, v{T[0]}, v{P+3}",
                        f"v_cmp_eq_u32 vcc, -1, v{T[0]}"]
                enq(chkP + ["|", f"s_cbranch_vccnz L_again{q}\nL_fin{q}:"])
                for j in range(4): enq([f"v_lshlrev_b32 v{T[j >> 1] + 2*(j & 1)}, 16, v{P+j}", f"v_and_b32 v{T[j >> 1] + 2*(j & 1) + 1}, s38, v{P+j}"])
            item = occ.get(g)
            if item and item[0][0] in "xw": backlog.append(item); item = None
            if k == 0:
                for _ in range(cfg["burst0"]):
                    cand = [e for e in backlog if not (e[0][0] == "x" and e[0][2] >= 8) and not (e[0][0] == "w" and e[0][1] > 0)]
                    if cand: backlog.remove(cand[0]); do_read(*cand[0])
            late = xi[k] not in lastidx or wi[k] not in lastidx
            waited = False
            if not late: waited = wait_for(max(lastidx[xi[k]], lastidx[wi[k]]))
            if not waited and ready() and kind(Q[0][0]) == "s" and not item:
                emit(Q.pop(0)[0]); waited = True
            if not waited and missing() > 0 and not item: nop(1); waited = True
            cand = [e for e in backlog if not (e[0][0] == "x" and e[0][2] >= 8 and st["nbar"] <= x4b)
                    and not (k < cfg["w1at"] and e[0][0] == "w" and e[0][1] > 0)] if k else []
            if k == tb or (item and item[0][0] == "b" and item[0][1] == st["nbar"]):
                if k == tb: assert st["nbar"] == NB
                barrier()
                if not waited: fill(1)
            elif k == t3:
                assert not sends and not Q
                P = take()
                ldP = f"buffer_load_dwordx4 v[{P}:{P+3}], v{self.vSEND}, s[28:31], s44 offen sc1"
                emit(ldP)
            else:
                slots = 2
                if ready() and kind(Q[0][0]) == "S": emit(Q.pop(0)[0]); slots = 4
                if cand:
                    backlog.remove(cand[0]); do_read(*cand[0]); slots -= 1
                    if len(cand) > 2: backlog.remove(cand[1]); do_read(*cand[1]); slots -= 1
                fill(slots)
            if late:
                while xi[k] not in lastidx or wi[k] not in lastidx: do_read(*backlog.pop(0))
                wait_for(max(lastidx[xi[k]], lastidx[wi[k]]))
            a = self.acc(c); wr = reg[wi[k]]; xr = reg[xi[k]]
            cs = f"v[{a}:{a+3}]" if c in started else "0"
            started.add(c)
            emit(f"v_mfma_f32_16x16x32_bf16 v[{a}:{a+3}], v[{wr}:{wr+3}], v[{xr}:{xr+3}], {cs}")
            mf_inst[k] = self.ninst
            if cfg["diag"] in (1, 2) and k in cfg["kst"]: out.append(f"    s_memtime s[{76+2*cfg['kst'].index(k)}:{77+2*cfg['kst'].index(k)}]")
            for key in release.get(k, []): pool.append((reg[key] - self.PB)//4)
        assert st["nbar"] == NB + 1 and not backlog
        self.nlds = len(lds); self.left = len(Q)
        st["k"] = 490
        if cfg["diag"]: out.append("    s_memtime s[70:71]")
        def act(cc):
            t = T[cc]; a = self.acc(2*q+cc); pr = lambda r: f"v[{r}:{r+1}]"
            return ([f"v_pk_add_f32 {pr(t+j)}, {pr(t+j)}, {pr(a+j)}" for j in (0, 2)] + [f"v_pk_mul_f32 {pr(t+j)}, {pr(t+j)}, s[36:37]" for j in (0, 2)],
                    [f"v_exp_f32 v{t+j}, v{t+j}" for j in range(4)],
                    [f"v_pk_add_f32 {pr(t+j)}, {pr(t+j)}, 1.0 op_sel_hi:[1,0]" for j in (0, 2)],
                    [f"v_rcp_f32 v{t+j}, v{t+j}" for j in range(4)])
        wr = lambda cc: f"ds_write_b128 v{HW}, v[{T[cc]}:{T[cc]+3}] offset:{cc*HCS}"
        A0, A1 = act(0), act(1)
        enq(A0[0], ("m", lastuse[2*q])); enq(A0[1]); enq(A1[0], ("m", lastuse[2*q+1]))
        enq(A0[2] + A0[3] + A1[1] + [wr(0)] + A1[2] + A1[3] + ["s_nop 0", wr(1)] + lines(final_stage(HR, OUT, take(), take())))
        while Q:
            if missing() > 0: nop(missing())
            t = Q.pop(0)[0]
            if t != "|": emit(t)
        self.again = f"""L_again{q}:
    s_add_u32 s13, s13, 1
    s_cmp_ge_u32 s13, {cfg["spin"]}
    s_cbranch_scc1 L_fin{q}
""" + "".join(f"    {x}\n" for x in [ldP] + chkP) + f"""    s_cbranch_vccnz L_again{q}
    s_branch L_fin{q}
"""
        return "\n".join(out) + "\n"

DIAG_ST = """    s_lshl_b32 s12, s2, 3
    s_add_u32 s12, s12, s3
    s_lshl_b32 s12, s12, 8
    s_add_u32 s12, s12, 0x800000
    v_lshlrev_b32 v25, 2, v0
    buffer_store_dword v24, v25, s[28:31], s12 offen
    s_endpgm
"""
HEAD = """; tanh(f)*sigmoid(g) of a 15-tap, dilation-2 causal convolution, as an implicit GEMM (M=2000, N=512, K=3840).
; 256 workgroups = 64 groups of 4. A group owns 128 rows x 64 output channels; its members split {f,g} x {half of d},
; so that every weight line a CU fetches is used whole. Waves 0-3 stream x and w into LDS (LDS-DMA), waves 4-7 run the
"""

def gen(**kw):
    cfg = dict(DEF); cfg.update(kw)
    RING = cfg["RING"]; diag = cfg["diag"]; assert RING % 4 == 0
    if diag and not cfg["kst"]: cfg["kst"] = [0, 24, 60, 100, 180, 340, 470]
    comps = [Compute(q, cfg) for q in range(4)]
    bodies = [c.build() for c in comps]
    free_bar = {sg: max(c.free_bar[sg] for c in comps) for sg in range(60 - RING)}
    x1_bar = min(c.x1_bar for c in comps); x4_bar = min(c.x4_bar for c in comps)
    XBASE = xbase(cfg); WS = wstr(cfg); lds = hbase(cfg) + 2*HREG
    info = [f"cfg={cfg}", f"re-reads {[len(c.splits) for c in comps]} lds reads {[c.nlds for c in comps]} left {[c.left for c in comps]} x1_bar={x1_bar} x4_bar={x4_bar}"]
    s = "    s_cmpk_ge_u32 s2, 256\n    s_cbranch_scc1 L_end\n"
    if diag: s += "    s_memrealtime s[94:95]\n    s_memtime s[96:97]\n"
    s += f"""    v_readfirstlane_b32 s3, v0
    s_bitcmp1_b32 s3, 8
    s_cbranch_scc1 L_compute
    s_load_dwordx4 s[16:19], s[0:1], 0      ; x, w
    s_lshr_b32 s7, s2, 5
    s_bfe_u32 s11, s2, 0x10001
    s_lshr_b32 s61, s3, 7
    s_lshl3_add_u32 s12, s7, s61
    s_lshr_b32 s3, s3, 6                    ; wave
    s_and_b32 s13, s3, 1
    s_lshl4_add_u32 s12, s12, s13
    s_sub_u32 s12, s12, 28
    s_lshl1_add_u32 s12, s12, s11
    s_lshl_b32 s12, s12, 8
    v_and_b32 v2, 56, v0
    v_lshlrev_b32 v2, 7, v2
    v_and_b32 v3, 7, v0
    v_lshlrev_b32 v3, 4, v3
    v_add3_u32 v8, v2, v3, s12
    s_mov_b32 s26, 512000
    s_mov_b32 s27, 0x20000
    s_bitcmp1_b32 s2, 4                     ; batch
    s_cselect_b32 s8, s26, 0
    s_mul_i32 s36, s3, {XCH}
    s_add_u32 s36, s36, {XBASE}
    s_mov_b32 m0, s36
    s_movk_i32 s39, 0x4000
    s_waitcnt lgkmcnt(0)
    s_mov_b64 s[20:21], s[18:19]
    s_mov_b64 s[18:19], s[26:27]
    s_add_u32 s16, s16, s8
    s_addc_u32 s17, s17, 0
"""
    if diag: s += "    s_memtime s[98:99]\n"
    COMP = f"""    s_branch L_loader
L_compute:
    s_getpc_b64 s[46:47]
L_pc:
    v_and_b32 v0, 63, v0                    ; lane
    s_and_b32 s4, s2, 3
    s_lshr_b32 s3, s3, 6                    ; wave
    s_and_b32 s10, s3, 3
    s_lshr_b32 s12, s2, 3
    s_lshl2_add_u32 s12, s12, s10
    s_lshl_b32 s12, s12, 6
    s_and_b32 s13, s12, 0xfc0
    s_load_dword s54, s[46:47], s13
    s_lshl_b32 s13, s4, 13
    s_add_u32 s12, s12, s13
    s_add_u32 s12, s12, L_role0-L_pc
    s_load_dword s55, s[46:47], s12
    v_and_b32 v8, 15, v0
    v_lshrrev_b32 v9, 4, v0                 ; k chunk
    v_mul_u32_u24 v2, {XCH}, v8
    v_lshl_add_u32 v2, v9, 4, v2
    v_add_u32 v2, {XBASE}, v2
    v_lshrrev_b32 v11, 3, v8
    v_and_b32 v12, 1, v9
    v_lshl_or_b32 v11, v12, 1, v11          ; swizzle
    v_xor_b32 v11, s10, v11
    v_and_or_b32 v11, v8, 12, v11
    v_and_b32 v12, 3, v8
    v_lshl_add_u32 v11, v11, 2, v12
    v_mul_u32_u24 v1, {WS}, v9
    v_lshl_add_u32 v1, v11, 3, v1
    s_mov_b64 exec, 0
    s_cmp_eq_u32 s10, 0
    s_cbranch_scc1 L_padL0
L_disp:
    s_cmp_eq_u32 s4, 1
    s_cbranch_scc1 L_role1
    s_cmp_eq_u32 s4, 2
    s_cbranch_scc1 L_role2
    s_cmp_eq_u32 s4, 3
    s_cbranch_scc1 L_role3
    s_branch L_role0
L_loader:
"""
    WPREP = f"""    v_and_b32 v0, 63, v0                    ; lane
    s_and_b32 s4, s2, 3
    s_bfe_u32 s6, s2, 0x20002
    s_lshl_b32 s13, s13, 6
    v_and_b32 v4, 16, v0
    v_lshlrev_b32 v4, 1, v4
    v_or_b32 v4, s13, v4
    v_xor_b32 v3, v3, v4
    s_and_b32 s14, s4, 1
    s_lshl2_add_u32 s14, s14, s6
    s_lshl_b32 s15, s11, 10
    s_add_u32 s15, s15, s14
    s_lshl_b32 s15, s15, 7
    s_lshl_b32 s12, s3, 13
    s_add_u32 s12, s12, s15
    v_add3_u32 v7, v2, v3, s12              ; w offset
    s_mul_i32 s37, s3, {WS}
    s_mov_b32 s22, 3932160
    s_mov_b32 s23, s27
"""
    PPREP = f"""    s_lshr_b32 s60, s2, 3
    s_lshl_b32 s60, s60, 10
    s_add_u32 s60, s60, s15
    s_lshl_b32 s13, s13, 2
    s_xor_b32 s60, s60, s13
    v_bfrev_b32 v19, 1
"""
    W1PREP = f"""    s_movk_i32 s51, 0x1000
    s_mov_b32 s52, {262144 - 1024}
    s_add_u32 s49, s52, s51
"""
    order = []; nw = [0]
    def add(tok):
        if tok == "w":
            order.append(("w", nw[0])); nw[0] += 1
            for t in cfg["ins"].get(nw[0]-1, []): add(t)
        elif tok[0] in "xy": order.append(("x", int(tok[0] == "y"), int(tok[1])))
        elif tok == "C": order.extend([("c", 0), ("c", 1), ("c", 2)])
        elif tok == "T": order.append(("t",))
        elif tok[0] == "P": order.append(("p",) + tuple(int(v) for v in tok.split(":")[1:]))
        else: raise ValueError(tok)
    for t in cfg["pre"]: add(t)
    K0 = len(order)
    while nw[0] < 60: add("w")
    areg = {op: 56 + i for i, op in enumerate(o for o in order if o[0] == "p")}
    def addr_asm(op):
        _, a, b = op
        return f"""    s_add_u32 s12, s61, {a}
    v_lshl_add_u32 v20, v0, 1, s12          ; stage
    v_mul_u32_u24 v21, 4370, v20
    v_lshrrev_b32 v21, 16, v21              ; d step
    v_mul_u32_u24 v21, {15*262144-32768}, v21
    v_cmp_gt_u32 vcc, {b}, v20
    v_lshl_add_u32 v20, v20, 18, s60
    v_sub_u32 v21, v20, v21
    v_cndmask_b32 v{areg[op]}, v19, v21, vcc
"""
    assert order[:5] == [("x", 0, 0), ("x", 0, 1), ("x", 0, 2), ("x", 0, 3), ("w", 0)]
    ms = dict(m0=("x", 0), so=None)
    def setm0(kind, off):
        prev = ms["m0"]; ms["m0"] = (kind, off)
        if prev == (kind, off): return ""
        if prev[0] == kind and abs(off - prev[1]) < 32768: return f"    s_addk_i32 m0, {off - prev[1]}\n"
        return f"    s_add_u32 m0, {'s36' if kind == 'x' else 's37'}, {off}\n"
    def op_asm(op):
        if op[0] == "x":
            _, L, m = op
            t = setm0("x", L*(XL-128) + 4*m*XCH)
            return t + (f"    v_add_u32 v{8+m}, s39, v{7+m}\n" if m and not L else "    s_nop 0\n" if t else "") + f"    buffer_load_dwordx4 v{8+m}, s[16:19], 0 offen offset:{128*L} lds\n"
        if op[0] == "w":
            sl = op[1] % RING; io = (sl & 3)*1024; so = woff(op[1]) - io; d = None if ms["so"] is None else so - ms["so"]; ms["so"] = so
            t = {262144-1024: "s_add_u32 s38, s38, s52", 262144+3072: "s_add_u32 s38, s38, s49"}.get(d, f"s_mov_b32 s38, {so}")
            return setm0("w", (sl & ~3)*1024) + f"    {t}\n    buffer_load_dwordx4 v7, s[20:23], s38 offen offset:{io} lds\n"
        if op[0] == "p": return f"    buffer_load_dword v23, v{areg[op]}, s[20:23], 0 offen\n"
        if op[0] == "c": return f"    buffer_store_dwordx4 v[24:27], v13, s[28:31], s{44+op[1]} offen sc1\n"
        return "    buffer_load_dword v23, off, s[24:27], 0\n"
    SL = [f"    s_buffer_load_dwordx2 s[54:55], s[16:19], s53 offset:{512*i + 188}\n" for i in range(4)]
    prev = (0, 0); bit = {0: "s56", 1: "s57", 2: "s51", 3: "s59", 4: "s39"}
    for j, sg in enumerate(range(cfg["sfrom"], 60, 2)):
        cur = (woff(sg), woff(min(sg+1, 59))); dA, dB = cur[0]-prev[0], cur[1]-prev[1]; prev = cur
        t = f"    s_add_u32 s60, s60, {'s63' if dA == 524288 else hex(dA & 0xffffffff)}\n"
        if dA != dB: t += f"    s_mul_i32 s12, s61, {hex((dB-dA) & 0xffffffff)}\n    s_add_u32 s60, s60, s12\n"
        if j: t += f"    s_xor_b32 s60, s60, {bit[(j & -j).bit_length()-1]}\n"
        SL.append(t + "    s_buffer_load_dwordx2 s[54:55], s[20:23], s60 offset:60\n")
    KA2 = """    s_load_dwordx2 s[28:29], s[0:1], 32     ; ws
    s_load_dwordx2 s[24:25], s[0:1], 16     ; out
"""
    later = f"""; while the first loads are under way: touch the hand-off and output pages once (address translation), later addresses
    s_lshr_b32 s9, s2, 2                    ; group
    s_mov_b32 s30, {(10<<20) if diag else 64*GS}
    s_mov_b32 s31, s27
    s_mul_i32 s48, s9, {GS}
    s_waitcnt lgkmcnt(0)
    s_load_dword s54, s[28:29], s48 offset:{12*SS}   ; a line of the group's area that is never written
    s_load_dwordx2 s[54:55], s[24:25], 60
    s_movk_i32 s34, 256
    s_mov_b32 s35, s27
    s_lshl_b32 s58, s9, 2
""" + "".join(f"""    s_xor_b32 s{43+p}, s4, {p}
    s_mulk_i32 s{43+p}, {3*SS}
    s_add_u32 s{43+p}, s{43+p}, s48
""" + (f"    s_addk_i32 s{43+p}, {(p-1)*SS}\n" if p > 1 else "") for p in (1, 2, 3)) + f"""    s_lshl_b32 s12, s3, 10
    v_lshl_add_u32 v13, v0, 4, s12          ; lane*16 + wave*1024
    v_mov_b32 v24, -1
    v_mov_b32 v25, -1
    v_mov_b32 v26, -1
    v_mov_b32 v27, -1
    s_lshl3_add_u32 s53, s7, s14
    s_lshl2_add_u32 s53, s53, s3
    s_lshl3_add_u32 s53, s53, s11
    s_lshl_b32 s53, s53, 8
    s_mov_b32 s63, 0x80000
    s_movk_i32 s56, 0x400
    s_movk_i32 s57, 0x800
    s_movk_i32 s59, 0x2000
""" + "".join(addr_asm(op) for op in order[K0:] if op in areg) + """    s_lshl_b32 s12, s61, 14
    s_xor_b32 s60, s60, s12
"""
    issued = []; oi = 0
    grp = groups(cfg); NB = len(grp)
    tbar = [16*min(c.bar_k[n] for c in comps) for n in range(NB)]
    can = lambda op, nb: not (op[0] == "w" and op[1] >= RING and nb <= free_bar[op[1]-RING])
    cost = lambda op: cfg["opc"] if op[0] in "wx" else 3*(op[2]-op[1]) if op[0] == "p" else cfg["cc"] if op[0] == "c" else 30
    cov = None; flagn = None; tpipe = 0; tta = 0; shift = 0; done_t = {}; sched = []
    for n in range(NB):
        needs = [("w", grp[n][-1])] + [("x", 0, m) for m in range(4)]
        if n >= x4_bar: needs.append(("x", 0, 4))
        if n >= x1_bar: needs += [("x", 1, m) for m in range(5)]
        cnt = 0; now = tbar[n-1] + shift if n else 0
        while oi < len(order) and can(order[oi], n):
            op = order[oi]
            forced = any(x not in issued for x in needs)
            ta = max(tta, now + 20) + cost(op)
            if n in cfg["quota"] and not forced:
                if cnt >= cfg["quota"][n]: break
            elif n > 0 and not forced:
                nxt = max([tbar[n] + shift] + [done_t[x] for x in needs])
                inev = any(o[0] in "pc" and d > now for o, d in done_t.items())
                if (ta > nxt + cfg["slack"] and cnt) or cnt >= cfg["maxn"] or sum(d > ta for d in done_t.values()) >= (cfg["cap2"] if inev else cfg["cap"]): break
            if n == 0 and not forced and cnt >= K0: break
            if oi == 4: szA = tsize(s); s += COMP + WPREP
            if oi == 5: s += PPREP
            if op == ("w", 1): s += W1PREP
            if op in areg and oi < K0: s += addr_asm(op)
            s += op_asm(op); issued.append(op); oi += 1; cnt += 1
            if oi == 6: s += KA2 + "    s_load_dwordx2 s[32:33], s[0:1], 24     ; debug\n"
            if n == 0:
                if not forced: tpipe += cost(op) + (cfg["ev0"] if op[0] == "p" else 0)
            else:
                tta = ta
                tpipe = max(tpipe + cost(op), ta + {"p": cfg["ev"], "c": cfg["evc"]}.get(op[0], cfg["lat"]))
            done_t[op] = tpipe
        if n == 0:
            if diag: s += "    s_memtime s[88:89]\n"
            s += later
        for _ in range(cfg["ssch"].get(n, 0) if cfg["ssch"] else cfg["s1"] if n == 1 else int(n >= cfg["s2"])):
            if SL: s += SL.pop(0)
        if cov is not None and flagn is None and len(SL) <= cfg["fleft"]:
            flagn = n
            s += """    s_cmp_lg_u32 s3, 0
    s_cbranch_scc1 L_noflag
    s_mov_b32 s62, 1
    s_atomic_add s62, s[32:33], s58
L_noflag:
"""
        need = max(issued.index(x) for x in needs)
        if cov is None and ("c", 2) in issued and need > issued.index(("c", 2)): cov = n
        shift = max(shift, done_t[issued[need]] - tbar[n])
        vm = len(issued) - 1 - need
        sched.append((cnt, vm, shift))
        assert vm <= 63
        s += f"    s_waitcnt vmcnt({vm})\n    s_barrier\n"
        if n == 0: sz0 = tsize(s)
    assert oi == len(order) and not SL and flagn
    info[-1] += f" cov={cov} flag={flagn}"
    info.append(f"loader (issued, vmcnt, modelled stall) per barrier: {sched}")
    polls = """    buffer_load_dwordx4 v[24:27], v13, s[28:31], s48 offen sc1
    buffer_load_dwordx4 v[28:31], v13, s[28:31], s50 offen sc1
"""
    FL = "    buffer_load_dword v16, off, s[32:35], s58 sc1\n"
    s += (FL if cfg["flpos"] == 0 else "") + f"""    s_mul_i32 s12, s4, {3*SS}
    s_add_u32 s48, s48, s12                 ; slots written by the two partners of the other half
    s_add_u32 s50, s48, s59
    s_bitcmp1_b32 s4, 0                     ; own half is g -> other is f
    s_mov_b32 s40, {f2u(-LOG2E):#x}
    s_cselect_b32 s40, {f2u(2*LOG2E):#x}, s40
    s_mov_b32 s41, 0xffff0000
    s_add_u32 s24, s24, s8
    s_addc_u32 s25, s25, 0
""" + final_addr(cfg, 0, 20, 21, 14, 19, 22, "s3", 0, None) + (FL if cfg["flpos"] else "") + """    s_mov_b32 s13, 0
    s_waitcnt vmcnt(0)
    v_cmp_gt_u32 vcc, 4, v16                ; all four members have marked their slots?
    s_cbranch_vccnz L_flag
L_flagok:
""" + ("    s_mov_b32 s92, s13\n" if diag else "") + "    s_mov_b32 s13, 0\n    s_barrier\n"
    if diag: s += "    s_memtime s[80:81]\n"
    s += polls + (f"    s_setprio {cfg['lprio']}\n" if cfg["lprio"] else "") + """L_poll:
    s_waitcnt vmcnt(0)
    v_max3_u32 v36, v24, v25, v26
    v_max3_u32 v37, v27, v28, v29
    v_max3_u32 v36, v36, v30, v31
    v_max_u32 v36, v36, v37
    v_cmp_eq_u32 vcc, -1, v36
    s_cbranch_vccnz L_repoll
L_got:
"""
    if diag: s += "    s_memtime s[82:83]\n    s_add_u32 s93, s13, 1\n"
    for cc in (0, 1):
        R = range(4*cc, 4*cc+4)
        for j in (2*cc, 2*cc+1):
            s += f"    v_lshlrev_b32 v{40+2*j}, 16, v{24+j}\n    v_and_b32 v{41+2*j}, s41, v{24+j}\n"
            s += f"    v_lshlrev_b32 v{48+2*j}, 16, v{28+j}\n    v_and_b32 v{49+2*j}, s41, v{28+j}\n"
        for j in R: s += f"    v_add_f32 v{40+j}, v{40+j}, v{48+j}\n"
        for j in R: s += f"    v_mul_f32 v{40+j}, s40, v{40+j}\n"
        for j in R: s += f"    v_exp_f32 v{40+j}, v{40+j}\n"
        for j in R: s += f"    v_add_f32 v{40+j}, 1.0, v{40+j}\n"
        for j in R: s += f"    v_rcp_f32 v{40+j}, v{40+j}\n"
        s += f"    s_nop 0\n    ds_write_b128 v14, v[{40+4*cc}:{43+4*cc}] offset:{HCS*cc}\n"
    fs = final_stage(19, 22, 24, 28)
    if diag:
        fs = fs.replace("    s_barrier\n", "    s_memtime s[86:87]\n    s_barrier\n    s_memtime s[84:85]\n")
        fs += "    s_waitcnt vmcnt(0)\n    s_memrealtime s[90:91]\n    s_branch L_diagL\n"
    s += fs + f"""L_end:
    s_endpgm
L_repoll:
    s_add_u32 s13, s13, 1
    s_cmp_ge_u32 s13, {cfg["spin"]}
    s_cbranch_scc1 L_got
""" + polls + f"""    s_branch L_poll
L_flag:
    s_add_u32 s13, s13, 1
    s_cmp_ge_u32 s13, {cfg["spin"]}
    s_cbranch_scc1 L_flagok
    buffer_load_dword v16, off, s[32:35], s58 sc1
    s_waitcnt vmcnt(0)
    v_cmp_gt_u32 vcc, 4, v16
    s_cbranch_vccnz L_flag
    s_branch L_flagok
"""
    npl = (tsize(s) - 64)//1024
    page0, end0 = add_pads(s, [f"L_padL{k}" for k in range(npl)], [f"L_padL{k+1}" for k in range(npl-1)] + ["L_disp"], lambda L, i: True)
    assert end0 <= 3328, end0
    sizes = [szA, sz0, end0]; roles = ""
    for q in range(4):
        s = KA2 + f"""    s_cmp_eq_u32 s10, 1
    s_cbranch_scc1 L_pad{q}_0
    s_cmp_eq_u32 s10, 2
    s_cbranch_scc1 L_pad{q}_1
    s_cmp_eq_u32 s10, 3
    s_cbranch_scc1 L_pad{q}_2
    s_branch NPD0
L_main{q}:
    s_mov_b64 exec, -1
    s_setprio {cfg["prio"]}
""" + ("    s_memtime s[72:73]\n    s_waitcnt lgkmcnt(0)\n    s_memtime s[74:75]\n" if diag else "") + "    s_waitcnt lgkmcnt(0)\n" + bodies[q]
        if diag: s += "    s_memtime s[64:65]\n    s_waitcnt vmcnt(0)\n    s_memtime s[66:67]\n    s_memrealtime s[68:69]\n    s_branch L_diagC\n"
        s += "    s_endpgm\n" + comps[q].again
        npd = (7 if tsize(s) + 24 >= 7168 + 64 else 6) if cfg["touch"] == 3 else 3
        s = s.replace("NPD0", f"L_pad{q}_6" if npd == 7 else f"L_main{q}")
        s, end = add_pads(s, [f"L_pad{q}_{k}" for k in range(npd)], [f"L_pad{q}_{k+3}" if k < 3 and k+3 < npd else f"L_main{q}" for k in range(npd)],
                          lambda L, i: L[i].strip().startswith("v_mfma") and L[i-1].strip().startswith("v_mfma"))
        assert end <= 8192, end
        sizes.append(end)
        roles += f".p2align 12\n; ---------------- compute waves, role {q} ----------------\nL_role{q}:\n" + s
    if diag:
        roles += ".p2align 12\nL_diagC:\n    s_waitcnt lgkmcnt(0)\n    v_mov_b32 v24, 0\n"
        for i, r in enumerate(["s94", "s64", "s66", "s68", "s70", "s13", "s72", "s74"] + [f"s{76+2*j}" for j in range(7)]):
            if i in (1, 2, 4) or i > 5: roles += f"    s_sub_u32 {r}, {r}, s96\n"
            roles += f"    v_writelane_b32 v24, {r}, {i}\n"
        roles += DIAG_ST + "L_diagL:\n    s_waitcnt lgkmcnt(0)\n    v_mov_b32 v24, 0\n"
        for i, r in enumerate(["s94", "s98"] + [f"s{64+2*i}" for i in range(11)] + ["s92", "s93", "s86", "s88", "s88", "s90", "s0"]):
            if 1 <= i <= 12 or i in (15, 16): roles += f"    s_sub_u32 {r}, {r}, s96\n"
            roles += f"    v_writelane_b32 v24, {r}, {i}\n"
        roles += DIAG_ST
    info.append(f"code bytes: {sizes}")
    s = HEAD + f"""; @launch grid=(256,1,1) block=(512,1,1) lds={lds}
.amdgcn_target "amdgcn-amd-amdhsa--gfx950"
.text
.p2align 12
.globl {NAME}
.p2align 8
.type {NAME},@function
{NAME}:
""" + page0 + roles + f""".p2align 12
.section .rodata,"a"
.p2align 6
.amdhsa_kernel {NAME}
  .amdhsa_next_free_vgpr 256
  .amdhsa_next_free_sgpr 102
  .amdhsa_accum_offset 256
  .amdhsa_group_segment_fixed_size 0
  .amdhsa_kernarg_size 40
  .amdhsa_user_sgpr_count 2
  .amdhsa_user_sgpr_kernarg_segment_ptr 1
  .amdhsa_system_sgpr_workgroup_id_x 1
.end_amdhsa_kernel
"""
    if diag == 3: s = re.sub(r"    s_memtime .*\n", "    s_mov_b32 s100, 0x12345\n", s)
    if diag == 2: s = s.replace("s_memtime", "s_memrealtime")
    gen.info = info
    return s, lds

if __name__ == "__main__":
    kw = {}
    for a in sys.argv[2:]:
        k, v = a.split("=", 1)
        kw[k] = eval(v)
    s, lds = gen(**kw)
    open(sys.argv[1], "w").write(s)
    print("\n".join(gen.info[1:]))
```

```python
import sys, re, struct

NAME = "standalone__autoregressive_conv_wavernn__speech_kernel"
LOG2E = 1.4426950408889634
def f2u(x): return struct.unpack("<I", struct.pack("<f", x))[0]

DEF = dict(RING=24, n_early=16, n_late=16, lead=8, safe=5, wcap=6, x4b=1, w1at=4, burst0=8,
           single=4, grp=2, chain2=2,
           pre=["x0", "x1", "x2", "x3", "w", "P:1:23", "x4", "w", "w", "w", "w"],
           ins={16: ["y0", "y1", "y2", "y3", "y4", "C"], 59: ["T"]},
           sfrom=23, s1=4, s2=4, ssch=None, fdel=4, cpv=0, pubn=1, ypk=1, touch=3,
           opc=70, cap=9, cap2=11, lat=300, ev=900, ev0=200, evc=700, cc=170, slack=80, maxn=4, quota={1: 3, 2: 1, 3: 2, 4: 2},
           t12=56, t3=52, chk_back=1, prio=1, lprio=0, spin=200000, diag=0, kst=None)
XCH = 1056
XL = 20*XCH
HRS = 272
HCS = 16*HRS
HREG = 2*HCS
SS = 4096
GS = 12*SS + 256
BIG = 10**9
def wstr(cfg): return cfg["RING"]*1024
def xbase(cfg): return 4*wstr(cfg)
def hbase(cfg): return xbase(cfg) + 2*XL
def slot(dst, src): return (3*dst + (dst ^ src) - 1)*SS
def woff(sg): return (sg % 15)*262144 + (sg//15)*32768

def groups(cfg):
    g = [[sg] for sg in range(cfg["single"])]
    sg = cfg["single"]
    while sg < 60:
        g.append(list(range(sg, min(60, sg + cfg["grp"])))); sg += cfg["grp"]
    return g

_INL = {"0.5","-0.5","1.0","-1.0","2.0","-2.0","4.0","-4.0"}
_V8 = ("v_mfma","v_add3","v_lshl_add","v_lshl_or","v_max3","v_fma_","v_cvt_pk","v_writelane","v_readlane","v_mul_lo",
       "v_and_or","v_bfe","v_perm_","v_mad","v_add_lshl","v_xad","v_mbcnt","v_or3","v_pk_")
def isize(line):
    t = line.split(";")[0].strip()
    if not t or t.endswith(":") or t.startswith("."): return 0
    mn = t.split()[0]
    if mn.startswith("v_cmp") and not t.split()[1].startswith("vcc"): return 8
    if mn.startswith(("ds_","buffer_","global_","s_load","s_buffer_load","s_memtime","s_memrealtime","s_atomic")) or mn.startswith(_V8): return 8
    if mn.startswith(("s_waitcnt","s_barrier","s_nop","s_branch","s_cbranch","s_setprio","s_endpgm","s_movk","s_addk","s_mulk","s_cmpk")): return 4
    for o in t[len(mn):].split(","):
        o = o.strip()
        if o in _INL or re.match(r"^(s|v)(\d|\[)|^(vcc|exec|m0|scc)", o): continue
        try:
            if -16 <= int(o, 0) <= 64: continue
        except ValueError: pass
        return 8
    return 4
def tsize(text): return sum(isize(l) for l in text.split("\n"))
def add_pads(text, names, targets, prefer, pos):
    lines = text.split("\n"); out = []; off = 0; k = 0
    for i, l in enumerate(lines):
        if k < len(names) and off >= pos[k] and isize(l):
            if prefer(lines, i) or off + isize(l) >= pos[k] + 60:
                out.append(f"{names[k]}:\n    s_cbranch_execz {targets[k]}"); off += 4; k += 1
        out.append(l); off += isize(l)
    assert k == len(names)
    return "\n".join(out), off

def mfma_seq(q, cfg):
    ne, nl = cfg["n_early"], cfg["n_late"]
    own = (2*q, 2*q+1); t = q ^ 2; third = (2*t, 2*t+1)
    act = lambda sg: [c for c in range(8) if not (c in own and sg >= ne) and not (c in third and sg >= 60-nl)]
    seq = []
    for g in groups(cfg):
        for c in range(8): seq += [(c, sg, 1) for sg in g if c in act(sg)]
    for cs, lo, ph in ((third, 60-nl, 2), (own, ne, 3)):
        sg = lo
        while sg < 60:
            hi = min(sg + cfg["chain2"], (sg//15 + 1)*15)
            for c in cs: seq.extend((c, s, ph) for s in range(sg, hi))
            sg = hi
    assert len(seq) == 480 and len(set((c, s) for c, s, _ in seq)) == 480
    return seq

def final_addr(cfg, L, t0, t1, HW, HR, OUT, sw, cset, h):
    HB = hbase(cfg)
    return f"""    v_and_b32 v{t0}, 15, v{L}
    v_lshrrev_b32 v{t1}, 4, v{L}
    v_mad_u32_u24 v{HW}, v{t0}, {HRS//16}, v{t1}
    s_lshl_b32 s12, {sw}, 6
""" + (f"    s_bitcmp0_b32 s4, 0\n    s_cselect_b32 s42, {HREG}, 0\n    s_add_u32 s12, s12, s42\n" if h is None else "") + f"""    s_add_u32 s12, s12, {HB + (h or 0)*HREG}
    v_lshl_add_u32 v{HW}, v{HW}, 4, s12
    v_mad_u32_u24 v{HR}, v{t1}, {HRS//16}, v{t0}
    s_mul_i32 s12, {sw}, {4*HRS}
    s_add_u32 s12, s12, {HB + cset*HCS}
    v_lshl_add_u32 v{HR}, v{HR}, 4, s12
    v_mul_u32_u24 v{t1}, 9, v{t1}
    v_and_b32 v{t1}, 17, v{t1}
    s_lshl2_add_u32 s12, s7, {sw}
    s_lshl3_add_u32 s12, s12, s4
    s_lshl4_add_u32 s12, s12, s6
""" + ("    s_add_u32 s12, s12, 8\n" if cset else "") + f"""    s_lshl_b32 s12, s12, 7
    v_lshl_add_u32 v{OUT}, v{t1}, 6, v{t0}
    v_lshl_add_u32 v{OUT}, v{OUT}, 3, s12
"""
def final_stage(HR, OUT, F, G):
    return f"""    s_waitcnt lgkmcnt(0)
    s_barrier
    ds_read_b128 v[{F}:{F+3}], v{HR}
    ds_read_b128 v[{G}:{G+3}], v{HR} offset:{HREG}
    s_waitcnt lgkmcnt(0)
    v_pk_mul_f32 v[{F}:{F+1}], v[{F}:{F+1}], v[{G}:{G+1}]
    v_pk_mul_f32 v[{F+2}:{F+3}], v[{F+2}:{F+3}], v[{G+2}:{G+3}]
    v_pk_fma_f32 v[{F}:{F+1}], v[{F}:{F+1}], -2.0, v[{G}:{G+1}] op_sel_hi:[1,0,1]
    v_pk_fma_f32 v[{F+2}:{F+3}], v[{F+2}:{F+3}], -2.0, v[{G+2}:{G+3}] op_sel_hi:[1,0,1]
    v_cvt_pk_bf16_f32 v{F}, v{F}, v{F+1}
    v_cvt_pk_bf16_f32 v{F+1}, v{F+2}, v{F+3}
    buffer_store_dwordx2 v[{F}:{F+1}], v{OUT}, s[24:27], 0 offen
"""
def lines(t): return [x.split(";")[0].strip() for x in t.strip().split("\n")]
def common_ids(diag): return f"""    s_lshr_b32 s9, s2, 2                    ; group
    s_and_b32 s6, s9, 3
    s_lshr_b32 s7, s2, 5
    s_mov_b32 s26, 512000
    s_mov_b32 s27, 0x20000
    s_bitcmp1_b32 s2, 4                     ; batch
    s_cselect_b32 s8, s26, 0
    s_mov_b32 s30, {(10<<20) if diag else 64*GS}
    s_mov_b32 s31, s27
"""

class Compute:
    vLANE, vWA, vXA, vSEND = range(4)
    ACC = 4; PB = 36; NP = (256 - 36)//4
    def __init__(self, q, cfg):
        self.q, self.cfg = q, cfg
        self.seq = seq = mfma_seq(q, cfg)
        self.grp = groups(cfg)
        self.bar_of = {sg: n for n, g in enumerate(self.grp) for sg in g}
        self.p2 = min(k for k in range(480) if seq[k][2] >= 2); self.p3 = min(k for k in range(480) if seq[k][2] == 3)
        self.tb = self.p2 + cfg["t12"]; self.t3 = self.p3 + cfg["t3"]; self.chk = 480 - cfg["chk_back"]
        assert self.tb < self.t3 < self.chk
    def acc(self, c): return self.ACC + 4*c

    def plan(self, splits):
        cfg, seq, lead = self.cfg, self.seq, self.cfg["lead"]
        inst = {}; xi = []; wi = []; cur = {}
        for k, (c, sg, ph) in enumerate(seq):
            ds, i = divmod(sg, 15)
            xk = ("x", ds, c+i, ph)
            inst.setdefault(xk, []).append(k); xi.append(xk)
            if (sg, ph) in splits: cur[sg] = ph
            wk = ("w", sg, cur.get(sg, 1))
            inst.setdefault(wk, []).append(k); wi.append(wk)
        occ = {}; head = []
        for k in (self.tb, self.t3): occ[k-1] = (("rsv",), 0)
        un = lambda g: {"x": 2, "w": 1}.get(occ[g][0][0], 0) if g in occ else 0
        def place(key, hf, latest):
            cost = {"x": 2, "w": 1}.get(key[0], 0); g = latest
            while g >= 0 and (g in occ or any(sum(un(j) for j in range(a, a+4)) + cost > cfg["wcap"] for a in range(g-3, g+1))): g -= 1
            if g < 0:
                if key[0] != "b": head.append((key, hf))
                return -1
            occ[g] = (key, hf); return g
        issue = {}; lim = BIG
        for sg in range(59, -1, -1):
            key = ("w", sg, 1)
            g1 = place(key, 1, min(inst[key][0] - lead, lim)); g0 = place(key, 0, g1 - 1)
            issue[key] = g0; lim = g0 - 1
            if self.grp[self.bar_of[sg]][0] == sg: lim = place(("b", self.bar_of[sg]), 0, g0 - 1) - 1
        for key in sorted([k for k in inst if k not in issue], key=lambda k: -inst[k][0]):
            if key[0] == "x": issue[key] = place(key, 0, inst[key][0] - lead)
            else: issue[key] = place(key, 0, place(key, 1, inst[key][0] - lead) - 1)
        head.sort(key=lambda e: (inst[e[0]][0], e[0][0] == "x", e[1]))
        return inst, xi, wi, occ, head, issue

    def choose_splits(self):
        RING = self.cfg["RING"]; splits = set(); phase_of = [s[2] for s in self.seq]
        while True:
            inst, xi, wi, occ, head, issue = self.plan(splits)
            ev = [0]*482
            for key, uses in inst.items():
                ev[issue[key]+1] += 1; ev[uses[-1]+1] -= 1
            live = 0; bad = None
            for g in range(-1, 480):
                live += ev[g+1]
                if live > self.NP: bad = g; break
            if bad is None: return splits
            best = None
            for key, uses in inst.items():
                if key[0] != "w" or key[1] < 60-RING: continue
                prev = [u for u in uses if u <= bad]; nxt = [u for u in uses if u > bad]
                if prev and nxt and phase_of[nxt[0]] != phase_of[prev[-1]] and nxt[0] - bad > self.cfg["lead"] + 6:
                    if best is None or nxt[0] > best[0]: best = (nxt[0], (key[1], phase_of[nxt[0]]))
            assert best, ("register pressure", self.q, bad)
            splits.add(best[1])

    def build(self):
        cfg, q, seq = self.cfg, self.q, self.seq
        RING, safe, h, x4b = cfg["RING"], cfg["safe"], q & 1, cfg["x4b"]
        grp, bar_of = self.grp, self.bar_of; NB = len(grp)
        self.splits = self.choose_splits()
        inst, xi, wi, occ, backlog, issue = self.plan(self.splits)
        out = []; self.ninst = 0
        def emit(s): out.append("    " + s); self.ninst += 1
        pool = list(range(self.NP)); reg = {}
        take = lambda: self.PB + 4*pool.pop(0)
        lds = []; lastidx = {}
        st = dict(covered=0, nbar=0, k=0)
        self.free_bar = {}; self.x1_bar = None; self.x4_bar = None; self.bar_k = []
        pend_free = []; release = {}; lastuse = {}
        for key, uses in inst.items(): release.setdefault(uses[-1], []).append(key)
        for k, (c, sg, ph) in enumerate(seq): lastuse[c] = k
        sends = sorted([max(lastuse[2*d], lastuse[2*d+1]), d] for d in range(4) if d != q)
        tb, t3, chk = self.tb, self.t3, self.chk
        Q = []; mf_inst = {}
        def barrier():
            for sg in list(pend_free):
                if lastidx[("w", sg, 1)] < st["covered"]:
                    self.free_bar[sg] = st["nbar"]; pend_free.remove(sg)
            emit("s_barrier"); st["nbar"] += 1; self.bar_k.append(st["k"])
        def lds_read(text): emit(text); lds.append(st["k"]-1); return len(lds)-1
        def do_read(key, hf):
            if hf == 0: reg[key] = take()
            r = reg[key]
            if key[0] == "x":
                _, ds, u, _ = key
                while st["nbar"] <= (x4b if u >= 8 else 0): barrier()
                if ds >= 2 and self.x1_bar is None: self.x1_bar = st["nbar"] - 1
                if u >= 8 and self.x4_bar is None: self.x4_bar = st["nbar"] - 1
                off = (ds >> 1)*XL + (u >> 3)*2*XCH + (u & 7)*128 + (ds & 1)*64
                lastidx[key] = lds_read(f"ds_read_b128 v[{r}:{r+3}], v{self.vXA} offset:{off}")
            else:
                sg = key[1]
                if key[2] == 1:
                    while st["nbar"] <= bar_of[sg]: barrier()
                    if hf: pend_free.append(sg)
                i = lds_read(f"ds_read_b64_tr_b16 v[{r+2*hf}:{r+2*hf+1}], v{self.vWA} offset:{(sg % RING)*1024 + 512*hf}")
                if hf: lastidx[key] = i
        def wait_for(idx):
            if idx < st["covered"]: return False
            j = idx
            while j+1 < len(lds) and lds[j+1] <= st["k"] - 1 - safe: j += 1
            n = len(lds) - 1 - j
            assert n <= 15, n
            emit(f"s_waitcnt lgkmcnt({n})"); st["covered"] = j+1
            return True
        kind = lambda t: "S" if t.startswith("buffer_store") else "v" if t.startswith("v_") else "s"
        def ready():
            if not Q: return False
            after = Q[0][1]
            if after is None: return True
            if after[0] == "k": return st["k"] >= after[1]
            return after[1] in mf_inst and self.ninst - mf_inst[after[1]] >= 8
        def missing():
            if Q and Q[0][1] and Q[0][1][0] == "m" and Q[0][1][1] in mf_inst: return 8 - (self.ninst - mf_inst[Q[0][1][1]])
            return 0
        def nop(n): emit(f"s_nop {n-1}"); self.ninst += n-1
        def fill(slots):
            n = min(missing(), slots)
            if n > 0: nop(n); slots -= n
            while slots and ready() and kind(Q[0][0]) != "S":
                emit(Q.pop(0)[0]); slots -= 1
                if Q and Q[0][0] == "|": Q.pop(0); break
        def enq(items, after=None):
            for i, t in enumerate(items): Q.append((t, after if i == 0 else None))
        L = self.vLANE
        enq(lines(common_ids(cfg["diag"])) + ["s_lshl_b32 s12, s10, 10", f"v_lshl_add_u32 v{self.vSEND}, v{L}, 4, s12", f"s_mul_i32 s12, s9, {GS}"] +
            [f"s_add_u32 s{40+d}, s12, {slot(d, q)}" for d in range(4) if d != q] +
            [f"s_add_u32 s44, s12, {slot(q, q ^ 2)}", "s_mov_b32 s13, 0", "s_mov_b32 s38, 0xffff0000",
             f"s_mov_b32 s36, {f2u(-LOG2E if h else 2*LOG2E):#x}", "s_mov_b32 s37, s36",
             "s_add_u32 s24, s24, s8", "s_addc_u32 s25, s25, 0"], ("k", 14))
        started = set()
        for k in range(480):
            g = k-1; st["k"] = k
            c, sg, ph = seq[k]
            while sends and sends[0][0] < k:
                e, d = sends.pop(0); a0 = self.acc(2*d); a1 = a0 + 4
                enq([f"v_cvt_pk_bf16_f32 v{a0+j}, v{a0+2*j}, v{a0+2*j+1}" for j in range(4)] +
                    [f"v_min_u32 v{a0+j}, -2, v{a0+j}" for j in range(4)] +
                    [f"buffer_store_dwordx4 v[{a0}:{a0+3}], v{self.vSEND}, s[28:31], s{40+d} offen sc1"], ("m", e))
                if len(sends) == 1: spare = a1
                if not sends:
                    HW, HR, OUT = a1+1, a1+2, a1+3
                    enq(lines(final_addr(cfg, L, spare, a1, HW, HR, OUT, "s10", 1, h)))
            if k == chk:
                T = [take(), take()]
                chkP = ["s_waitcnt vmcnt(0)", f"v_max3_u32 v{T[0]}, v{P}, v{P+1}, v{P+2}", f"v_max_u32 v{T[0]}, v{T[0]}, v{P+3}",
                        f"v_cmp_eq_u32 vcc, -1, v{T[0]}"]
                enq(chkP + ["|", f"s_cbranch_vccnz L_again{q}\nL_fin{q}:"])
                for j in range(4): enq([f"v_lshlrev_b32 v{T[j >> 1] + 2*(j & 1)}, 16, v{P+j}", f"v_and_b32 v{T[j >> 1] + 2*(j & 1) + 1}, s38, v{P+j}"])
            item = occ.get(g)
            if item and item[0][0] in "xw": backlog.append(item); item = None
            if k == 0:
                for _ in range(cfg["burst0"]):
                    cand = [e for e in backlog if not (e[0][0] == "x" and e[0][2] >= 8) and not (e[0][0] == "w" and e[0][1] > 0)]
                    if cand: backlog.remove(cand[0]); do_read(*cand[0])
            late = xi[k] not in lastidx or wi[k] not in lastidx
            waited = False
            if not late: waited = wait_for(max(lastidx[xi[k]], lastidx[wi[k]]))
            if not waited and ready() and kind(Q[0][0]) == "s" and not item:
                emit(Q.pop(0)[0]); waited = True
            if not waited and missing() > 0 and not item: nop(1); waited = True
            cand = [e for e in backlog if not (e[0][0] == "x" and e[0][2] >= 8 and st["nbar"] <= x4b)
                    and not (k < cfg["w1at"] and e[0][0] == "w" and e[0][1] > 0)] if k else []
            if k == tb or (item and item[0][0] == "b" and item[0][1] == st["nbar"]):
                if k == tb: assert st["nbar"] == NB
                barrier()
                if not waited: fill(1)
            elif k == t3:
                assert not sends and not Q
                P = take()
                ldP = f"buffer_load_dwordx4 v[{P}:{P+3}], v{self.vSEND}, s[28:31], s44 offen sc1"
                emit(ldP)
            else:
                slots = 2
                if ready() and kind(Q[0][0]) == "S": emit(Q.pop(0)[0]); slots = 4
                if cand:
                    backlog.remove(cand[0]); do_read(*cand[0]); slots -= 1
                    if len(cand) > 2: backlog.remove(cand[1]); do_read(*cand[1]); slots -= 1
                fill(slots)
            if late:
                while xi[k] not in lastidx or wi[k] not in lastidx: do_read(*backlog.pop(0))
                wait_for(max(lastidx[xi[k]], lastidx[wi[k]]))
            a = self.acc(c); wr = reg[wi[k]]; xr = reg[xi[k]]
            cs = f"v[{a}:{a+3}]" if c in started else "0"
            started.add(c)
            emit(f"v_mfma_f32_16x16x32_bf16 v[{a}:{a+3}], v[{wr}:{wr+3}], v[{xr}:{xr+3}], {cs}")
            mf_inst[k] = self.ninst
            if cfg["diag"] in (1, 2) and k in cfg["kst"]: out.append(f"    s_memtime s[{76+2*cfg['kst'].index(k)}:{77+2*cfg['kst'].index(k)}]")
            for key in release.get(k, []): pool.append((reg[key] - self.PB)//4)
        assert st["nbar"] == NB + 1 and not backlog
        self.nlds = len(lds); self.left = len(Q)
        st["k"] = 490
        if cfg["diag"]: out.append("    s_memtime s[70:71]")
        def act(cc):
            t = T[cc]; a = self.acc(2*q+cc); pr = lambda r: f"v[{r}:{r+1}]"
            return ([f"v_pk_add_f32 {pr(t+j)}, {pr(t+j)}, {pr(a+j)}" for j in (0, 2)] + [f"v_pk_mul_f32 {pr(t+j)}, {pr(t+j)}, s[36:37]" for j in (0, 2)],
                    [f"v_exp_f32 v{t+j}, v{t+j}" for j in range(4)],
                    [f"v_pk_add_f32 {pr(t+j)}, {pr(t+j)}, 1.0 op_sel_hi:[1,0]" for j in (0, 2)],
                    [f"v_rcp_f32 v{t+j}, v{t+j}" for j in range(4)])
        wr = lambda cc: f"ds_write_b128 v{HW}, v[{T[cc]}:{T[cc]+3}] offset:{cc*HCS}"
        A0, A1 = act(0), act(1)
        enq(A0[0], ("m", lastuse[2*q])); enq(A0[1]); enq(A1[0], ("m", lastuse[2*q+1]))
        enq(A0[2] + A0[3] + A1[1] + [wr(0)] + A1[2] + A1[3] + ["s_nop 0", wr(1)] + lines(final_stage(HR, OUT, take(), take())))
        while Q:
            if missing() > 0: nop(missing())
            t = Q.pop(0)[0]
            if t != "|": emit(t)
        self.again = f"""L_again{q}:
    s_add_u32 s13, s13, 1
    s_cmp_ge_u32 s13, {cfg["spin"]}
    s_cbranch_scc1 L_fin{q}
""" + "".join(f"    {x}\n" for x in [ldP] + chkP) + f"""    s_cbranch_vccnz L_again{q}
    s_branch L_fin{q}
"""
        return "\n".join(out) + "\n"

DIAG_ST = """    s_lshl_b32 s12, s2, 3
    s_add_u32 s12, s12, s3
    s_lshl_b32 s12, s12, 8
    s_add_u32 s12, s12, 0x800000
    v_lshlrev_b32 v25, 2, v0
    buffer_store_dword v24, v25, s[28:31], s12 offen
    s_endpgm
"""
HEAD = """; tanh(f)*sigmoid(g) of a 15-tap, dilation-2 causal convolution, as an implicit GEMM (M=2000, N=512, K=3840).
;
; 256 workgroups = 64 groups of 4. A group owns 128 rows x 64 output channels; its members split {f,g} x {half of d},
; so that every weight line a CU fetches is used whole. Waves 0-3 stream x and w into LDS (LDS-DMA), waves 4-7 run the
;   1. the group's first wave zeroes a counter in d_ws and then says so in d_debug;
"""

def gen(**kw):
    cfg = dict(DEF); cfg.update(kw)
    RING = cfg["RING"]; diag = cfg["diag"]; assert RING % 4 == 0
    if diag and not cfg["kst"]: cfg["kst"] = [0, 24, 60, 100, 180, 340, 470]
    comps = [Compute(q, cfg) for q in range(4)]
    bodies = [c.build() for c in comps]
    free_bar = {sg: max(c.free_bar[sg] for c in comps) for sg in range(60 - RING)}
    x1_bar = min(c.x1_bar for c in comps); x4_bar = min(c.x4_bar for c in comps)
    XBASE = xbase(cfg); WS = wstr(cfg); lds = hbase(cfg) + 2*HREG
    info = [f"cfg={cfg}", f"re-reads {[len(c.splits) for c in comps]} lds reads {[c.nlds for c in comps]} left {[c.left for c in comps]} x1_bar={x1_bar} x4_bar={x4_bar}"]
    s = "    s_cmpk_ge_u32 s2, 256\n    s_cbranch_scc1 L_end\n"
    if diag: s += "    s_memrealtime s[94:95]\n    s_memtime s[96:97]\n"
    s += f"""    v_readfirstlane_b32 s3, v0
    s_bitcmp1_b32 s3, 8
    s_cbranch_scc1 L_compute
    s_load_dwordx4 s[16:19], s[0:1], 0      ; x, w
    s_lshr_b32 s7, s2, 5
    s_bfe_u32 s11, s2, 0x10001
    s_lshr_b32 s61, s3, 7
    s_lshl3_add_u32 s12, s7, s61
    s_lshr_b32 s3, s3, 6                    ; wave
    s_and_b32 s13, s3, 1
    s_lshl4_add_u32 s12, s12, s13
    s_sub_u32 s12, s12, 28
    s_lshl1_add_u32 s12, s12, s11
    s_lshl_b32 s12, s12, 8
    v_and_b32 v2, 56, v0
    v_lshlrev_b32 v2, 7, v2
    v_and_b32 v3, 7, v0
    v_lshlrev_b32 v3, 4, v3
    v_add3_u32 v8, v2, v3, s12
    s_mov_b32 s26, 512000
    s_mov_b32 s27, 0x20000
    s_bitcmp1_b32 s2, 4                     ; batch
    s_cselect_b32 s8, s26, 0
    s_mul_i32 s36, s3, {XCH}
    s_add_u32 s36, s36, {XBASE}
    s_mov_b32 m0, s36
    s_movk_i32 s39, 0x4000
    s_waitcnt lgkmcnt(0)
    s_mov_b64 s[20:21], s[18:19]
    s_mov_b64 s[18:19], s[26:27]
    s_add_u32 s16, s16, s8
    s_addc_u32 s17, s17, 0
"""
    if diag: s += "    s_memtime s[98:99]\n"
    COMP = f"""    s_branch L_loader
; ---------------- compute waves: pull the code into L2, fragment addresses, instruction cache warm-up
L_compute:
    s_getpc_b64 s[46:47]
L_pc:
    v_and_b32 v0, 63, v0                    ; lane
    s_and_b32 s4, s2, 3                     ; role: bit0 f/g, bit1 half of d
    s_lshr_b32 s3, s3, 6                    ; wave
    s_and_b32 s10, s3, 3
    s_lshr_b32 s12, s2, 3
    s_lshl2_add_u32 s12, s12, s10
""" + ("""    s_lshl_b32 s12, s12, 7                  ; one 128-byte line per wave: 64 of this role's code, 32 of this page
    s_and_b32 s5, s12, 0xf80
    s_lshl_b32 s13, s4, 13
    s_add_u32 s13, s13, s12
    s_add_u32 s13, s13, L_role0-L_pc
    s_bitcmp1_b32 s12, 13
    s_cselect_b32 s12, s5, s13
    s_add_u32 s46, s46, s12
    s_addc_u32 s47, s47, 0
    v_mov_b32 v14, s46
    v_mov_b32 v15, s47
    global_load_dword v16, v[14:15], off
""" if cfg["cpv"] == 0 else """    s_lshl_b32 s12, s12, 7                  ; two 128-byte lines per wave: one of this role's code, one of this page
    s_and_b32 s5, s12, 0xf80
    s_bitset0_b32 s12, 13
    s_lshl_b32 s13, s4, 13
    s_add_u32 s13, s13, s12
    s_add_u32 s13, s13, L_role0-L_pc
    v_mov_b32 v14, s13
    v_writelane_b32 v14, s5, 1
    v_add_co_u32 v14, vcc, s46, v14
    v_mov_b32 v15, s47
    s_mov_b64 exec, 3
    v_addc_co_u32 v15, vcc, 0, v15, vcc
    global_load_dword v16, v[14:15], off
    s_mov_b64 exec, -1
""") + f"""    v_and_b32 v8, 15, v0                    ; row / column in the fragment
    v_lshrrev_b32 v9, 4, v0                 ; k chunk
    v_mul_u32_u24 v2, {XCH}, v8
    v_lshl_add_u32 v2, v9, 4, v2
    v_add_u32 v2, {XBASE}, v2               ; x fragment address
    v_lshrrev_b32 v11, 3, v8
    v_and_b32 v12, 1, v9
    v_lshl_or_b32 v11, v12, 1, v11          ; swizzle
    v_xor_b32 v11, s10, v11
    v_and_or_b32 v11, v8, 12, v11
    v_and_b32 v12, 3, v8
    v_lshl_add_u32 v11, v11, 2, v12
    v_mul_u32_u24 v1, {WS}, v9
    v_lshl_add_u32 v1, v11, 3, v1           ; w fragment address
    s_mov_b64 exec, 0
    s_cmp_eq_u32 s10, 0
    s_cbranch_scc1 L_padL0
L_disp:
    s_cmp_eq_u32 s4, 1
    s_cbranch_scc1 L_role1
    s_cmp_eq_u32 s4, 2
    s_cbranch_scc1 L_role2
    s_cmp_eq_u32 s4, 3
    s_cbranch_scc1 L_role3
    s_branch L_role0
L_loader:
"""
    WPREP = f"""    v_and_b32 v0, 63, v0                    ; lane
    s_and_b32 s4, s2, 3
    s_bfe_u32 s6, s2, 0x20002
    s_lshl_b32 s13, s13, 6
    v_and_b32 v4, 16, v0
    v_lshlrev_b32 v4, 1, v4
    v_or_b32 v4, s13, v4
    v_xor_b32 v3, v3, v4
    s_and_b32 s14, s4, 1
    s_lshl2_add_u32 s14, s14, s6
    s_lshl_b32 s15, s11, 10
    s_add_u32 s15, s15, s14
    s_lshl_b32 s15, s15, 7
    s_lshl_b32 s12, s3, 13
    s_add_u32 s12, s12, s15
    v_add3_u32 v7, v2, v3, s12              ; w offset
    s_mul_i32 s37, s3, {WS}
    s_mov_b32 s22, 3932160
    s_mov_b32 s23, s27
"""
    PPREP = f"""    s_lshr_b32 s60, s2, 3
    s_lshl_b32 s60, s60, 10
    s_add_u32 s60, s60, s15
    s_lshl_b32 s13, s13, 2
    s_xor_b32 s60, s60, s13
    v_bfrev_b32 v19, 1
"""
    W1PREP = f"""    s_movk_i32 s51, 0x1000
    s_mov_b32 s52, {262144 - 1024}
    s_add_u32 s49, s52, s51
"""
    order = []; nw = [0]
    def add(tok):
        if tok == "w":
            order.append(("w", nw[0])); nw[0] += 1
            for t in cfg["ins"].get(nw[0]-1, []): add(t)
        elif tok[0] in "xy": order.append(("x", int(tok[0] == "y"), int(tok[1])))
        elif tok == "C": order.extend([("c", 0), ("c", 1), ("c", 2), ("r",)])
        elif tok[0] == "c": order.extend([("c", int(tok[1]))] + [("r",)]*(tok[1] == "2"))
        elif tok == "T": order.append(("t",))
        elif tok[0] == "P": order.append(("p",) + tuple(int(v) for v in tok.split(":")[1:]))
        else: raise ValueError(tok)
    for t in cfg["pre"]: add(t)
    K0 = len(order)
    while nw[0] < 60: add("w")
    areg = {op: 56 + i for i, op in enumerate(o for o in order if o[0] == "p")}
    def addr_asm(op):
        _, a, b = op
        return f"""    s_add_u32 s12, s61, {a}
    v_lshl_add_u32 v20, v0, 1, s12          ; stage
    v_mul_u32_u24 v21, 4370, v20
    v_lshrrev_b32 v21, 16, v21              ; d step
    v_mul_u32_u24 v21, {15*262144-32768}, v21
    v_cmp_gt_u32 vcc, {b}, v20
    v_lshl_add_u32 v20, v20, 18, s60
    v_sub_u32 v21, v20, v21
    v_cndmask_b32 v{areg[op]}, v19, v21, vcc
"""
    assert order[:5] == [("x", 0, 0), ("x", 0, 1), ("x", 0, 2), ("x", 0, 3), ("w", 0)]
    RL = "    buffer_load_dword v16, off, s[32:35], s58 sc1\n"
    FL = "    buffer_load_dword v16, off, s[28:31], s47 sc1\n"
    ms = dict(m0=("x", 0), so=None)
    def setm0(kind, off):
        prev = ms["m0"]; ms["m0"] = (kind, off)
        if prev == (kind, off): return ""
        if prev[0] == kind and abs(off - prev[1]) < 32768: return f"    s_addk_i32 m0, {off - prev[1]}\n"
        return f"    s_add_u32 m0, {'s36' if kind == 'x' else 's37'}, {off}\n"
    def op_asm(op):
        if op[0] == "x":
            _, L, m = op
            t = setm0("x", L*(XL-128) + 4*m*XCH)
            return t + (f"    v_add_u32 v{8+m}, s39, v{7+m}\n" if m and not L else "    s_nop 0\n" if t else "") + f"    buffer_load_dwordx4 v{8+m}, s[16:19], 0 offen offset:{128*L} lds\n"
        if op[0] == "w":
            sl = op[1] % RING; io = (sl & 3)*1024; so = woff(op[1]) - io; d = None if ms["so"] is None else so - ms["so"]; ms["so"] = so
            t = {262144-1024: "s_add_u32 s38, s38, s52", 262144+3072: "s_add_u32 s38, s38, s49"}.get(d, f"s_mov_b32 s38, {so}")
            return setm0("w", (sl & ~3)*1024) + f"    {t}\n    buffer_load_dwordx4 v7, s[20:23], s38 offen offset:{io} lds\n"
        if op[0] == "p": return f"    buffer_load_dword v23, v{areg[op]}, s[20:23], 0 offen\n"
        if op[0] == "c": return f"    buffer_store_dwordx4 v[24:27], v13, s[28:31], s{44+op[1]} offen sc1\n"
        if op[0] == "r": return RL
        return "    buffer_load_dword v23, off, s[24:27], 0\n"
    SL = [f"    s_buffer_load_dwordx2 s[54:55], s[16:19], s53 offset:{512*i + 188}\n" for i in range(4)]
    prev = (0, 0); bit = {0: "s56", 1: "s57", 2: "s51", 3: "s59", 4: "s39"}
    for j, sg in enumerate(range(cfg["sfrom"], 60, 2)):
        cur = (woff(sg), woff(min(sg+1, 59))); dA, dB = cur[0]-prev[0], cur[1]-prev[1]; prev = cur
        t = f"    s_add_u32 s60, s60, {'s63' if dA == 524288 else hex(dA & 0xffffffff)}\n"
        if dA != dB: t += f"    s_mul_i32 s12, s61, {hex((dB-dA) & 0xffffffff)}\n    s_add_u32 s60, s60, s12\n"
        if j: t += f"    s_xor_b32 s60, s60, {bit[(j & -j).bit_length()-1]}\n"
        SL.append(t + "    s_buffer_load_dwordx2 s[54:55], s[20:23], s60 offset:60\n")
    KA2 = """    s_load_dwordx2 s[28:29], s[0:1], 32     ; ws
    s_load_dwordx2 s[24:25], s[0:1], 16     ; out
"""
    later = f"""; while the first loads are under way: touch the hand-off and output pages once (address translation), later addresses
    s_lshr_b32 s9, s2, 2                    ; group
    s_mov_b32 s30, {(10<<20) if diag else 64*GS}
    s_mov_b32 s31, s27
    s_mul_i32 s48, s9, {GS}
    s_waitcnt lgkmcnt(0)
    s_add_u32 s47, s48, {12*SS}              ; the group's counter
    s_or_b32 s5, s3, s4
    s_cbranch_scc1 L_np0
    s_atomic_swap s5, s[28:29], s47 glc     ; the group's first wave zeroes it ...
L_np0:
    s_load_dword s54, s[28:29], s47 offset:128
    s_load_dwordx2 s[54:55], s[24:25], 60
    s_movk_i32 s34, 256
    s_mov_b32 s35, s27
    s_lshl_b32 s58, s9, 2
""" + "".join(f"""    s_xor_b32 s{43+p}, s4, {p}
    s_mulk_i32 s{43+p}, {3*SS}
    s_add_u32 s{43+p}, s{43+p}, s48
""" + (f"    s_addk_i32 s{43+p}, {(p-1)*SS}\n" if p > 1 else "") for p in (1, 2, 3)) + f"""    s_lshl_b32 s12, s3, 10
    v_lshl_add_u32 v13, v0, 4, s12          ; lane*16 + wave*1024
    v_mov_b32 v24, -1
    v_mov_b32 v25, -1
    v_mov_b32 v26, -1
    v_mov_b32 v27, -1
    s_lshl3_add_u32 s53, s7, s14
    s_lshl2_add_u32 s53, s53, s3
    s_lshl3_add_u32 s53, s53, s11
    s_lshl_b32 s53, s53, 8
    s_mov_b32 s63, 0x80000
    s_movk_i32 s56, 0x400
    s_movk_i32 s57, 0x800
    s_movk_i32 s59, 0x2000
""" + "".join(addr_asm(op) for op in order[K0:] if op in areg) + """    s_lshl_b32 s12, s61, 14
    s_xor_b32 s60, s60, s12
    s_mov_b32 s62, 1
    s_mov_b32 s13, 0
"""
    PUB = """    s_or_b32 s12, s3, s4
    s_cbranch_scc1 L_np1
    s_waitcnt lgkmcnt(0)
    s_atomic_add s62, s[32:33], s58         ; ... and says so in d_debug
L_np1:
"""
    issued = []; oi = 0
    grp = groups(cfg); NB = len(grp)
    tbar = [16*min(c.bar_k[n] for c in comps) for n in range(NB)]
    can = lambda op, nb: not (op[0] == "w" and op[1] >= RING and nb <= free_bar[op[1]-RING])
    cost = lambda op: cfg["opc"] if op[0] in "wx" else 3*(op[2]-op[1]) if op[0] == "p" else cfg["cc"] if op[0] == "c" else 30
    cov = None; flagn = None; tpipe = 0; tta = 0; shift = 0; done_t = {}; sched = []
    for n in range(NB):
        needs = [("w", grp[n][-1])] + [("x", 0, m) for m in range(4)]
        if n >= x4_bar: needs.append(("x", 0, 4))
        if n >= x1_bar: needs += [("x", 1, m) for m in range(5)]
        cnt = 0; now = tbar[n-1] + shift if n else 0
        while oi < len(order) and can(order[oi], n):
            op = order[oi]
            forced = any(x not in issued for x in needs) or op[0] == 'r'
            ta = max(tta, now + 20) + cost(op)
            if n in cfg["quota"] and not forced:
                if cnt >= cfg["quota"][n]: break
            elif n > 0 and not forced:
                nxt = max([tbar[n] + shift] + [done_t[x] for x in needs])
                inev = any(o[0] in "pc" and d > now for o, d in done_t.items())
                if (ta > nxt + cfg["slack"] and cnt) or cnt >= cfg["maxn"] or sum(d > ta for d in done_t.values()) >= (cfg["cap2"] if inev else cfg["cap"]): break
            if n == 0 and not forced and cnt >= K0: break
            if oi == 4: szA = tsize(s); s += COMP + WPREP
            if oi == 5: s += PPREP
            if op == ("w", 1): s += W1PREP
            if op in areg and oi < K0: s += addr_asm(op)
            s += op_asm(op); issued.append(op); oi += 1; cnt += op[0] != 'r'
            if oi == 6: s += KA2 + "    s_load_dwordx2 s[32:33], s[0:1], 24     ; debug\n"
            if n == 0:
                if not forced: tpipe += cost(op) + (cfg["ev0"] if op[0] == "p" else 0)
            else:
                tta = ta
                tpipe = max(tpipe + cost(op), ta + {"p": cfg["ev"], "c": cfg["evc"]}.get(op[0], cfg["lat"]))
            done_t[op] = tpipe
        if n == 0:
            if diag: s += "    s_memtime s[88:89]\n"
            s += later
        if n == cfg["pubn"]: s += PUB
        for _ in range(cfg["ssch"].get(n, 0) if cfg["ssch"] else cfg["s1"] if n == 1 else int(n >= cfg["s2"])):
            if SL: s += SL.pop(0)
        if cov is not None and flagn is None and n >= cov + cfg["fdel"]:
            flagn = n
            s += """    s_cmp_lg_u32 s3, 0
    s_cbranch_scc1 L_noflag
    v_cmp_eq_u32 vcc, 0, v16
    s_cbranch_vccnz L_rdy
L_rdyok:
    s_atomic_add s62, s[28:29], s47
L_noflag:
"""
        need = max(issued.index(x) for x in needs)
        if cov is None and ("r",) in issued and need > issued.index(("r",)): cov = n
        shift = max(shift, done_t[issued[need]] - tbar[n])
        vm = len(issued) - 1 - need
        sched.append((cnt, vm, shift))
        assert vm <= 63
        s += f"    s_waitcnt vmcnt({vm})\n    s_barrier\n"
        if n == 0: sz0 = tsize(s)
    assert oi == len(order) and not SL and flagn
    info[-1] += f" cov={cov} flag={flagn}"
    info.append(f"loader (issued, vmcnt, modelled stall) per barrier: {sched}")
    polls = """    buffer_load_dwordx4 v[24:27], v13, s[28:31], s48 offen sc1
    buffer_load_dwordx4 v[28:31], v13, s[28:31], s50 offen sc1
"""
    s += FL + f"""    s_mul_i32 s12, s4, {3*SS}
    s_add_u32 s48, s48, s12                 ; slots written by the two partners of the other half
    s_add_u32 s50, s48, s59
    s_bitcmp1_b32 s4, 0                     ; own half is g -> other is f
    s_mov_b32 s40, {f2u(-LOG2E):#x}
    s_cselect_b32 s40, {f2u(2*LOG2E):#x}, s40
    s_mov_b32 s41, s40
    s_mov_b32 s43, 0xffff0000
    s_add_u32 s24, s24, s8
    s_addc_u32 s25, s25, 0
""" + final_addr(cfg, 0, 20, 21, 14, 19, 22, "s3", 0, None) + """    s_waitcnt vmcnt(0)
    v_cmp_gt_u32 vcc, 4, v16                ; all four members have marked their slots?
    s_cbranch_vccnz L_flag
L_flagok:
""" + ("    s_mov_b32 s92, s13\n" if diag else "") + "    s_mov_b32 s13, 0\n    s_barrier\n"
    if diag: s += "    s_memtime s[80:81]\n"
    s += polls + (f"    s_setprio {cfg['lprio']}\n" if cfg["lprio"] else "") + """L_poll:
    s_waitcnt vmcnt(0)
    v_max3_u32 v36, v24, v25, v26
    v_max3_u32 v37, v27, v28, v29
    v_max3_u32 v36, v36, v30, v31
    v_max_u32 v36, v36, v37
    v_cmp_eq_u32 vcc, -1, v36
    s_cbranch_vccnz L_repoll
L_got:
"""
    if diag: s += "    s_memtime s[82:83]\n    s_add_u32 s93, s13, 1\n"
    pr = lambda r: f"v[{r}:{r+1}]"
    for cc in (0, 1):
        R = range(4*cc, 4*cc+4); pk = cc and cfg["ypk"]
        for j in (2*cc, 2*cc+1):
            s += f"    v_lshlrev_b32 v{40+2*j}, 16, v{24+j}\n    v_and_b32 v{41+2*j}, s43, v{24+j}\n"
            s += f"    v_lshlrev_b32 v{48+2*j}, 16, v{28+j}\n    v_and_b32 v{49+2*j}, s43, v{28+j}\n"
        if pk:
            for j in (4, 6): s += f"    v_pk_add_f32 {pr(40+j)}, {pr(40+j)}, {pr(48+j)}\n"
            for j in (4, 6): s += f"    v_pk_mul_f32 {pr(40+j)}, {pr(40+j)}, s[40:41]\n"
        else:
            for j in R: s += f"    v_add_f32 v{40+j}, v{40+j}, v{48+j}\n"
            for j in R: s += f"    v_mul_f32 v{40+j}, s40, v{40+j}\n"
        for j in R: s += f"    v_exp_f32 v{40+j}, v{40+j}\n"
        if pk:
            for j in (4, 6): s += f"    v_pk_add_f32 {pr(40+j)}, {pr(40+j)}, 1.0 op_sel_hi:[1,0]\n"
        else:
            for j in R: s += f"    v_add_f32 v{40+j}, 1.0, v{40+j}\n"
        for j in R: s += f"    v_rcp_f32 v{40+j}, v{40+j}\n"
        s += f"    s_nop 0\n    ds_write_b128 v14, v[{40+4*cc}:{43+4*cc}] offset:{HCS*cc}\n"
    fs = final_stage(19, 22, 24, 28)
    if diag:
        fs = fs.replace("    s_barrier\n", "    s_memtime s[86:87]\n    s_barrier\n    s_memtime s[84:85]\n")
        fs += "    s_waitcnt vmcnt(0)\n    s_memrealtime s[90:91]\n    s_branch L_diagL\n"
    s += fs + f"""L_end:
    s_endpgm
L_repoll:
    s_add_u32 s13, s13, 1
    s_cmp_ge_u32 s13, {cfg["spin"]}
    s_cbranch_scc1 L_got
""" + polls + f"""    s_branch L_poll
L_flag:
    s_add_u32 s13, s13, 1
    s_cmp_ge_u32 s13, {cfg["spin"]}
    s_cbranch_scc1 L_flagok
{FL}    s_waitcnt vmcnt(0)
    v_cmp_gt_u32 vcc, 4, v16
    s_cbranch_vccnz L_flag
    s_branch L_flagok
L_rdy:
    s_add_u32 s13, s13, 1
    s_cmp_ge_u32 s13, {cfg["spin"]}
    s_cbranch_scc1 L_rdyok
{RL}    s_waitcnt vmcnt(0)
    v_cmp_eq_u32 vcc, 0, v16
    s_cbranch_vccnz L_rdy
    s_branch L_rdyok
"""
    npl = (tsize(s[:s.index("L_flag:")]) + 8 - 1)//1088
    page0, end0 = add_pads(s, [f"L_padL{k}" for k in range(npl)], [f"L_padL{k+1}" for k in range(npl-1)] + ["L_disp"], lambda L, i: True,
                           [1088*(k+1) for k in range(npl)])
    assert end0 <= 3328 + (80 if diag else 0), end0
    sizes = [szA, sz0, end0]; roles = ""
    for q in range(4):
        s = KA2 + f"""    s_cmp_eq_u32 s10, 1
    s_cbranch_scc1 L_pad{q}_0
    s_cmp_eq_u32 s10, 2
    s_cbranch_scc1 L_pad{q}_1
    s_cmp_eq_u32 s10, 3
    s_cbranch_scc1 L_pad{q}_2
    s_branch NPD0
L_main{q}:
    s_mov_b64 exec, -1
    s_setprio {cfg["prio"]}
""" + ("    s_memtime s[72:73]\n    s_waitcnt lgkmcnt(0)\n    s_memtime s[74:75]\n" if diag else "") + "    s_waitcnt vmcnt(0) lgkmcnt(0)\n" + bodies[q]
        if diag: s += "    s_memtime s[64:65]\n    s_waitcnt vmcnt(0)\n    s_memtime s[66:67]\n    s_memrealtime s[68:69]\n    s_branch L_diagC\n"
        s += "    s_endpgm\n"
        npd = 7 if tsize(s) + 24 > 4096 + 3*1088 + (120 if diag else 0) else 6
        s = s.replace("    s_branch NPD0\n", f"    s_branch L_pad{q}_6\n" if npd == 7 else "") + comps[q].again
        s, end = add_pads(s, [f"L_pad{q}_{k}" for k in range(npd)], [f"L_pad{q}_{k+3}" if k < 3 else f"L_main{q}" for k in range(npd)],
                          lambda L, i: L[i].strip().startswith("v_mfma") and L[i-1].strip().startswith("v_mfma"),
                          [1024, 2048, 3072, 4096] + ([5120, 6144, 7168] if npd == 7 else [5184, 6272]))
        sizes.append(npd)
        assert end <= 8192, end
        sizes.append(end)
        roles += f".p2align 12\n; ---------------- compute waves, role {q} ----------------\nL_role{q}:\n" + s
    if diag:
        roles += ".p2align 12\nL_diagC:\n    s_waitcnt lgkmcnt(0)\n    v_mov_b32 v24, 0\n"
        for i, r in enumerate(["s94", "s64", "s66", "s68", "s70", "s13", "s72", "s74"] + [f"s{76+2*j}" for j in range(7)]):
            if i in (1, 2, 4) or i > 5: roles += f"    s_sub_u32 {r}, {r}, s96\n"
            roles += f"    v_writelane_b32 v24, {r}, {i}\n"
        roles += DIAG_ST + "L_diagL:\n    s_waitcnt lgkmcnt(0)\n    v_mov_b32 v24, 0\n"
        for i, r in enumerate(["s94", "s98"] + [f"s{64+2*i}" for i in range(11)] + ["s92", "s93", "s86", "s88", "s88", "s90", "s0"]):
            if 1 <= i <= 12 or i in (15, 16): roles += f"    s_sub_u32 {r}, {r}, s96\n"
            roles += f"    v_writelane_b32 v24, {r}, {i}\n"
        roles += DIAG_ST
    info.append(f"code bytes: {sizes}")
    s = HEAD + f"""; @launch grid=(256,1,1) block=(512,1,1) lds={lds}
.amdgcn_target "amdgcn-amd-amdhsa--gfx950"
.text
.p2align 12
.globl {NAME}
.p2align 8
.type {NAME},@function
{NAME}:
""" + page0 + roles + f""".p2align 12
.section .rodata,"a"
.p2align 6
.amdhsa_kernel {NAME}
  .amdhsa_next_free_vgpr 256
  .amdhsa_next_free_sgpr 102
  .amdhsa_accum_offset 256
  .amdhsa_group_segment_fixed_size 0
  .amdhsa_kernarg_size 40
  .amdhsa_user_sgpr_count 2
  .amdhsa_user_sgpr_kernarg_segment_ptr 1
  .amdhsa_system_sgpr_workgroup_id_x 1
.end_amdhsa_kernel
"""
    if diag == 3: s = re.sub(r"    s_memtime .*\n", "    s_mov_b32 s100, 0x12345\n", s)
    if diag == 2: s = s.replace("s_memtime", "s_memrealtime")
    gen.info = info
    return s, lds

if __name__ == "__main__":
    kw = {}
    for a in sys.argv[2:]:
        k, v = a.split("=", 1)
        kw[k] = eval(v)
    s, lds = gen(**kw)
    open(sys.argv[1], "w").write(s)
    print("\n".join(gen.info[1:]))
```

```python
import sys, re, struct

NAME = "standalone__autoregressive_conv_wavernn__speech_kernel"
LOG2E = 1.4426950408889634
def f2u(x): return struct.unpack("<I", struct.pack("<f", x))[0]

DEF = dict(RING=24, n_early=16, n_late=16, lead=8, safe=5, wcap=6, x4b=1, w1at=4, burst0=8,
           single=4, grp=2, chain2=2,
           pre=["x0", "x1", "x2", "x3", "w", "P:1:23", "x4", "w", "w", "w", "w"],
           ins={16: ["y0", "y1", "y2", "y3", "y4", "C"], 59: ["T"]},
           sfrom=23, s1=4, s2=4, ssch=None, fdel=4, pubn=1, ypk=1, touch=3,
           opc=70, cap=9, cap2=11, lat=300, ev=900, ev0=200, evc=700, cc=170, slack=80, maxn=4, quota={1: 3, 2: 1, 3: 2, 4: 2},
           t12=56, t3=52, chk_back=1, prio=1, lprio=0, spin=200000, diag=0, kst=None)
XCH = 1056
XL = 20*XCH
HRS = 272
HCS = 16*HRS
HREG = 2*HCS
SS = 4096
GS = 12*SS + 256
BIG = 10**9
def wstr(cfg): return cfg["RING"]*1024
def xbase(cfg): return 4*wstr(cfg)
def hbase(cfg): return xbase(cfg) + 2*XL
def slot(dst, src): return (3*dst + (dst ^ src) - 1)*SS
def woff(sg): return (sg % 15)*262144 + (sg//15)*32768

def groups(cfg):
    g = [[sg] for sg in range(cfg["single"])]
    sg = cfg["single"]
    while sg < 60:
        g.append(list(range(sg, min(60, sg + cfg["grp"])))); sg += cfg["grp"]
    return g

_INL = {"0.5","-0.5","1.0","-1.0","2.0","-2.0","4.0","-4.0"}
_V8 = ("v_mfma","v_add3","v_lshl_add","v_lshl_or","v_max3","v_fma_","v_cvt_pk","v_writelane","v_readlane","v_mul_lo",
       "v_and_or","v_bfe","v_perm_","v_mad","v_add_lshl","v_xad","v_mbcnt","v_or3","v_pk_")
def isize(line):
    t = line.split(";")[0].strip()
    if not t or t.endswith(":") or t.startswith("."): return 0
    mn = t.split()[0]
    if mn.startswith("v_cmp") and not t.split()[1].startswith("vcc"): return 8
    if mn.startswith(("ds_","buffer_","s_load","s_buffer_load","s_memtime","s_memrealtime","s_atomic")) or mn.startswith(_V8): return 8
    if mn.startswith(("s_waitcnt","s_barrier","s_nop","s_branch","s_cbranch","s_setprio","s_endpgm","s_movk","s_addk","s_mulk","s_cmpk")): return 4
    for o in t[len(mn):].split(","):
        o = o.strip()
        if o in _INL or re.match(r"^(s|v)(\d|\[)|^(vcc|exec|m0|scc)", o): continue
        try:
            if -16 <= int(o, 0) <= 64: continue
        except ValueError: pass
        return 8
    return 4
def tsize(text): return sum(isize(l) for l in text.split("\n"))
def add_pads(text, names, targets, prefer, pos):
    lines = text.split("\n"); out = []; off = 0; k = 0
    for i, l in enumerate(lines):
        if k < len(names) and off >= pos[k] and isize(l):
            if prefer(lines, i) or off + isize(l) >= pos[k] + 60:
                out.append(f"{names[k]}:\n    s_cbranch_execz {targets[k]}"); off += 4; k += 1
        out.append(l); off += isize(l)
    assert k == len(names)
    return "\n".join(out), off

def mfma_seq(q, cfg):
    ne, nl = cfg["n_early"], cfg["n_late"]
    own = (2*q, 2*q+1); t = q ^ 2; third = (2*t, 2*t+1)
    act = lambda sg: [c for c in range(8) if not (c in own and sg >= ne) and not (c in third and sg >= 60-nl)]
    seq = []
    for g in groups(cfg):
        for c in range(8): seq += [(c, sg, 1) for sg in g if c in act(sg)]
    for cs, lo, ph in ((third, 60-nl, 2), (own, ne, 3)):
        sg = lo
        while sg < 60:
            hi = min(sg + cfg["chain2"], (sg//15 + 1)*15)
            for c in cs: seq.extend((c, s, ph) for s in range(sg, hi))
            sg = hi
    assert len(seq) == 480 and len(set((c, s) for c, s, _ in seq)) == 480
    return seq

def final_addr(cfg, L, t0, t1, HW, HR, OUT, sw, cset, h):
    HB = hbase(cfg)
    return f"""    v_and_b32 v{t0}, 15, v{L}
    v_lshrrev_b32 v{t1}, 4, v{L}
    v_mad_u32_u24 v{HW}, v{t0}, {HRS//16}, v{t1}
    s_lshl_b32 s12, {sw}, 6
""" + (f"    s_bitcmp0_b32 s4, 0\n    s_cselect_b32 s42, {HREG}, 0\n    s_add_u32 s12, s12, s42\n" if h is None else "") + f"""    s_add_u32 s12, s12, {HB + (h or 0)*HREG}
    v_lshl_add_u32 v{HW}, v{HW}, 4, s12
    v_mad_u32_u24 v{HR}, v{t1}, {HRS//16}, v{t0}
    s_mul_i32 s12, {sw}, {4*HRS}
    s_add_u32 s12, s12, {HB + cset*HCS}
    v_lshl_add_u32 v{HR}, v{HR}, 4, s12
    v_mul_u32_u24 v{t1}, 9, v{t1}
    v_and_b32 v{t1}, 17, v{t1}
    s_lshl2_add_u32 s12, s7, {sw}
    s_lshl3_add_u32 s12, s12, s4
    s_lshl4_add_u32 s12, s12, s6
""" + ("    s_add_u32 s12, s12, 8\n" if cset else "") + f"""    s_lshl_b32 s12, s12, 7
    v_lshl_add_u32 v{OUT}, v{t1}, 6, v{t0}
    v_lshl_add_u32 v{OUT}, v{OUT}, 3, s12
"""
def final_stage(HR, OUT, F, G):
    return f"""    s_waitcnt lgkmcnt(0)
    s_barrier
    ds_read_b128 v[{F}:{F+3}], v{HR}
    ds_read_b128 v[{G}:{G+3}], v{HR} offset:{HREG}
    s_waitcnt lgkmcnt(0)
    v_pk_mul_f32 v[{F}:{F+1}], v[{F}:{F+1}], v[{G}:{G+1}]
    v_pk_mul_f32 v[{F+2}:{F+3}], v[{F+2}:{F+3}], v[{G+2}:{G+3}]
    v_pk_fma_f32 v[{F}:{F+1}], v[{F}:{F+1}], -2.0, v[{G}:{G+1}] op_sel_hi:[1,0,1]
    v_pk_fma_f32 v[{F+2}:{F+3}], v[{F+2}:{F+3}], -2.0, v[{G+2}:{G+3}] op_sel_hi:[1,0,1]
    v_cvt_pk_bf16_f32 v{F}, v{F}, v{F+1}
    v_cvt_pk_bf16_f32 v{F+1}, v{F+2}, v{F+3}
    buffer_store_dwordx2 v[{F}:{F+1}], v{OUT}, s[24:27], 0 offen
"""
def lines(t): return [x.split(";")[0].strip() for x in t.strip().split("\n")]
def common_ids(diag): return f"""    s_lshr_b32 s9, s2, 2                    ; group
    s_and_b32 s6, s9, 3
    s_lshr_b32 s7, s2, 5
    s_mov_b32 s26, 512000
    s_mov_b32 s27, 0x20000
    s_bitcmp1_b32 s2, 4                     ; batch
    s_cselect_b32 s8, s26, 0
    s_mov_b32 s30, {(10<<20) if diag else 64*GS}
    s_mov_b32 s31, s27
"""

class Compute:
    vLANE, vWA, vXA, vSEND = range(4)
    ACC = 4; PB = 36; NP = (256 - 36)//4
    def __init__(self, q, cfg):
        self.q, self.cfg = q, cfg
        self.seq = seq = mfma_seq(q, cfg)
        self.grp = groups(cfg)
        self.bar_of = {sg: n for n, g in enumerate(self.grp) for sg in g}
        self.p2 = min(k for k in range(480) if seq[k][2] >= 2); self.p3 = min(k for k in range(480) if seq[k][2] == 3)
        self.tb = self.p2 + cfg["t12"]; self.t3 = self.p3 + cfg["t3"]; self.chk = 480 - cfg["chk_back"]
        assert self.tb < self.t3 < self.chk
    def acc(self, c): return self.ACC + 4*c

    def plan(self, splits):
        cfg, seq, lead = self.cfg, self.seq, self.cfg["lead"]
        inst = {}; xi = []; wi = []; cur = {}
        for k, (c, sg, ph) in enumerate(seq):
            ds, i = divmod(sg, 15)
            xk = ("x", ds, c+i, ph)
            inst.setdefault(xk, []).append(k); xi.append(xk)
            if (sg, ph) in splits: cur[sg] = ph
            wk = ("w", sg, cur.get(sg, 1))
            inst.setdefault(wk, []).append(k); wi.append(wk)
        occ = {}; head = []
        for k in (self.tb, self.t3): occ[k-1] = (("rsv",), 0)
        un = lambda g: {"x": 2, "w": 1}.get(occ[g][0][0], 0) if g in occ else 0
        def place(key, hf, latest):
            cost = {"x": 2, "w": 1}.get(key[0], 0); g = latest
            while g >= 0 and (g in occ or any(sum(un(j) for j in range(a, a+4)) + cost > cfg["wcap"] for a in range(g-3, g+1))): g -= 1
            if g < 0:
                if key[0] != "b": head.append((key, hf))
                return -1
            occ[g] = (key, hf); return g
        issue = {}; lim = BIG
        for sg in range(59, -1, -1):
            key = ("w", sg, 1)
            g1 = place(key, 1, min(inst[key][0] - lead, lim)); g0 = place(key, 0, g1 - 1)
            issue[key] = g0; lim = g0 - 1
            if self.grp[self.bar_of[sg]][0] == sg: lim = place(("b", self.bar_of[sg]), 0, g0 - 1) - 1
        for key in sorted([k for k in inst if k not in issue], key=lambda k: -inst[k][0]):
            if key[0] == "x": issue[key] = place(key, 0, inst[key][0] - lead)
            else: issue[key] = place(key, 0, place(key, 1, inst[key][0] - lead) - 1)
        head.sort(key=lambda e: (inst[e[0]][0], e[0][0] == "x", e[1]))
        return inst, xi, wi, occ, head, issue

    def choose_splits(self):
        RING = self.cfg["RING"]; splits = set(); phase_of = [s[2] for s in self.seq]
        while True:
            inst, xi, wi, occ, head, issue = self.plan(splits)
            ev = [0]*482
            for key, uses in inst.items():
                ev[issue[key]+1] += 1; ev[uses[-1]+1] -= 1
            live = 0; bad = None
            for g in range(-1, 480):
                live += ev[g+1]
                if live > self.NP: bad = g; break
            if bad is None: return splits
            best = None
            for key, uses in inst.items():
                if key[0] != "w" or key[1] < 60-RING: continue
                prev = [u for u in uses if u <= bad]; nxt = [u for u in uses if u > bad]
                if prev and nxt and phase_of[nxt[0]] != phase_of[prev[-1]] and nxt[0] - bad > self.cfg["lead"] + 6:
                    if best is None or nxt[0] > best[0]: best = (nxt[0], (key[1], phase_of[nxt[0]]))
            assert best, ("register pressure", self.q, bad)
            splits.add(best[1])

    def build(self):
        cfg, q, seq = self.cfg, self.q, self.seq
        RING, safe, h, x4b = cfg["RING"], cfg["safe"], q & 1, cfg["x4b"]
        grp, bar_of = self.grp, self.bar_of; NB = len(grp)
        self.splits = self.choose_splits()
        inst, xi, wi, occ, backlog, issue = self.plan(self.splits)
        out = []; self.ninst = 0
        def emit(s): out.append("    " + s); self.ninst += 1
        pool = list(range(self.NP)); reg = {}
        take = lambda: self.PB + 4*pool.pop(0)
        lds = []; lastidx = {}
        st = dict(covered=0, nbar=0, k=0)
        self.free_bar = {}; self.x1_bar = None; self.x4_bar = None; self.bar_k = []
        pend_free = []; release = {}; lastuse = {}
        for key, uses in inst.items(): release.setdefault(uses[-1], []).append(key)
        for k, (c, sg, ph) in enumerate(seq): lastuse[c] = k
        sends = sorted([max(lastuse[2*d], lastuse[2*d+1]), d] for d in range(4) if d != q)
        tb, t3, chk = self.tb, self.t3, self.chk
        Q = []; mf_inst = {}
        def barrier():
            for sg in list(pend_free):
                if lastidx[("w", sg, 1)] < st["covered"]:
                    self.free_bar[sg] = st["nbar"]; pend_free.remove(sg)
            emit("s_barrier"); st["nbar"] += 1; self.bar_k.append(st["k"])
        def lds_read(text): emit(text); lds.append(st["k"]-1); return len(lds)-1
        def do_read(key, hf):
            if hf == 0: reg[key] = take()
            r = reg[key]
            if key[0] == "x":
                _, ds, u, _ = key
                while st["nbar"] <= (x4b if u >= 8 else 0): barrier()
                if ds >= 2 and self.x1_bar is None: self.x1_bar = st["nbar"] - 1
                if u >= 8 and self.x4_bar is None: self.x4_bar = st["nbar"] - 1
                off = (ds >> 1)*XL + (u >> 3)*2*XCH + (u & 7)*128 + (ds & 1)*64
                lastidx[key] = lds_read(f"ds_read_b128 v[{r}:{r+3}], v{self.vXA} offset:{off}")
            else:
                sg = key[1]
                if key[2] == 1:
                    while st["nbar"] <= bar_of[sg]: barrier()
                    if hf: pend_free.append(sg)
                i = lds_read(f"ds_read_b64_tr_b16 v[{r+2*hf}:{r+2*hf+1}], v{self.vWA} offset:{(sg % RING)*1024 + 512*hf}")
                if hf: lastidx[key] = i
        def wait_for(idx):
            if idx < st["covered"]: return False
            j = idx
            while j+1 < len(lds) and lds[j+1] <= st["k"] - 1 - safe: j += 1
            n = len(lds) - 1 - j
            assert n <= 15, n
            emit(f"s_waitcnt lgkmcnt({n})"); st["covered"] = j+1
            return True
        kind = lambda t: "S" if t.startswith("buffer_store") else "v" if t.startswith("v_") else "s"
        def ready():
            if not Q: return False
            after = Q[0][1]
            if after is None: return True
            if after[0] == "k": return st["k"] >= after[1]
            return after[1] in mf_inst and self.ninst - mf_inst[after[1]] >= 8
        def missing():
            if Q and Q[0][1] and Q[0][1][0] == "m" and Q[0][1][1] in mf_inst: return 8 - (self.ninst - mf_inst[Q[0][1][1]])
            return 0
        def nop(n): emit(f"s_nop {n-1}"); self.ninst += n-1
        def fill(slots):
            n = min(missing(), slots)
            if n > 0: nop(n); slots -= n
            while slots and ready() and kind(Q[0][0]) != "S":
                emit(Q.pop(0)[0]); slots -= 1
                if Q and Q[0][0] == "|": Q.pop(0); break
        def enq(items, after=None):
            for i, t in enumerate(items): Q.append((t, after if i == 0 else None))
        L = self.vLANE
        enq(lines(common_ids(cfg["diag"])) + ["s_lshl_b32 s12, s10, 10", f"v_lshl_add_u32 v{self.vSEND}, v{L}, 4, s12", f"s_mul_i32 s12, s9, {GS}"] +
            [f"s_add_u32 s{40+d}, s12, {slot(d, q)}" for d in range(4) if d != q] +
            [f"s_add_u32 s44, s12, {slot(q, q ^ 2)}", "s_mov_b32 s13, 0", "s_mov_b32 s38, 0xffff0000",
             f"s_mov_b32 s36, {f2u(-LOG2E if h else 2*LOG2E):#x}", "s_mov_b32 s37, s36",
             "s_add_u32 s24, s24, s8", "s_addc_u32 s25, s25, 0"], ("k", 14))
        started = set()
        for k in range(480):
            g = k-1; st["k"] = k
            c, sg, ph = seq[k]
            while sends and sends[0][0] < k:
                e, d = sends.pop(0); a0 = self.acc(2*d); a1 = a0 + 4
                enq([f"v_cvt_pk_bf16_f32 v{a0+j}, v{a0+2*j}, v{a0+2*j+1}" for j in range(4)] +
                    [f"v_min_u32 v{a0+j}, -2, v{a0+j}" for j in range(4)] +
                    [f"buffer_store_dwordx4 v[{a0}:{a0+3}], v{self.vSEND}, s[28:31], s{40+d} offen sc1"], ("m", e))
                if len(sends) == 1: spare = a1
                if not sends:
                    HW, HR, OUT = a1+1, a1+2, a1+3
                    enq(lines(final_addr(cfg, L, spare, a1, HW, HR, OUT, "s10", 1, h)))
            if k == chk:
                T = [take(), take()]
                chkP = ["s_waitcnt vmcnt(0)", f"v_max3_u32 v{T[0]}, v{P}, v{P+1}, v{P+2}", f"v_max_u32 v{T[0]}, v{T[0]}, v{P+3}",
                        f"v_cmp_eq_u32 vcc, -1, v{T[0]}"]
                enq(chkP + ["|", f"s_cbranch_vccnz L_again{q}\nL_fin{q}:"])
                for j in range(4): enq([f"v_lshlrev_b32 v{T[j >> 1] + 2*(j & 1)}, 16, v{P+j}", f"v_and_b32 v{T[j >> 1] + 2*(j & 1) + 1}, s38, v{P+j}"])
            item = occ.get(g)
            if item and item[0][0] in "xw": backlog.append(item); item = None
            if k == 0:
                for _ in range(cfg["burst0"]):
                    cand = [e for e in backlog if not (e[0][0] == "x" and e[0][2] >= 8) and not (e[0][0] == "w" and e[0][1] > 0)]
                    if cand: backlog.remove(cand[0]); do_read(*cand[0])
            late = xi[k] not in lastidx or wi[k] not in lastidx
            waited = False
            if not late: waited = wait_for(max(lastidx[xi[k]], lastidx[wi[k]]))
            if not waited and ready() and kind(Q[0][0]) == "s" and not item:
                emit(Q.pop(0)[0]); waited = True
            if not waited and missing() > 0 and not item: nop(1); waited = True
            cand = [e for e in backlog if not (e[0][0] == "x" and e[0][2] >= 8 and st["nbar"] <= x4b)
                    and not (k < cfg["w1at"] and e[0][0] == "w" and e[0][1] > 0)] if k else []
            if k == tb or (item and item[0][0] == "b" and item[0][1] == st["nbar"]):
                if k == tb: assert st["nbar"] == NB
                barrier()
                if not waited: fill(1)
            elif k == t3:
                assert not sends and not Q
                P = take()
                ldP = f"buffer_load_dwordx4 v[{P}:{P+3}], v{self.vSEND}, s[28:31], s44 offen sc1"
                emit(ldP)
            else:
                slots = 2
                if ready() and kind(Q[0][0]) == "S": emit(Q.pop(0)[0]); slots = 4
                if cand:
                    backlog.remove(cand[0]); do_read(*cand[0]); slots -= 1
                    if len(cand) > 2: backlog.remove(cand[1]); do_read(*cand[1]); slots -= 1
                fill(slots)
            if late:
                while xi[k] not in lastidx or wi[k] not in lastidx: do_read(*backlog.pop(0))
                wait_for(max(lastidx[xi[k]], lastidx[wi[k]]))
            a = self.acc(c); wr = reg[wi[k]]; xr = reg[xi[k]]
            cs = f"v[{a}:{a+3}]" if c in started else "0"
            started.add(c)
            emit(f"v_mfma_f32_16x16x32_bf16 v[{a}:{a+3}], v[{wr}:{wr+3}], v[{xr}:{xr+3}], {cs}")
            mf_inst[k] = self.ninst
            if cfg["diag"] in (1, 2) and k in cfg["kst"]: out.append(f"    s_memtime s[{76+2*cfg['kst'].index(k)}:{77+2*cfg['kst'].index(k)}]")
            for key in release.get(k, []): pool.append((reg[key] - self.PB)//4)
        assert st["nbar"] == NB + 1 and not backlog
        self.nlds = len(lds); self.left = len(Q)
        st["k"] = 490
        if cfg["diag"]: out.append("    s_memtime s[70:71]")
        def act(cc):
            t = T[cc]; a = self.acc(2*q+cc); pr = lambda r: f"v[{r}:{r+1}]"
            return ([f"v_pk_add_f32 {pr(t+j)}, {pr(t+j)}, {pr(a+j)}" for j in (0, 2)] + [f"v_pk_mul_f32 {pr(t+j)}, {pr(t+j)}, s[36:37]" for j in (0, 2)],
                    [f"v_exp_f32 v{t+j}, v{t+j}" for j in range(4)],
                    [f"v_pk_add_f32 {pr(t+j)}, {pr(t+j)}, 1.0 op_sel_hi:[1,0]" for j in (0, 2)],
                    [f"v_rcp_f32 v{t+j}, v{t+j}" for j in range(4)])
        wr = lambda cc: f"ds_write_b128 v{HW}, v[{T[cc]}:{T[cc]+3}] offset:{cc*HCS}"
        A0, A1 = act(0), act(1)
        enq(A0[0], ("m", lastuse[2*q])); enq(A0[1]); enq(A1[0], ("m", lastuse[2*q+1]))
        enq(A0[2] + A0[3] + A1[1] + [wr(0)] + A1[2] + A1[3] + ["s_nop 0", wr(1)] + lines(final_stage(HR, OUT, take(), take())))
        while Q:
            if missing() > 0: nop(missing())
            t = Q.pop(0)[0]
            if t != "|": emit(t)
        self.again = f"""L_again{q}:
    s_add_u32 s13, s13, 1
    s_cmp_ge_u32 s13, {cfg["spin"]}
    s_cbranch_scc1 L_fin{q}
""" + "".join(f"    {x}\n" for x in [ldP] + chkP) + f"""    s_cbranch_vccnz L_again{q}
    s_branch L_fin{q}
"""
        return "\n".join(out) + "\n"

DIAG_ST = """    s_lshl_b32 s12, s2, 3
    s_add_u32 s12, s12, s3
    s_lshl_b32 s12, s12, 8
    s_add_u32 s12, s12, 0x800000
    v_lshlrev_b32 v25, 2, v0
    buffer_store_dword v24, v25, s[28:31], s12 offen
    s_endpgm
"""
HEAD = """; tanh(f)*sigmoid(g) of a 15-tap, dilation-2 causal convolution, as an implicit GEMM (M=2000, N=512, K=3840).
; 256 workgroups = 64 groups of 4. A group owns 128 rows x 64 output channels; its members split {f,g} x {half of d},
; so that every weight line a CU fetches is used whole. Waves 0-3 stream x and w into LDS (LDS-DMA), waves 4-7 run the
"""

def gen(**kw):
    cfg = dict(DEF); cfg.update(kw)
    RING = cfg["RING"]; diag = cfg["diag"]; assert RING % 4 == 0
    if diag and not cfg["kst"]: cfg["kst"] = [0, 24, 60, 100, 180, 340, 470]
    comps = [Compute(q, cfg) for q in range(4)]
    bodies = [c.build() for c in comps]
    free_bar = {sg: max(c.free_bar[sg] for c in comps) for sg in range(60 - RING)}
    x1_bar = min(c.x1_bar for c in comps); x4_bar = min(c.x4_bar for c in comps)
    XBASE = xbase(cfg); WS = wstr(cfg); lds = hbase(cfg) + 2*HREG
    info = [f"cfg={cfg}", f"re-reads {[len(c.splits) for c in comps]} lds reads {[c.nlds for c in comps]} left {[c.left for c in comps]} x1_bar={x1_bar} x4_bar={x4_bar}"]
    s = "    s_cmpk_ge_u32 s2, 256\n    s_cbranch_scc1 L_end\n"
    if diag: s += "    s_memrealtime s[94:95]\n    s_memtime s[96:97]\n"
    s += f"""    v_readfirstlane_b32 s3, v0
    s_bitcmp1_b32 s3, 8
    s_cbranch_scc1 L_compute
    s_load_dwordx4 s[16:19], s[0:1], 0      ; x, w
    s_lshr_b32 s7, s2, 5
    s_bfe_u32 s11, s2, 0x10001
    s_lshr_b32 s61, s3, 7
    s_lshl3_add_u32 s12, s7, s61
    s_lshr_b32 s3, s3, 6                    ; wave
    s_and_b32 s13, s3, 1
    s_lshl4_add_u32 s12, s12, s13
    s_sub_u32 s12, s12, 28
    s_lshl1_add_u32 s12, s12, s11
    s_lshl_b32 s12, s12, 8
    v_and_b32 v2, 56, v0
    v_lshlrev_b32 v2, 7, v2
    v_and_b32 v3, 7, v0
    v_lshlrev_b32 v3, 4, v3
    v_add3_u32 v8, v2, v3, s12
    s_mov_b32 s26, 512000
    s_mov_b32 s27, 0x20000
    s_bitcmp1_b32 s2, 4                     ; batch
    s_cselect_b32 s8, s26, 0
    s_mul_i32 s36, s3, {XCH}
    s_add_u32 s36, s36, {XBASE}
    s_mov_b32 m0, s36
    s_movk_i32 s39, 0x4000
    s_waitcnt lgkmcnt(0)
    s_mov_b64 s[20:21], s[18:19]
    s_mov_b64 s[18:19], s[26:27]
    s_add_u32 s16, s16, s8
    s_addc_u32 s17, s17, 0
"""
    if diag: s += "    s_memtime s[98:99]\n"
    COMP = f"""    s_branch L_loader
L_compute:
    s_getpc_b64 s[46:47]
L_pc:
    v_and_b32 v0, 63, v0                    ; lane
    s_and_b32 s4, s2, 3
    s_lshr_b32 s3, s3, 6                    ; wave
    s_and_b32 s10, s3, 3
    s_lshr_b32 s12, s2, 3
    s_lshl2_add_u32 s12, s12, s10
    s_lshl_b32 s12, s12, 6
    s_and_b32 s13, s12, 0xfc0
    s_load_dword s54, s[46:47], s13
    s_lshl_b32 s13, s4, 13
    s_add_u32 s12, s12, s13
    s_add_u32 s12, s12, L_role0-L_pc
    s_load_dword s55, s[46:47], s12
    v_and_b32 v8, 15, v0
    v_lshrrev_b32 v9, 4, v0                 ; k chunk
    v_mul_u32_u24 v2, {XCH}, v8
    v_lshl_add_u32 v2, v9, 4, v2
    v_add_u32 v2, {XBASE}, v2
    v_lshrrev_b32 v11, 3, v8
    v_and_b32 v12, 1, v9
    v_lshl_or_b32 v11, v12, 1, v11          ; swizzle
    v_xor_b32 v11, s10, v11
    v_and_or_b32 v11, v8, 12, v11
    v_and_b32 v12, 3, v8
    v_lshl_add_u32 v11, v11, 2, v12
    v_mul_u32_u24 v1, {WS}, v9
    v_lshl_add_u32 v1, v11, 3, v1
    s_mov_b64 exec, 0
    s_cmp_eq_u32 s10, 0
    s_cbranch_scc1 L_padL0
L_disp:
    s_cmp_eq_u32 s4, 1
    s_cbranch_scc1 L_role1
    s_cmp_eq_u32 s4, 2
    s_cbranch_scc1 L_role2
    s_cmp_eq_u32 s4, 3
    s_cbranch_scc1 L_role3
    s_branch L_role0
L_loader:
"""
    WPREP = f"""    v_and_b32 v0, 63, v0                    ; lane
    s_and_b32 s4, s2, 3
    s_bfe_u32 s6, s2, 0x20002
    s_lshl_b32 s13, s13, 6
    v_and_b32 v4, 16, v0
    v_lshlrev_b32 v4, 1, v4
    v_or_b32 v4, s13, v4
    v_xor_b32 v3, v3, v4
    s_and_b32 s14, s4, 1
    s_lshl2_add_u32 s14, s14, s6
    s_lshl_b32 s15, s11, 10
    s_add_u32 s15, s15, s14
    s_lshl_b32 s15, s15, 7
    s_lshl_b32 s12, s3, 13
    s_add_u32 s12, s12, s15
    v_add3_u32 v7, v2, v3, s12              ; w offset
    s_mul_i32 s37, s3, {WS}
    s_mov_b32 s22, 3932160
    s_mov_b32 s23, s27
"""
    PPREP = f"""    s_lshr_b32 s60, s2, 3
    s_lshl_b32 s60, s60, 10
    s_add_u32 s60, s60, s15
    s_lshl_b32 s13, s13, 2
    s_xor_b32 s60, s60, s13
    v_bfrev_b32 v19, 1
"""
    W1PREP = f"""    s_movk_i32 s51, 0x1000
    s_mov_b32 s52, {262144 - 1024}
    s_add_u32 s49, s52, s51
"""
    order = []; nw = [0]
    def add(tok):
        if tok == "w":
            order.append(("w", nw[0])); nw[0] += 1
            for t in cfg["ins"].get(nw[0]-1, []): add(t)
        elif tok[0] in "xy": order.append(("x", int(tok[0] == "y"), int(tok[1])))
        elif tok == "C": order.extend([("c", 0), ("c", 1), ("c", 2), ("r",)])
        elif tok == "T": order.append(("t",))
        elif tok[0] == "P": order.append(("p",) + tuple(int(v) for v in tok.split(":")[1:]))
        else: raise ValueError(tok)
    for t in cfg["pre"]: add(t)
    K0 = len(order)
    while nw[0] < 60: add("w")
    areg = {op: 56 + i for i, op in enumerate(o for o in order if o[0] == "p")}
    def addr_asm(op):
        _, a, b = op
        return f"""    s_add_u32 s12, s61, {a}
    v_lshl_add_u32 v20, v0, 1, s12          ; stage
    v_mul_u32_u24 v21, 4370, v20
    v_lshrrev_b32 v21, 16, v21              ; d step
    v_mul_u32_u24 v21, {15*262144-32768}, v21
    v_cmp_gt_u32 vcc, {b}, v20
    v_lshl_add_u32 v20, v20, 18, s60
    v_sub_u32 v21, v20, v21
    v_cndmask_b32 v{areg[op]}, v19, v21, vcc
"""
    assert order[:5] == [("x", 0, 0), ("x", 0, 1), ("x", 0, 2), ("x", 0, 3), ("w", 0)]
    RL = "    buffer_load_dword v16, off, s[32:35], s58 sc1\n"
    FL = "    buffer_load_dword v16, off, s[28:31], s47 sc1\n"
    ms = dict(m0=("x", 0), so=None)
    def setm0(kind, off):
        prev = ms["m0"]; ms["m0"] = (kind, off)
        if prev == (kind, off): return ""
        if prev[0] == kind and abs(off - prev[1]) < 32768: return f"    s_addk_i32 m0, {off - prev[1]}\n"
        return f"    s_add_u32 m0, {'s36' if kind == 'x' else 's37'}, {off}\n"
    def op_asm(op):
        if op[0] == "x":
            _, L, m = op
            t = setm0("x", L*(XL-128) + 4*m*XCH)
            return t + (f"    v_add_u32 v{8+m}, s39, v{7+m}\n" if m and not L else "    s_nop 0\n" if t else "") + f"    buffer_load_dwordx4 v{8+m}, s[16:19], 0 offen offset:{128*L} lds\n"
        if op[0] == "w":
            sl = op[1] % RING; io = (sl & 3)*1024; so = woff(op[1]) - io; d = None if ms["so"] is None else so - ms["so"]; ms["so"] = so
            t = {262144-1024: "s_add_u32 s38, s38, s52", 262144+3072: "s_add_u32 s38, s38, s49"}.get(d, f"s_mov_b32 s38, {so}")
            return setm0("w", (sl & ~3)*1024) + f"    {t}\n    buffer_load_dwordx4 v7, s[20:23], s38 offen offset:{io} lds\n"
        if op[0] == "p": return f"    buffer_load_dword v23, v{areg[op]}, s[20:23], 0 offen\n"
        if op[0] == "c": return f"    buffer_store_dwordx4 v[24:27], v13, s[28:31], s{44+op[1]} offen sc1\n"
        if op[0] == "r": return RL
        return "    buffer_load_dword v23, off, s[24:27], 0\n"
    SL = [f"    s_buffer_load_dwordx2 s[54:55], s[16:19], s53 offset:{512*i + 188}\n" for i in range(4)]
    prev = (0, 0); bit = {0: "s56", 1: "s57", 2: "s51", 3: "s59", 4: "s39"}
    for j, sg in enumerate(range(cfg["sfrom"], 60, 2)):
        cur = (woff(sg), woff(min(sg+1, 59))); dA, dB = cur[0]-prev[0], cur[1]-prev[1]; prev = cur
        t = f"    s_add_u32 s60, s60, {'s63' if dA == 524288 else hex(dA & 0xffffffff)}\n"
        if dA != dB: t += f"    s_mul_i32 s12, s61, {hex((dB-dA) & 0xffffffff)}\n    s_add_u32 s60, s60, s12\n"
        if j: t += f"    s_xor_b32 s60, s60, {bit[(j & -j).bit_length()-1]}\n"
        SL.append(t + "    s_buffer_load_dwordx2 s[54:55], s[20:23], s60 offset:60\n")
    KA2 = """    s_load_dwordx2 s[28:29], s[0:1], 32     ; ws
    s_load_dwordx2 s[24:25], s[0:1], 16     ; out
"""
    later = f"""; while the first loads are under way: touch the hand-off and output pages once (address translation), later addresses
    s_lshr_b32 s9, s2, 2                    ; group
    s_mov_b32 s30, {(10<<20) if diag else 64*GS}
    s_mov_b32 s31, s27
    s_mul_i32 s48, s9, {GS}
    s_waitcnt lgkmcnt(0)
    s_add_u32 s47, s48, {12*SS}              ; the group's counter
    s_or_b32 s5, s3, s4
    s_cbranch_scc1 L_np0
    s_atomic_swap s5, s[28:29], s47 glc     ; the group's first wave zeroes it ...
L_np0:
    s_load_dword s54, s[28:29], s47 offset:128
    s_load_dwordx2 s[54:55], s[24:25], 60
    s_movk_i32 s34, 256
    s_mov_b32 s35, s27
    s_lshl_b32 s58, s9, 2
""" + "".join(f"""    s_xor_b32 s{43+p}, s4, {p}
    s_mulk_i32 s{43+p}, {3*SS}
    s_add_u32 s{43+p}, s{43+p}, s48
""" + (f"    s_addk_i32 s{43+p}, {(p-1)*SS}\n" if p > 1 else "") for p in (1, 2, 3)) + f"""    s_lshl_b32 s12, s3, 10
    v_lshl_add_u32 v13, v0, 4, s12          ; lane*16 + wave*1024
    v_mov_b32 v24, -1
    v_mov_b32 v25, -1
    v_mov_b32 v26, -1
    v_mov_b32 v27, -1
    s_lshl3_add_u32 s53, s7, s14
    s_lshl2_add_u32 s53, s53, s3
    s_lshl3_add_u32 s53, s53, s11
    s_lshl_b32 s53, s53, 8
    s_mov_b32 s63, 0x80000
    s_movk_i32 s56, 0x400
    s_movk_i32 s57, 0x800
    s_movk_i32 s59, 0x2000
""" + "".join(addr_asm(op) for op in order[K0:] if op in areg) + """    s_lshl_b32 s12, s61, 14
    s_xor_b32 s60, s60, s12
    s_mov_b32 s62, 1
    s_mov_b32 s13, 0
"""
    PUB = """    s_or_b32 s12, s3, s4
    s_cbranch_scc1 L_np1
    s_waitcnt lgkmcnt(0)
    s_atomic_add s62, s[32:33], s58         ; ... and says so in d_debug
L_np1:
"""
    issued = []; oi = 0
    grp = groups(cfg); NB = len(grp)
    tbar = [16*min(c.bar_k[n] for c in comps) for n in range(NB)]
    can = lambda op, nb: not (op[0] == "w" and op[1] >= RING and nb <= free_bar[op[1]-RING])
    cost = lambda op: cfg["opc"] if op[0] in "wx" else 3*(op[2]-op[1]) if op[0] == "p" else cfg["cc"] if op[0] == "c" else 30
    cov = None; flagn = None; tpipe = 0; tta = 0; shift = 0; done_t = {}; sched = []
    for n in range(NB):
        needs = [("w", grp[n][-1])] + [("x", 0, m) for m in range(4)]
        if n >= x4_bar: needs.append(("x", 0, 4))
        if n >= x1_bar: needs += [("x", 1, m) for m in range(5)]
        cnt = 0; now = tbar[n-1] + shift if n else 0
        while oi < len(order) and can(order[oi], n):
            op = order[oi]
            forced = any(x not in issued for x in needs) or op[0] == 'r'
            ta = max(tta, now + 20) + cost(op)
            if n in cfg["quota"] and not forced:
                if cnt >= cfg["quota"][n]: break
            elif n > 0 and not forced:
                nxt = max([tbar[n] + shift] + [done_t[x] for x in needs])
                inev = any(o[0] in "pc" and d > now for o, d in done_t.items())
                if (ta > nxt + cfg["slack"] and cnt) or cnt >= cfg["maxn"] or sum(d > ta for d in done_t.values()) >= (cfg["cap2"] if inev else cfg["cap"]): break
            if n == 0 and not forced and cnt >= K0: break
            if oi == 4: szA = tsize(s); s += COMP + WPREP
            if oi == 5: s += PPREP
            if op == ("w", 1): s += W1PREP
            if op in areg and oi < K0: s += addr_asm(op)
            s += op_asm(op); issued.append(op); oi += 1; cnt += op[0] != 'r'
            if oi == 6: s += KA2 + "    s_load_dwordx2 s[32:33], s[0:1], 24     ; debug\n"
            if n == 0:
                if not forced: tpipe += cost(op) + (cfg["ev0"] if op[0] == "p" else 0)
            else:
                tta = ta
                tpipe = max(tpipe + cost(op), ta + {"p": cfg["ev"], "c": cfg["evc"]}.get(op[0], cfg["lat"]))
            done_t[op] = tpipe
        if n == 0:
            if diag: s += "    s_memtime s[88:89]\n"
            s += later
        if n == cfg["pubn"]: s += PUB
        for _ in range(cfg["ssch"].get(n, 0) if cfg["ssch"] else cfg["s1"] if n == 1 else int(n >= cfg["s2"])):
            if SL: s += SL.pop(0)
        if cov is not None and flagn is None and n >= cov + cfg["fdel"]:
            flagn = n
            s += """    s_cmp_lg_u32 s3, 0
    s_cbranch_scc1 L_noflag
    v_cmp_eq_u32 vcc, 0, v16
    s_cbranch_vccnz L_rdy
L_rdyok:
    s_atomic_add s62, s[28:29], s47
L_noflag:
"""
        need = max(issued.index(x) for x in needs)
        if cov is None and ("r",) in issued and need > issued.index(("r",)): cov = n
        shift = max(shift, done_t[issued[need]] - tbar[n])
        vm = len(issued) - 1 - need
        sched.append((cnt, vm, shift))
        assert vm <= 63
        s += f"    s_waitcnt vmcnt({vm})\n    s_barrier\n"
        if n == 0: sz0 = tsize(s)
    assert oi == len(order) and not SL and flagn
    info[-1] += f" cov={cov} flag={flagn}"
    info.append(f"loader (issued, vmcnt, modelled stall) per barrier: {sched}")
    polls = """    buffer_load_dwordx4 v[24:27], v13, s[28:31], s48 offen sc1
    buffer_load_dwordx4 v[28:31], v13, s[28:31], s50 offen sc1
"""
    s += FL + f"""    s_mul_i32 s12, s4, {3*SS}
    s_add_u32 s48, s48, s12                 ; slots written by the two partners of the other half
    s_add_u32 s50, s48, s59
    s_bitcmp1_b32 s4, 0                     ; own half is g -> other is f
    s_mov_b32 s40, {f2u(-LOG2E):#x}
    s_cselect_b32 s40, {f2u(2*LOG2E):#x}, s40
    s_mov_b32 s41, s40
    s_mov_b32 s43, 0xffff0000
    s_add_u32 s24, s24, s8
    s_addc_u32 s25, s25, 0
""" + final_addr(cfg, 0, 20, 21, 14, 19, 22, "s3", 0, None) + """    s_waitcnt vmcnt(0)
    v_cmp_gt_u32 vcc, 4, v16                ; all four members have marked their slots?
    s_cbranch_vccnz L_flag
L_flagok:
""" + ("    s_mov_b32 s92, s13\n" if diag else "") + "    s_mov_b32 s13, 0\n    s_barrier\n"
    if diag: s += "    s_memtime s[80:81]\n"
    s += polls + (f"    s_setprio {cfg['lprio']}\n" if cfg["lprio"] else "") + """L_poll:
    s_waitcnt vmcnt(0)
    v_max3_u32 v36, v24, v25, v26
    v_max3_u32 v37, v27, v28, v29
    v_max3_u32 v36, v36, v30, v31
    v_max_u32 v36, v36, v37
    v_cmp_eq_u32 vcc, -1, v36
    s_cbranch_vccnz L_repoll
L_got:
"""
    if diag: s += "    s_memtime s[82:83]\n    s_add_u32 s93, s13, 1\n"
    pr = lambda r: f"v[{r}:{r+1}]"
    for cc in (0, 1):
        R = range(4*cc, 4*cc+4); pk = cc and cfg["ypk"]
        for j in (2*cc, 2*cc+1):
            s += f"    v_lshlrev_b32 v{40+2*j}, 16, v{24+j}\n    v_and_b32 v{41+2*j}, s43, v{24+j}\n"
            s += f"    v_lshlrev_b32 v{48+2*j}, 16, v{28+j}\n    v_and_b32 v{49+2*j}, s43, v{28+j}\n"
        if pk:
            for j in (4, 6): s += f"    v_pk_add_f32 {pr(40+j)}, {pr(40+j)}, {pr(48+j)}\n"
            for j in (4, 6): s += f"    v_pk_mul_f32 {pr(40+j)}, {pr(40+j)}, s[40:41]\n"
        else:
            for j in R: s += f"    v_add_f32 v{40+j}, v{40+j}, v{48+j}\n"
            for j in R: s += f"    v_mul_f32 v{40+j}, s40, v{40+j}\n"
        for j in R: s += f"    v_exp_f32 v{40+j}, v{40+j}\n"
        if pk:
            for j in (4, 6): s += f"    v_pk_add_f32 {pr(40+j)}, {pr(40+j)}, 1.0 op_sel_hi:[1,0]\n"
        else:
            for j in R: s += f"    v_add_f32 v{40+j}, 1.0, v{40+j}\n"
        for j in R: s += f"    v_rcp_f32 v{40+j}, v{40+j}\n"
        s += f"    s_nop 0\n    ds_write_b128 v14, v[{40+4*cc}:{43+4*cc}] offset:{HCS*cc}\n"
    fs = final_stage(19, 22, 24, 28)
    if diag:
        fs = fs.replace("    s_barrier\n", "    s_memtime s[86:87]\n    s_barrier\n    s_memtime s[84:85]\n")
        fs += "    s_waitcnt vmcnt(0)\n    s_memrealtime s[90:91]\n    s_branch L_diagL\n"
    s += fs + f"""L_end:
    s_endpgm
L_repoll:
    s_add_u32 s13, s13, 1
    s_cmp_ge_u32 s13, {cfg["spin"]}
    s_cbranch_scc1 L_got
""" + polls + f"""    s_branch L_poll
L_flag:
    s_add_u32 s13, s13, 1
    s_cmp_ge_u32 s13, {cfg["spin"]}
    s_cbranch_scc1 L_flagok
{FL}    s_waitcnt vmcnt(0)
    v_cmp_gt_u32 vcc, 4, v16
    s_cbranch_vccnz L_flag
    s_branch L_flagok
L_rdy:
    s_add_u32 s13, s13, 1
    s_cmp_ge_u32 s13, {cfg["spin"]}
    s_cbranch_scc1 L_rdyok
{RL}    s_waitcnt vmcnt(0)
    v_cmp_eq_u32 vcc, 0, v16
    s_cbranch_vccnz L_rdy
    s_branch L_rdyok
"""
    npl = (tsize(s[:s.index("L_flag:")]) + 8 - 1)//1088
    page0, end0 = add_pads(s, [f"L_padL{k}" for k in range(npl)], [f"L_padL{k+1}" for k in range(npl-1)] + ["L_disp"], lambda L, i: True,
                           [1088*(k+1) for k in range(npl)])
    assert end0 <= 3328, end0
    sizes = [szA, sz0, end0]; roles = ""
    for q in range(4):
        s = KA2 + f"""    s_cmp_eq_u32 s10, 1
    s_cbranch_scc1 L_pad{q}_0
    s_cmp_eq_u32 s10, 2
    s_cbranch_scc1 L_pad{q}_1
    s_cmp_eq_u32 s10, 3
    s_cbranch_scc1 L_pad{q}_2
    s_branch NPD0
L_main{q}:
    s_mov_b64 exec, -1
    s_setprio {cfg["prio"]}
""" + ("    s_memtime s[72:73]\n    s_waitcnt lgkmcnt(0)\n    s_memtime s[74:75]\n" if diag else "") + "    s_waitcnt lgkmcnt(0)\n" + bodies[q]
        if diag: s += "    s_memtime s[64:65]\n    s_waitcnt vmcnt(0)\n    s_memtime s[66:67]\n    s_memrealtime s[68:69]\n    s_branch L_diagC\n"
        s += "    s_endpgm\n"
        npd = 7 if tsize(s) + 24 > 4096 + 3*1088 + (120 if diag else 0) else 6
        s = s.replace("    s_branch NPD0\n", f"    s_branch L_pad{q}_6\n" if npd == 7 else "") + comps[q].again
        s, end = add_pads(s, [f"L_pad{q}_{k}" for k in range(npd)], [f"L_pad{q}_{k+3}" if k < 3 else f"L_main{q}" for k in range(npd)],
                          lambda L, i: L[i].strip().startswith("v_mfma") and L[i-1].strip().startswith("v_mfma"),
                          [1024, 2048, 3072, 4096] + ([5120, 6144, 7168] if npd == 7 else [5184, 6272]))
        sizes.append(npd)
        assert end <= 8192, end
        sizes.append(end)
        roles += f".p2align 12\n; ---------------- compute waves, role {q} ----------------\nL_role{q}:\n" + s
    if diag:
        roles += ".p2align 12\nL_diagC:\n    s_waitcnt lgkmcnt(0)\n    v_mov_b32 v24, 0\n"
        for i, r in enumerate(["s94", "s64", "s66", "s68", "s70", "s13", "s72", "s74"] + [f"s{76+2*j}" for j in range(7)]):
            if i in (1, 2, 4) or i > 5: roles += f"    s_sub_u32 {r}, {r}, s96\n"
            roles += f"    v_writelane_b32 v24, {r}, {i}\n"
        roles += DIAG_ST + "L_diagL:\n    s_waitcnt lgkmcnt(0)\n    v_mov_b32 v24, 0\n"
        for i, r in enumerate(["s94", "s98"] + [f"s{64+2*i}" for i in range(11)] + ["s92", "s93", "s86", "s88", "s88", "s90", "s0"]):
            if 1 <= i <= 12 or i in (15, 16): roles += f"    s_sub_u32 {r}, {r}, s96\n"
            roles += f"    v_writelane_b32 v24, {r}, {i}\n"
        roles += DIAG_ST
    info.append(f"code bytes: {sizes}")
    s = HEAD + f"""; @launch grid=(256,1,1) block=(512,1,1) lds={lds}
.amdgcn_target "amdgcn-amd-amdhsa--gfx950"
.text
.p2align 12
.globl {NAME}
.p2align 8
.type {NAME},@function
{NAME}:
""" + page0 + roles + f""".p2align 12
.section .rodata,"a"
.p2align 6
.amdhsa_kernel {NAME}
  .amdhsa_next_free_vgpr 256
  .amdhsa_next_free_sgpr 102
  .amdhsa_accum_offset 256
  .amdhsa_group_segment_fixed_size 0
  .amdhsa_kernarg_size 40
  .amdhsa_user_sgpr_count 2
  .amdhsa_user_sgpr_kernarg_segment_ptr 1
  .amdhsa_system_sgpr_workgroup_id_x 1
.end_amdhsa_kernel
"""
    if diag == 3: s = re.sub(r"    s_memtime .*\n", "    s_mov_b32 s100, 0x12345\n", s)
    if diag == 2: s = s.replace("s_memtime", "s_memrealtime")
    gen.info = info
    return s, lds

if __name__ == "__main__":
    kw = {}
    for a in sys.argv[2:]:
        k, v = a.split("=", 1)
        kw[k] = eval(v)
    s, lds = gen(**kw)
    open(sys.argv[1], "w").write(s)
    print("\n".join(gen.info[1:]))
```
